```python
import torch

def _softmax(x, axis=-1):
    return torch.softmax(x, dim=axis)
def _gelu(x):
    return torch.nn.functional.gelu(x, approximate="tanh")
def _silu(x):
    return torch.nn.functional.silu(x)
def _sigmoid(x):
    return torch.sigmoid(x)
def _layernorm(x, axis=-1, eps=1e-5):
    m = x.mean(dim=axis, keepdim=True)
    v = x.var(dim=axis, keepdim=True, unbiased=False)
    return (x - m) / torch.sqrt(v + eps)
def _scatter_add(tgt, idx, src, axis=0):
    return tgt.clone().index_add_(axis, idx, src)
def _segment_sum(src, seg, n):
    out = torch.zeros((n,) + src.shape[1:], dtype=src.dtype)
    return out.index_add_(0, seg, src)
def _pad(x, pw):
    flat = tuple(v for pair in reversed(pw) for v in pair)
    return torch.nn.functional.pad(x, flat)

kernel_name = 'gated_mix__mha_block__mixer_s_mlp__prompt'

def setup_inputs():

    _w = (lambda a: (lambda t: t.to(torch.bfloat16) if t.is_floating_point() else t)(torch.as_tensor(a)))
    def _A_setup():
        B, S, D, H = 1, 2048, 576, 32
        return {
            "x": _w((lambda *s: torch.randn(*s, dtype=torch.bfloat16) * 0.05)(B, S, D)),
            "wqkv": _w((lambda *s: torch.randn(*s, dtype=torch.bfloat16) * 1.6)(D, 3 * D)),
            "wo": _w((lambda *s: torch.randn(*s, dtype=torch.bfloat16) * 0.1)(D, D)),
        }
    _A_in = _A_setup()

    def _B_setup():
        B, S, D, F = 1, 2048, 576, 4608
        return {
            "x":  _w((lambda *s: torch.randn(*s, dtype=torch.bfloat16) * 0.05)(B, S, D)),
            "w1": _w((lambda *s: torch.randn(*s, dtype=torch.bfloat16) * 3.2)(D, D) * (D ** -0.5)),
            "w2": _w((lambda *s: torch.randn(*s, dtype=torch.bfloat16) * 3.2)(D, D) * (D ** -0.5)),
            "w3": _w((lambda *s: torch.randn(*s, dtype=torch.bfloat16) * 3.2)(D, F) * (D ** -0.5)),
            "w4": _w((lambda *s: torch.randn(*s, dtype=torch.bfloat16) * 3.2)(F, D) * (F ** -0.5)),
        }
    _B_in = _B_setup()

    return {
        "A_x": _A_in["x"],
        "A_wqkv": _A_in["wqkv"],
        "A_wo": _A_in["wo"],
        "B_x": _B_in["x"],
        "B_w1": _B_in["w1"],
        "B_w2": _B_in["w2"],
        "B_w3": _B_in["w3"],
        "B_w4": _B_in["w4"],
        "gate_w": _w((lambda *s: torch.randn(*s, dtype=torch.bfloat16) * 0.05)(576) * 16.0),
    }

def reference(A_x, A_wqkv, A_wo, B_x, B_w1, B_w2, B_w3, B_w4, gate_w):
    def _A_ref(x, wqkv, wo):
        B, S, D = x.shape
        H = 32
        Dh = D // H
        qkv = (lambda x, *d: x.permute(*d))((x @ wqkv).reshape(B, S, 3, H, Dh), 2, 0, 3, 1, 4)
        q, k, v = qkv[0], qkv[1], qkv[2]
        scores = torch.einsum("bhqd,bhkd->bhqk", q, k) * (Dh ** -0.5)
        p = _softmax(scores, axis=-1)
        o = torch.einsum("bhqk,bhkd->bhqd", p, v)
        return (lambda x, *d: x.permute(*d))(o, 0, 2, 1, 3).reshape(B, S, D) @ wo

    def _B_ref(x, w1, w2, w3, w4):
        B, S, D = x.shape
        h = _gelu(_layernorm(x, axis=-1) @ w1)
        c = D // 4
        g0 = _pad(h[:, :, 0*c:1*c], ((0, 0), (1, 0), (0, 0)))[:, :S, :]
        g1 = _pad(h[:, :, 1*c:2*c], ((0, 0), (0, 1), (0, 0)))[:, 1:, :]
        g2 = _pad(h[:, :, 2*c:3*c], ((0, 0), (2, 0), (0, 0)))[:, :S, :]
        g3 = _pad(h[:, :, 3*c:   ], ((0, 0), (0, 2), (0, 0)))[:, 2:, :]
        hs = torch.concatenate([g0, g1, g2, g3], axis=-1) @ w2
        x1 = x + hs
        h2 = _gelu(_layernorm(x1, axis=-1) @ w3) @ w4
        return x1 + h2

    x = A_x
    g = _sigmoid((x * gate_w).sum(-1, keepdims=True))
    a = _A_ref(x, A_wqkv, A_wo)
    b = _B_ref(x, B_w1, B_w2, B_w3, B_w4)
    return g * a + (1 - g) * b
```

```python
import re

STAMP = [False]
class Regs:
    def __init__(self, prefix, limit, start=0):
        self.p = prefix; self.limit = limit; self.next = start; self.hi = start
    def alloc(self, n=1, align=1):
        if n > 1 and align == 1: align = 2
        b = (self.next + align - 1) // align * align
        assert b + n <= self.limit, f"out of {self.p} regs: need {b+n} > {self.limit}"
        self.next = b + n; self.hi = max(self.hi, self.next)
        return b
    def mark(self): return self.next
    def reset(self, m): self.next = m

def v(b, n=1): return f"v{b}" if n == 1 else f"v[{b}:{b+n-1}]"
def a(b, n=1): return f"a{b}" if n == 1 else f"a[{b}:{b+n-1}]"
def s(b, n=1): return f"s{b}" if n == 1 else f"s[{b}:{b+n-1}]"

_REG = re.compile(r"^(-|abs\(|\|)?([vas])(\d+)\)?\|?$")
_RNG = re.compile(r"^(-)?([vas])\[(\d+):(\d+)\]$")
def regs_of(op):
    op = op.strip()
    if op in ("vcc",): return {"vcc"}
    if op in ("vcc_lo", "vcc_hi"): return {"vcc"}
    if op in ("exec", "exec_lo", "exec_hi"): return {"exec"}
    if op == "m0": return {"m0"}
    m = _RNG.match(op)
    if m: return {f"{m.group(2)}{i}" for i in range(int(m.group(3)), int(m.group(4)) + 1)}
    m = _REG.match(op)
    if m: return {f"{m.group(2)}{m.group(3)}"}
    return set()

TRANS = ("v_exp_", "v_log_", "v_rcp_", "v_rsq_", "v_sqrt_", "v_sin_", "v_cos_")
class Ins:
    def __init__(self, text):
        self.text = text
        t = text.split(";")[0].strip()
        parts = t.split(None, 1)
        self.mn = parts[0]
        rest = parts[1] if len(parts) > 1 else ""
        ops = [o.strip() for o in re.split(r",(?![^\[]*\])", rest)] if rest else []
        self.mods = []
        if ops:
            last = ops[-1].split()
            if last:
                ops[-1] = last[0]; self.mods = last[1:]
        self.ops = ops
        mn = self.mn
        self.is_mfma = mn.startswith("v_mfma")
        self.is_valu = mn.startswith("v_") and not self.is_mfma
        self.is_trans = mn.startswith(TRANS)
        self.is_ds = mn.startswith("ds_")
        self.is_vmem = mn.startswith(("buffer_", "global_", "flat_"))
        self.is_smem = mn.startswith(("s_load", "s_buffer_load", "s_memtime", "s_memrealtime", "s_atomic"))
        self.is_salu = mn.startswith("s_") and not self.is_smem
        self.is_branch = mn.startswith(("s_branch", "s_cbranch"))
        self.is_dot = mn.startswith("v_dot")
        self.lds_dma = self.is_vmem and ("lds" in self.mods or "_lds_" in mn)
        self.dpp = any(m.startswith(("row_", "quad_perm", "wave_", "row_bcast")) for m in self.mods)
        w, r = set(), set()
        R = [regs_of(o) for o in ops]
        if self.is_mfma:
            w |= R[0]; self.srcA = R[1]; self.srcB = R[2]; self.srcC = R[3]; r |= R[1] | R[2] | R[3]
            self.passes = 4 if "16x16" in mn else 8
        elif self.is_valu:
            if mn.startswith("v_nop"): pass
            elif mn.startswith("v_cmpx"):
                w |= R[0] | {"exec"}; [r.update(x) for x in R[1:]]
            elif mn.startswith(("v_add_co", "v_sub_co", "v_subrev_co", "v_addc_co", "v_subb_co", "v_mad_u64", "v_div_scale")):
                w |= R[0] | R[1]; [r.update(x) for x in R[2:]]
            elif mn.startswith(("v_permlane32_swap", "v_permlane16_swap", "v_swap")):
                w |= R[0] | R[1]; r |= R[0] | R[1]
            else:
                w |= R[0]; [r.update(x) for x in R[1:]]
                if mn.startswith(("v_fmac", "v_dot2c", "v_pk_fmac", "v_writelane")) or self.dpp: r |= R[0]
                if any(m.startswith("dst_unused:UNUSED_PRESERVE") for m in self.mods): r |= R[0]
        elif self.is_ds:
            if mn.startswith(("ds_read", "ds_bpermute", "ds_permute", "ds_swizzle")) or "_rtn" in mn:
                w |= R[0]; [r.update(x) for x in R[1:]]
            else:
                [r.update(x) for x in R]
        elif self.is_vmem:
            if self.lds_dma:
                [r.update(x) for x in R]; r.add("m0")
            elif "_load" in mn:
                w |= R[0]; [r.update(x) for x in R[1:]]
            elif "atomic" in mn and "sc0" in self.mods:
                w |= R[0]; [r.update(x) for x in R]
            else:
                [r.update(x) for x in R]
        elif self.is_smem:
            w |= R[0]; [r.update(x) for x in R[1:]]
        elif self.is_salu:
            if mn.startswith(("s_cmp", "s_waitcnt", "s_barrier", "s_nop", "s_setprio", "s_endpgm", "s_sleep", "s_bitcmp")) or self.is_branch:
                [r.update(x) for x in R]
                if "vcc" in mn: r.add("vcc")
                if "exec" in mn: r.add("exec")
            elif "saveexec" in mn:
                w |= R[0] | {"exec"}; [r.update(x) for x in R[1:]]; r.add("exec")
            else:
                w |= R[0]; [r.update(x) for x in R[1:]]
                if mn.startswith(("s_addk", "s_mulk")): r |= R[0]
        self.w, self.r = w, r
        self.states = 1
        if mn == "s_nop": self.states = int(ops[0], 0) + 1
        self.wide_store = (self.is_vmem and "store" in mn and ("x3" in mn or "x4" in mn))
        if self.wide_store:
            self.sdata = R[0] if mn.startswith("buffer_") else R[1]

def required(p, c):
    need = 0
    vw = {x for x in p.w if x[0] in "va" and x != "vcc"}
    sw = {x for x in p.w if x[0] == "s" or x == "vcc"}
    if p.is_mfma:
        big = {4: 8, 8: 12}[p.passes]
        if c.is_mfma:
            if vw & (c.srcA | c.srcB): need = max(need, big)
            if vw & c.srcC:
                if not (c.srcC == p.w and c.passes == p.passes): need = max(need, {4: 6, 8: 10}[p.passes])
            elif vw & c.w: need = max(need, big)
        elif c.is_valu or c.is_vmem or c.is_ds:
            if vw & (c.r | c.w): need = max(need, big)
        if c.is_valu and (p.srcC & c.w): need = max(need, {4: 3, 8: 7}[p.passes])
        if (c.is_ds or c.is_vmem) and (p.srcC & c.w): need = max(need, {4: 3, 8: 7}[p.passes])
    if p.is_valu:
        if c.is_mfma and (vw & c.r): need = max(need, 3 if p.is_dot else 2)
        if c.is_mfma and "exec" in p.w: need = max(need, 4)
        if p.is_trans and c.is_valu and not c.is_trans and (vw & c.r): need = max(need, 1)
        if p.is_trans and (c.is_vmem or c.is_ds) and (vw & c.r): need = max(need, 1)
        if p.is_dot and (c.is_valu or c.is_vmem or c.is_ds) and (vw & (c.r | c.w)):
            same_c = (c.mn == p.mn and not (vw & (regs_of(c.ops[1]) | regs_of(c.ops[2]))))
            if not same_c: need = max(need, 3)
        if c.is_vmem and (sw & c.r): need = max(need, 5)
        if c.is_valu and (sw & c.r):
            need = max(need, 4 if c.mn.startswith(("v_readlane", "v_writelane", "v_div_fmas")) else 2)
        if c.is_salu and (sw & c.r): need = max(need, 2)
        if c.mn.startswith(("v_readlane", "v_readfirstlane")) and (vw & c.r): need = max(need, 1)
        if c.mn.startswith("v_permlane") and (vw & c.r): need = max(need, 2)
        if c.dpp and (vw & c.r): need = max(need, 2)
        if "exec" in p.w and (c.dpp): need = max(need, 5)
        if "exec" in p.w and c.mn.startswith(("v_readlane", "v_readfirstlane", "v_writelane", "v_permlane")): need = max(need, 4)
        if any(m.startswith(("op_sel:", "dst_sel")) for m in p.mods) and not p.mn.startswith("v_pk_") and c.is_valu and (vw & (c.r | c.w)): need = max(need, 1)
    if p.is_salu and "m0" in p.w and (c.lds_dma or "addtid" in c.mn): need = max(need, 1)
    if p.wide_store and (p.sdata & c.w): need = max(need, 2)
    return need

class Kern:
    def __init__(self, name, vlimit=256):
        self.name = name; self.items = []
        self.v = Regs("v", vlimit); self.s = Regs("s", 102); self.a = Regs("a", 256)
        self.uid = 0
    def I(self, text):
        for line in text.split("\n"):
            t = line.strip()
            if not t: continue
            if t.startswith(";"): self.items.append(("c", t)); continue
            if t.endswith(":"): self.items.append(("l", t[:-1])); continue
            if t.startswith("."): self.items.append(("d", t)); continue
            self.items.append(("i", Ins(t)))
    def L(self, label): self.items.append(("l", label))
    def cstamp(self, i):
        if STAMP[0]:
            self.I(f"s_memtime s[{82+2*i}:{83+2*i}]\ns_waitcnt lgkmcnt(0)")
    def stamp(self, i):
        if STAMP[0]:
            self.I(f"s_memrealtime s[{82+2*i}:{83+2*i}]\ns_waitcnt lgkmcnt(0)")
    def end(self, kidx):
        if STAMP[0]:
            self.I(f"""s_waitcnt vmcnt(0) lgkmcnt(0)
            s_memrealtime s[96:97]
            s_load_dwordx2 s[100:101], s[0:1], 88
            s_waitcnt lgkmcnt(0)
            v_lshrrev_b32 v0, 6, v0
            v_lshlrev_b32 v0, 5, v0
            s_lshl_b32 s98, s2, 9
            s_add_u32 s98, s98, {0x8000000 + kidx * 0x100000}
            v_add_u32 v0, s98, v0""")
            for i in range(8):
                self.I(f"v_mov_b32 v{2+i}, s{82+2*i}")
            self.I("global_store_dwordx4 v0, v[2:5], s[100:101]")
            self.I("global_store_dwordx4 v0, v[6:9], s[100:101] offset:16")
        self.I("s_endpgm")
    def label(self, base):
        self.uid += 1
        return f"L_{self.name}_{base}_{self.uid}"
    def _cfg(self):
        idx = [i for i, it in enumerate(self.items) if it[0] == "i"]
        pos = {i: n for n, i in enumerate(idx)}
        lab = {}
        pending = []
        for i, it in enumerate(self.items):
            if it[0] == "l": pending.append(it[1])
            elif it[0] == "i":
                for l in pending: lab[l] = pos[i]
                pending = []
        ins = [self.items[i][1] for i in idx]
        succ = [[] for _ in ins]
        for n, x in enumerate(ins):
            if x.mn == "s_endpgm": continue
            if x.is_branch:
                succ[n].append(lab[x.ops[0]])
                if x.mn == "s_branch": continue
            if n + 1 < len(ins): succ[n].append(n + 1)
        return idx, ins, succ, lab
    def fix_hazards(self):
        total = 0
        while True:
            idx, ins, succ, lab = self._cfg()
            pred = [[] for _ in ins]
            for n, ss in enumerate(succ):
                for m in ss: pred[m].append(n)
            inserts = []
            n = 0
            last_fixed = -100
            for n, c in enumerate(ins):
                if c.mn in ("s_nop",): continue
                need = 0
                stack = [(p, 0) for p in pred[n]]
                seen = {}
                while stack:
                    p, el = stack.pop()
                    if seen.get(p, 99) <= el: continue
                    seen[p] = el
                    rq = required(ins[p], c)
                    if rq - el > need: need = rq - el
                    el2 = el + ins[p].states
                    if el2 < 13:
                        for q in pred[p]: stack.append((q, el2))
                if need > 0 and n - last_fixed > 14:
                    inserts.append((idx[n], need)); last_fixed = n
            if not inserts: break
            for at, need in reversed(inserts):
                self.items.insert(at, ("i", Ins(f"s_nop {need-1}")))
                total += need
        return total
    def check_waits(self):
        idx, ins, succ, lab = self._cfg()
        targets = set(lab.values())
        seen = set()
        work = [(0, (), ())]
        errs = set()
        while work:
            n, vm, lg = work.pop()
            while True:
                if n in targets:
                    key = (n, vm, lg)
                    if key in seen: break
                    seen.add(key)
                    if len(seen) > 20000: raise RuntimeError("wait check: too many states")
                x = ins[n]
                touched = x.r | x.w
                for e in vm + lg:
                    if e[0] & touched:
                        errs.add((n, x.text, tuple(sorted(e[0] & touched))))
                if x.mn == "s_waitcnt":
                    t = x.text.split(";")[0]
                    m = re.search(r"vmcnt\((\d+)\)", t)
                    if m:
                        k = int(m.group(1)); vm = vm[len(vm) - k:] if k < len(vm) else vm
                        if k == 0: vm = ()
                    m = re.search(r"lgkmcnt\((\d+)\)", t)
                    if m:
                        k = int(m.group(1))
                        if k == 0: lg = ()
                        elif not any(e[1] for e in lg) and k < len(lg): lg = lg[len(lg) - k:]
                elif x.is_vmem:
                    vm = (vm + ((frozenset(x.w), False),))[-64:]
                elif x.is_ds:
                    lg = (lg + ((frozenset(x.w), False),))[-40:]
                elif x.is_smem:
                    lg = (lg + ((frozenset(x.w), True),))[-40:]
                ss = succ[n]
                if not ss: break
                for m in ss[:-1]: work.append((m, vm, lg))
                n = ss[-1]
        if errs:
            for e in sorted(errs): print("WAIT ERROR", self.name, e)
            raise RuntimeError("waitcnt check failed")
    def text(self):
        out = [f".globl {self.name}", ".p2align 8", f".type {self.name},@function", f"{self.name}:"]
        for k, x in self.items:
            if k == "i": out.append("    " + x.text)
            elif k == "l": out.append(x + ":")
            else: out.append("    " + x)
        return "\n".join(out) + "\n"
    def desc(self, nv=None, na=None):
        nv = nv or self.v.hi; na = self.a.hi if na is None else na
        acc = (nv + 3) // 4 * 4
        tot = acc + na if na else nv
        return f""".p2align 6
.amdhsa_kernel {self.name}
  .amdhsa_next_free_vgpr {tot}
  .amdhsa_next_free_sgpr 102
  .amdhsa_accum_offset {acc}
  .amdhsa_group_segment_fixed_size 0
  .amdhsa_kernarg_size 96
  .amdhsa_user_sgpr_count 2
  .amdhsa_user_sgpr_kernarg_segment_ptr 1
  .amdhsa_system_sgpr_workgroup_id_x 1
  .amdhsa_float_denorm_mode_32 3
  .amdhsa_float_denorm_mode_16_64 3
.end_amdhsa_kernel
"""

def build(kerns, launches, header=""):
    out = header
    for (n, g, b, lds) in launches:
        out += f"; @launch kernel={n} grid=({g},1,1) block=({b},1,1) lds={lds}\n"
    out += '.amdgcn_target "amdgcn-amd-amdhsa--gfx950"\n.text\n'
    for k in kerns:
        nn = k.fix_hazards()
        k.check_waits()
        out += k.text()
    out += '.section .rodata,"a"\n'
    for k in kerns: out += k.desc()
    return out
```

```python
from common import *
ST = "sc1"
ATT_LDS = 4 * 4 * 3 * 1024 + 64

def emit_attn(k, sID, kidx, pfx="at"):
    sWS = 4
    sWV, sHD, sQB, sJ, sKO, sXO, sVO, sKB, sXB, sVB, sCNT, sT0, sT1, sRETRY = range(8, 22)
    k.v.next = 1
    vL = k.v.alloc(); vK = k.v.alloc(); vX = k.v.alloc(); vV = k.v.alloc(); vT0 = k.v.alloc(); vT1 = k.v.alloc()
    O = k.v.alloc(64, 4)
    Sb = [k.v.alloc(16, 4) for _ in range(2)]
    P = k.v.alloc(8, 4)
    Qm = [k.v.alloc(4, 4) for _ in range(4)]
    Qx = [k.v.alloc(2, 2) for _ in range(4)]
    Km = [k.v.alloc(4, 4) for _ in range(4)]
    Vf = [k.v.alloc(8, 4) for _ in range(4)]
    Kx = [k.v.alloc(2, 2) for _ in range(4)]
    k.stamp(0)
    k.I(f"""
    s_load_dwordx2 s[24:25], s[0:1], {KA_WS}
    v_and_b32 {v(vL)}, 63, v0
    v_lshrrev_b32 {v(vT0)}, 6, v0
    s_and_b32 s{sHD}, s{sID}, 7
    v_readfirstlane_b32 s{sWV}, {v(vT0)}
    s_lshl_b32 s{sHD}, s{sHD}, 2
    s_bfe_u32 s{sT0}, s{sID}, 0x20003
    s_add_u32 s{sHD}, s{sHD}, s{sT0}
    s_lshr_b32 s{sQB}, s{sID}, 5
    v_lshlrev_b32 {v(vK)}, 4, {v(vL)}
    v_cmp_gt_u32 vcc, 32, {v(vL)}
    v_lshlrev_b32 {v(vT0)}, 2, {v(vL)}
    v_mov_b32 {v(vT1)}, {hx(OOB)}
    v_cndmask_b32 {v(vX)}, {v(vT1)}, {v(vT0)}, vcc
    v_and_b32 {v(vV)}, 0x13, {v(vL)}
    v_and_b32 {v(vT0)}, 4, {v(vL)}
    v_lshl_or_b32 {v(vV)}, {v(vT0)}, 1, {v(vV)}
    v_bfe_u32 {v(vT0)}, {v(vL)}, 3, 1
    v_lshl_or_b32 {v(vV)}, {v(vT0)}, 2, {v(vV)}
    v_cmp_gt_u32 vcc, 19, {v(vV)}
    v_lshrrev_b32 {v(vT0)}, 5, {v(vL)}
    v_mul_u32_u24 {v(vT0)}, 304, {v(vT0)}
    v_lshl_add_u32 {v(vV)}, {v(vV)}, 4, {v(vT0)}
    v_cndmask_b32 {v(vV)}, {v(vT1)}, {v(vV)}, vcc
    s_lshl_b32 s{sT0}, s{sHD}, 6
    s_lshl_b32 s{sT1}, s{sWV}, 4
    s_add_u32 s{sT1}, s{sT1}, s{sT0}
    s_lshl_b32 s{sKB}, s{sT1}, 10
    s_add_u32 s{sKB}, s{sKB}, {WS_KM}
    s_lshl_b32 s{sXB}, s{sT1}, 7
    s_add_u32 s{sXB}, s{sXB}, {WS_KX}
    s_mul_i32 s{sVB}, s{sT1}, {2*VT_STEP}
    s_add_u32 s{sVB}, s{sVB}, {WS_VT}
    s_lshl_b32 s{sT1}, s{sQB}, 2
    s_add_u32 s{sT0}, s{sT0}, s{sT1}
    s_lshl_b32 s{sT1}, s{sT0}, 7
    s_add_u32 s{sT1}, s{sT1}, {WS_QX}
    s_lshl_b32 s{sT0}, s{sT0}, 10
    s_mov_b32 s{sRETRY}, 0
    s_waitcnt lgkmcnt(0)
    """)
    srd(k, sWS, 24, WS_SIZE)
    for i in range(4):
        k.I(f"buffer_load_dwordx4 {v(Qm[i],4)}, {v(vK)}, {s(sWS,4)}, s{sT0} offen offset:{1024*i}")
        k.I(f"buffer_load_dword {v(Qx[i])}, {v(vX)}, {s(sWS,4)}, s{sT1} offen offset:{128*i}")
    for i in range(4):
        k.I(f"v_mov_b32 {v(Qx[i]+1)}, 0")
        k.I(f"v_mov_b32 {v(Kx[i]+1)}, 0x3f803f80")
    def offs():
        return f"""
        s_lshl_b32 s{sKO}, s{sJ}, 10
        s_add_u32 s{sKO}, s{sKO}, s{sKB}
        s_lshl_b32 s{sXO}, s{sJ}, 7
        s_add_u32 s{sXO}, s{sXO}, s{sXB}
        s_mul_i32 s{sVO}, s{sJ}, {2*VT_STEP}
        s_add_u32 s{sVO}, s{sVO}, s{sVB}
        s_add_u32 s{sJ}, s{sJ}, 1
        s_and_b32 s{sJ}, s{sJ}, 15
        """.strip().split("\n")
    def loads(b):
        return [f"buffer_load_dwordx4 {v(Km[b],4)}, {v(vK)}, {s(sWS,4)}, s{sKO} offen",
                f"buffer_load_dword {v(Kx[b])}, {v(vX)}, {s(sWS,4)}, s{sXO} offen",
                f"buffer_load_dwordx4 {v(Vf[b],4)}, {v(vV)}, {s(sWS,4)}, s{sVO} offen",
                f"buffer_load_dwordx4 {v(Vf[b]+4,4)}, {v(vV)}, {s(sWS,4)}, s{sVO} offen offset:{VT_STEP}"]
    Lmain = f"L_{pfx}_main"; Lloop = f"L_{pfx}_loop"; Lfb = f"L_{pfx}_fb"; Ldone = f"L_{pfx}_done"
    k.L(Lmain)
    k.I(f"s_mov_b32 s{sJ}, s{sQB}")
    for b in range(3):
        for x in offs() + loads(b): k.I(x)
    for r in range(64): k.I(f"v_mov_b32 {v(O+r)}, 0")
    for r in range(4):
        k.I(f"v_mov_b32 {v(P+4+r)}, 0")
        k.I(f"v_mov_b32 {v(Vf[3]+4+r)}, 0")
    k.I(f"v_mov_b32 {v(vT0)}, {ATT_LDS-64}\nv_mov_b32 {v(vT1)}, 0\nds_write_b32 {v(vT0)}, {v(vT1)}")
    def S1(sb, b, i): return f"v_mfma_f32_32x32x16_bf16 {v(Sb[sb],16)}, {v(Km[b],4)}, {v(Qm[i],4)}, 0"
    def S2(sb, b, i): return f"v_mfma_f32_32x32x8_bf16 {v(Sb[sb],16)}, {v(Kx[b],2)}, {v(Qx[i],2)}, {v(Sb[sb],16)}"
    def PV(half, b, i): return f"v_mfma_f32_32x32x16_bf16 {v(O+16*i,16)}, {v(Vf[b]+4*half,4)}, {v(P+4*half,4)}, {v(O+16*i,16)}"
    def grp(sb, g):
        r = Sb[sb] + 4 * g
        return [f"v_exp_f32 {v(r+j)}, {v(r+j)}" for j in range(4)] + \
               [f"v_cvt_pk_bf16_f32 {v(P+2*g)}, {v(r)}, {v(r+1)}", f"v_cvt_pk_bf16_f32 {v(P+2*g+1)}, {v(r+2)}, {v(r+3)}"]
    k.I("s_waitcnt vmcnt(8)")
    k.stamp(1); k.cstamp(4)
    k.I(S1(0, 0, 0)); k.I(S2(0, 0, 0))
    k.I(f"s_mov_b32 s{sCNT}, 4")
    k.I("s_nop 7")
    k.I(".p2align 3")
    k.L(Lloop)
    for t in range(4):
        for i in range(4):
            sb = i & 1
            nb, ni = (t, i + 1) if i < 3 else ((t + 1) & 3, 0)
            pb, pi = (t, i - 1) if i > 0 else ((t - 1) & 3, 3)
            extra = [[], [], [], []]
            if i == 0:
                o = offs(); extra[0] = o[:2]; extra[1] = o[2:4]; extra[2] = o[4:6]; extra[3] = o[6:]
            if i == 1:
                ld = loads((t + 3) & 3); extra = [[x] for x in ld]
            if i == 3: k.I("s_waitcnt vmcnt(8)")
            ms = [S1(sb ^ 1, nb, ni), PV(1, pb, pi), S2(sb ^ 1, nb, ni), PV(0, t, i)]
            for g in range(4):
                k.I(ms[g])
                for x in extra[g]: k.I(x)
                if t == 3 and i == 3 and g == 3:
                    k.I(f"s_sub_u32 s{sCNT}, s{sCNT}, 1\ns_cmp_lg_u32 s{sCNT}, 0")
                for x in grp(sb, g): k.I(x)
    k.I(f"s_cbranch_scc1 {Lloop}")
    k.I(PV(1, 3, 3))
    k.stamp(2); k.cstamp(5)
    k.I(f"""
    s_mul_i32 s{sT0}, s{sWV}, 3072
    v_add_u32 {v(vT0)}, s{sT0}, {v(vK)}
    s_mul_i32 s{sT0}, s{sWV}, 12288
    v_add_u32 {v(vT1)}, s{sT0}, {v(vK)}
    """)
    for i in range(4):
        for c in range(3):
            k.I(f"ds_write_b128 {v(vT0)}, {v(O+16*i+4*c,4)} offset:{12288*i+1024*c}")
    k.I("s_waitcnt vmcnt(0) lgkmcnt(0)\ns_barrier")
    M = O
    for w in range(4):
        for c in range(3):
            k.I(f"ds_read_b128 {v(M+12*w+4*c,4)}, {v(vT1)} offset:{3072*w+1024*c}")
    k.I(f"""
    s_lshl_b32 s{sT0}, s{sQB}, 2
    s_add_u32 s{sT0}, s{sT0}, s{sWV}
    s_mul_i32 s{sT0}, s{sT0}, 36
    s_lshr_b32 s{sT1}, s{sHD}, 3
    s_add_u32 s{sT1}, s{sT1}, s{sT0}
    s_add_u32 s{sT1}, s{sT1}, 32
    s_lshl_b32 s{sT1}, s{sT1}, 10
    s_bfe_u32 s{sKO}, s{sHD}, 0x10002
    s_lshl_b32 s{sKO}, s{sKO}, 9
    s_add_u32 s{sT1}, s{sT1}, s{sKO}
    s_and_b32 s{sKO}, s{sHD}, 3
    s_lshl_b32 s{sKO}, s{sKO}, 2
    s_add_u32 s{sT1}, s{sT1}, s{sKO}
    s_add_u32 s{sT1}, s{sT1}, {WS_O}
    s_add_u32 s{sT0}, s{sT0}, s{sHD}
    s_lshl_b32 s{sT0}, s{sT0}, 10
    s_add_u32 s{sT0}, s{sT0}, {WS_O}
    v_lshlrev_b32 {v(Sb[1])}, 2, {v(vX)}
    v_cmp_gt_u32 vcc, 32, {v(vL)}
    v_cndmask_b32 {v(Sb[1])}, {v(vX)}, {v(Sb[1])}, vcc
    s_waitcnt lgkmcnt(0)
    """)
    for p in range(6):
        k.I(f"v_pk_add_f32 {v(M+2*p,2)}, {v(M+2*p,2)}, {v(M+12+2*p,2)}")
        k.I(f"v_pk_add_f32 {v(M+24+2*p,2)}, {v(M+24+2*p,2)}, {v(M+36+2*p,2)}")
    for p in range(6):
        k.I(f"v_pk_add_f32 {v(M+2*p,2)}, {v(M+2*p,2)}, {v(M+24+2*p,2)}")
    vLs = Sb[0]; vR = Sb[0] + 2
    k.I(f"""
    v_mov_b32 {v(vLs)}, {v(M+10)}
    v_mov_b32 {v(vLs+1)}, {v(M+10)}
    v_permlane32_swap_b32 {v(vLs)}, {v(vLs+1)}
    v_rcp_f32 {v(vR)}, {v(vLs)}
    s_mov_b32 s{sKO}, {hx(f2u(2.0**-32))}
    s_mov_b32 s{sXO}, {hx(f2u(2.0**64))}
    v_cmp_nle_f32 s[26:27], s{sKO}, {v(vLs)}
    v_cmp_nge_f32 s[28:29], s{sXO}, {v(vLs)}
    s_or_b64 s[26:27], s[26:27], s[28:29]
    s_mov_b32 s{sKO}, 0x207
    """)
    for p in range(5):
        k.I(f"v_pk_mul_f32 {v(M+2*p,2)}, {v(M+2*p,2)}, {v(vR,2)} op_sel_hi:[1,0]")
    for r in range(10):
        k.I(f"v_cmp_class_f32 s[28:29], {v(M+r)}, s{sKO}")
        k.I(f"s_or_b64 s[26:27], s[26:27], s[28:29]")
    for p in range(5):
        k.I(f"v_cvt_pk_bf16_f32 {v(P+p)}, {v(M+2*p)}, {v(M+2*p+1)}")
    k.I(f"buffer_store_dwordx4 {v(P,4)}, {v(vK)}, {s(sWS,4)}, s{sT0} offen {ST}")
    k.I(f"buffer_store_dword {v(P+4)}, {v(Sb[1])}, {s(sWS,4)}, s{sT1} offen {ST}")
    Lnf = f"L_{pfx}_nf"
    k.I(f"""
    s_cmp_lg_u32 s{sRETRY}, 0
    s_cbranch_scc1 {Ldone}
    v_mov_b32 {v(vT0)}, {ATT_LDS-64}
    s_cmp_eq_u64 s[26:27], 0
    s_cbranch_scc1 {Lnf}
    v_mov_b32 {v(vT1)}, 1
    ds_write_b32 {v(vT0)}, {v(vT1)}
    {Lnf}:
    s_waitcnt lgkmcnt(0)
    s_barrier
    ds_read_b32 {v(vT1)}, {v(vT0)}
    s_waitcnt lgkmcnt(0)
    v_readfirstlane_b32 s{sT0}, {v(vT1)}
    s_cmp_lg_u32 s{sT0}, 0
    s_cbranch_scc1 {Lfb}
    {Ldone}:
    """)
    k.end(kidx)
    k.L(Lfb)
    mx = O
    k.I(f"s_waitcnt vmcnt(0)\ns_mov_b32 s{sRETRY}, 1\ns_mov_b32 s{sJ}, 0\ns_mov_b32 s{sCNT}, 16")
    for i in range(4): k.I(f"v_mov_b32 {v(mx+i)}, 0xff800000")
    Lm = f"L_{pfx}_mx"
    k.L(Lm)
    for x in offs() + loads(0)[:2]: k.I(x)
    k.I("s_waitcnt vmcnt(0)")
    for i in range(4):
        k.I(S1(0, 0, i)); k.I(S2(0, 0, i))
        for j in range(8):
            k.I(f"v_max3_f32 {v(mx+i)}, {v(Sb[0]+2*j)}, {v(Sb[0]+2*j+1)}, {v(mx+i)}")
    k.I(f"s_sub_u32 s{sCNT}, s{sCNT}, 1\ns_cmp_lg_u32 s{sCNT}, 0\ns_cbranch_scc1 {Lm}")
    k.I(f"""
    s_lshl_b32 s{sT0}, s{sWV}, 10
    v_add_u32 {v(vT0)}, s{sT0}, {v(vK)}
    s_barrier
    ds_write_b128 {v(vT0)}, {v(mx,4)}
    v_and_b32 {v(vT0)}, 0x1f0, {v(vK)}
    s_waitcnt lgkmcnt(0)
    s_barrier
    """)
    t = O + 4
    for j in range(8):
        k.I(f"ds_read_b128 {v(t+4*j,4)}, {v(vT0)} offset:{512*j}")
    k.I("s_waitcnt lgkmcnt(0)\ns_barrier")
    k.I(f"v_cmp_gt_u32 vcc, 32, {v(vL)}")
    for i in range(4):
        for j in range(0, 8, 2):
            k.I(f"v_max3_f32 {v(mx+i)}, {v(t+4*j+i)}, {v(t+4*j+4+i)}, {v(mx+i)}")
        a0, a1, a2 = Sb[0], Sb[0] + 1, Sb[0] + 2
        k.I(f"""
        v_sub_f32 {v(mx+i)}, 0, {v(mx+i)}
        v_and_b32 {v(a0)}, 0xffff0000, {v(mx+i)}
        v_sub_f32 {v(mx+i)}, {v(mx+i)}, {v(a0)}
        v_and_b32 {v(a1)}, 0xffff0000, {v(mx+i)}
        v_sub_f32 {v(mx+i)}, {v(mx+i)}, {v(a1)}
        v_lshrrev_b32 {v(a0)}, 16, {v(a0)}
        v_or_b32 {v(a0)}, {v(a0)}, {v(a1)}
        v_lshrrev_b32 {v(a2)}, 16, {v(mx+i)}
        v_cndmask_b32 {v(Qx[i]+1)}, {v(a2)}, {v(a0)}, vcc
        """)
    k.I(f"s_branch {Lmain}")

def gen_attn(kidx=1):
    k = Kern("attn_kernel", vlimit=256)
    k.I("s_cmp_ge_u32 s2, 512\ns_cbranch_scc1 L_at_exit")
    emit_attn(k, 2, kidx)
    k.L("L_at_exit")
    k.I("s_endpgm")
    return k, ("attn_kernel", 512, 256, ATT_LDS)
```

```python
from asmfw import *
import struct
def f2u(x): return struct.unpack("<I", struct.pack("<f", x))[0]
def hx(x): return f"0x{x & 0xffffffff:08x}"

KA_X, KA_WQKV, KA_WO, KA_BX, KA_W1, KA_W2, KA_W3, KA_W4, KA_GATE, KA_OUT, KA_DBG, KA_WS = [8 * i for i in range(12)]
S, D, H, DH, F = 2048, 576, 32, 18, 4608
WS_QM   = 0x0000000
WS_KM   = 0x0200000
WS_QX   = 0x0400000
WS_KX   = 0x0440000
WS_VT   = 0x0480000
VT_STEP = 640
WS_HS   = 0x0700000
WS_X1   = 0x0940000
WS_ST   = 0x0B80000
WS_ST1  = WS_ST
WS_ST2  = 0x0E40000
WS_CS3  = 0x0E80000
WS_O    = 0x0C00000
WS_H    = 0x1000000
WS_PART = 0x2200000
WS_SIZE = 0x3000000
OOB = 0x80000000
LOG2E = 1.4426950408889634
QSCALE = LOG2E / (18 ** 0.5)
GK1 = -2.0 * 0.7978845608028654 * LOG2E
GK2 = GK1 * 0.044715

def srd(k, d, base, nbytes):
    k.I(f"s_mov_b32 s{d}, s{base}")
    k.I(f"s_and_b32 s{d+1}, s{base+1}, 0xffff")
    k.I(f"s_mov_b32 s{d+2}, {hx(nbytes)}")
    k.I(f"s_mov_b32 s{d+3}, 0x00020000")

def tr_lane_addr(k, vd, vlane, vt0, vt1, hstride, perm):
    k.I(f"v_bfe_u32 {v(vt0)}, {v(vlane)}, 2, 2")
    k.I(f"v_lshlrev_b32 {v(vd)}, 6, {v(vt0)}")
    k.I(f"v_bfe_u32 {v(vt0)}, {v(vlane)}, 4, 1")
    k.I(f"v_lshl_add_u32 {v(vd)}, {v(vt0)}, 5, {v(vd)}")
    if perm:
        k.I(f"v_and_b32 {v(vt0)}, 1, {v(vlane)}")
        k.I(f"v_lshl_add_u32 {v(vd)}, {v(vt0)}, 4, {v(vd)}")
        k.I(f"v_bfe_u32 {v(vt0)}, {v(vlane)}, 1, 1")
        k.I(f"v_lshl_add_u32 {v(vd)}, {v(vt0)}, 3, {v(vd)}")
    else:
        k.I(f"v_and_b32 {v(vt0)}, 3, {v(vlane)}")
        k.I(f"v_lshl_add_u32 {v(vd)}, {v(vt0)}, 3, {v(vd)}")
    k.I(f"v_lshrrev_b32 {v(vt0)}, 5, {v(vlane)}")
    k.I(f"v_mul_u32_u24 {v(vt0)}, {hstride}, {v(vt0)}")
    k.I(f"v_add_u32 {v(vd)}, {v(vd)}, {v(vt0)}")

def gelu_pairs(k, pairs, vK1, sK2, tmp):
    n = len(pairs)
    for i, (u, d) in enumerate(pairs):
        k.I(f"v_pk_mul_f32 {v(tmp+2*i,2)}, {v(u,2)}, {v(u,2)}")
    for i, (u, d) in enumerate(pairs):
        k.I(f"v_pk_fma_f32 {v(tmp+2*i,2)}, {v(tmp+2*i,2)}, {s(sK2,2)}, {v(vK1,2)} op_sel_hi:[1,0,0]")
    for i, (u, d) in enumerate(pairs):
        k.I(f"v_pk_mul_f32 {v(tmp+2*i,2)}, {v(tmp+2*i,2)}, {v(u,2)}")
    for i, (u, d) in enumerate(pairs):
        k.I(f"v_exp_f32 {v(tmp+2*i)}, {v(tmp+2*i)}")
        k.I(f"v_exp_f32 {v(tmp+2*i+1)}, {v(tmp+2*i+1)}")
    for i, (u, d) in enumerate(pairs):
        k.I(f"v_pk_add_f32 {v(tmp+2*i,2)}, {v(tmp+2*i,2)}, 1.0 op_sel_hi:[1,0]")
    for i, (u, d) in enumerate(pairs):
        k.I(f"v_rcp_f32 {v(tmp+2*i)}, {v(tmp+2*i)}")
        k.I(f"v_rcp_f32 {v(tmp+2*i+1)}, {v(tmp+2*i+1)}")
    for i, (u, d) in enumerate(pairs):
        k.I(f"v_pk_mul_f32 {v(tmp+2*i,2)}, {v(tmp+2*i,2)}, {v(u,2)}")
    for i, (u, d) in enumerate(pairs):
        k.I(f"v_cvt_pk_bf16_f32 {v(d)}, {v(tmp+2*i)}, {v(tmp+2*i+1)}")
```

```python
from common import *
ST = "sc1"

class G:
    sW, sWS, sX = 4, 8, 12
    sRB, sCB, sWV, sSP, sMT, sG, sOW, sOB, sBB, sWB, sT0, sT1, sM0, sM0D = range(16, 30)
    sC = 30
    sC2 = 32

def w_dma_offsets(k, NT, KPS, ldw, nvalid_chunks, vWo, vL, vT0, vT1, vT2, sCOL, rowmap=None):
    nins = KPS * 4 * NT // 4
    per = (nins + 3) // 4
    magic = (65536 + NT - 1) // NT
    for i in range(per):
        full = nins // 4
        if i < full:
            k.I(f"s_mul_i32 s{G.sT0}, s{G.sWV}, {4*full}\ns_add_u32 s{G.sT0}, s{G.sT0}, {4*i}")
        else:
            k.I(f"s_lshl_b32 s{G.sT0}, s{G.sWV}, 2\ns_add_u32 s{G.sT0}, s{G.sT0}, {16*full}")
        k.I(f"""
        v_lshrrev_b32 {v(vT0)}, 4, {v(vL)}
        v_add_u32 {v(vT0)}, s{G.sT0}, {v(vT0)}
        v_mul_u32_u24 {v(vT1)}, {magic}, {v(vT0)}
        v_lshrrev_b32 {v(vT1)}, 16, {v(vT1)}
        v_mul_u32_u24 {v(vT2)}, {NT}, {v(vT1)}
        v_sub_u32 {v(vT0)}, {v(vT0)}, {v(vT2)}
        v_bfe_u32 {v(vT2)}, {v(vL)}, 2, 2
        v_lshl_add_u32 {v(vT1)}, {v(vT1)}, 2, {v(vT2)}
        """)
        if i >= full:
            k.I(f"v_cmp_gt_u32 s[34:35], {KPS*16}, {v(vT1)}")
        if rowmap: rowmap(vT1, vT2)
        k.I(f"""
        v_mul_u32_u24 {v(vT1)}, {ldw}, {v(vT1)}
        v_and_b32 {v(vT2)}, 3, {v(vL)}
        v_lshl_add_u32 {v(vT0)}, {v(vT0)}, 2, {v(vT2)}
        v_cmp_gt_u32 vcc, {nvalid_chunks}, {v(vT0)}
        v_lshl_add_u32 {v(vT1)}, {v(vT0)}, 4, {v(vT1)}
        v_add_u32 {v(vT1)}, s{sCOL}, {v(vT1)}
        v_mov_b32 {v(vT0)}, {hx(OOB)}
        """)
        if i >= full: k.I("s_and_b64 vcc, vcc, s[34:35]")
        k.I(f"v_cndmask_b32 {v(vWo[i])}, {v(vT0)}, {v(vT1)}, vcc")
    k.I(f"s_mul_i32 s{G.sM0}, s{G.sWV}, {(nins//4)*1024}")
    if nins % 4:
        k.I(f"s_lshl_b32 s{G.sM0D}, s{G.sWV}, 10\ns_add_u32 s{G.sM0D}, s{G.sM0D}, {(nins//4)*4096}")
    return per

def gemm_main(k, NT, KPS, NST, ND, acc, vL, vB, vWo, wstep, rotate, vWoLast=None, mid=None, RA=5, npro=None):
    nins = KPS * NT
    per = (nins + 3) // 4
    full = nins // 4
    SLOT = per * 4096 if nins % 4 else nins * 1024
    R = RA + 1
    m = k.v.mark()
    vWa = [k.v.alloc() for _ in range(ND)]
    Ab = [k.v.alloc(4, 4) for t in range(R)]
    Bf = [[k.v.alloc(4, 4) for ks in range(KPS)] for d in range(ND)]
    vT0 = Ab[0]; vT1 = Ab[0] + 1
    NL = per + KPS
    def adv():
        r = [f"s_mul_i32 s{G.sOW}, s{G.sG}, {wstep}", f"s_add_u32 s{G.sOW}, s{G.sOW}, s{G.sWB}",
             f"s_mul_i32 s{G.sOB}, s{G.sG}, {KPS*1024}", f"s_add_u32 s{G.sOB}, s{G.sOB}, s{G.sBB}",
             f"s_add_u32 s{G.sG}, s{G.sG}, 1"]
        if rotate: r += [f"s_cmp_eq_u32 s{G.sG}, {NST}", f"s_cselect_b32 s{G.sG}, 0, s{G.sG}"]
        return r
    def loads(st):
        sl = st % ND
        wo = vWoLast if (vWoLast and st == NST - 1) else vWo
        so = f"s{G.sWB}" if (vWoLast and st == NST - 1) else f"s{G.sOW}"
        g = []
        for i in range(per):
            mm = f"s_add_u32 m0, s{G.sM0}, {sl*SLOT + i*1024}" if i < full else f"s_add_u32 m0, s{G.sM0D}, {sl*SLOT}"
            g.append([mm, f"buffer_load_dwordx4 {v(wo[i])}, {s(G.sW,4)}, {so} offen lds"])
        for ks in range(KPS):
            g.append([f"buffer_load_dwordx4 {v(Bf[sl][ks],4)}, {v(vB)}, {s(G.sWS,4)}, s{G.sOB} offen offset:{1024*ks}"])
        return g
    NS = KPS * NT
    def reads(n):
        st, r = divmod(n, NS); ks, t = divmod(r, NT)
        return [f"ds_read_b64_tr_b16 {v(Ab[n % R]+2*rd,2)}, {v(vWa[st % ND])} offset:{(4*ks+rd)*NT*256 + t*256}" for rd in range(2)]
    npro = npro or min(ND, NST)
    for st in range(npro):
        for x in adv(): k.I(x)
        for g in loads(st):
            if len(g) == 2: k.I(g[0]); k.I("s_nop 0"); k.I(g[1])
            else: k.I(g[0])
        if st == 0:
            tr_lane_addr(k, vWa[0], vL, vT0, vT1, 2 * NT * 256, perm=True)
            for d in range(1, ND): k.I(f"v_add_u32 {v(vWa[d])}, {d*SLOT}, {v(vWa[0])}")
    k.stamp(1)
    k.I(f"s_waitcnt vmcnt({(npro-1)*NL})")
    if mid: mid()
    k.I("s_barrier")
    k.stamp(2); k.cstamp(4)
    nread = 0
    for n in range(RA):
        for x in reads(n): k.I(x)
    nread = RA
    N = NST * NS
    limit = NS
    nissued = npro
    queue = []
    outstanding = []
    for st in range(npro): outstanding += [st] * NL
    nxt = npro
    for p in range(N):
        st, r = divmod(p, NS); ks, t = divmod(r, NT)
        if r == 0:
            tgt = [q for q in range(nxt, min(NST, st + ND))]
            nxt = max(nxt, min(NST, st + ND))
            gl = []
            for q in tgt:
                a_ = adv()
                ls = loads(q)
                ls[0] = a_ + ls[0]
                gl += [(q, g) for g in ls]
            span = NS - RA + 1
            where = {}
            for j, g in enumerate(gl): where.setdefault(j * span // len(gl), []).append(g)
        k.I(f"s_waitcnt lgkmcnt({min(15, 2*(nread-p-1))})")
        c = "0" if p < NT else v(acc + 16 * t, 16)
        k.I(f"v_mfma_f32_32x32x16_bf16 {v(acc+16*t,16)}, {v(Ab[p % R],4)}, {v(Bf[st % ND][ks],4)}, {c}")
        if r == NS - RA + 1 and st < NST - 1:
            assert nread == limit
            allowed = sum(1 for q in outstanding if q > st + 1)
            k.I(f"s_waitcnt vmcnt({allowed}) lgkmcnt(0)")
            k.I("s_barrier")
            limit += NS
        gs = where.get(r, [])
        post = []
        for j, (q, g) in enumerate(gs):
            if j == 0:
                for x in g[:-1]: k.I(x)
                post.append(g[-1])
            else: post += g
            outstanding.append(q)
        cnt = 0
        while nread < min(p + RA + 1, limit, N) and cnt < 2:
            for x in reads(nread): k.I(x)
            nread += 1; cnt += 1
        for x in post: k.I(x)
    k.stamp(3); k.cstamp(5)
    k.v.reset(m)
    return SLOT * ND

def common_ids(k, vL, vT0):
    k.I(f"""
    v_and_b32 {v(vL)}, 63, v0
    v_lshrrev_b32 {v(vT0)}, 6, v0
    v_readfirstlane_b32 s{G.sWV}, {v(vT0)}
    """)

def halfsum(k, r, tmp):
    k.I(f"v_mov_b32 {v(tmp)}, {v(r)}\nv_permlane32_swap_b32 {v(r)}, {v(tmp)}\nv_add_f32 {v(r)}, {v(r)}, {v(tmp)}")

def emit_w2(k, sID, kidx):
    k.v.next = 1
    vL = k.v.alloc(); vB = k.v.alloc(); vT0 = k.v.alloc(); vT1 = k.v.alloc(); vT2 = k.v.alloc()
    vWo = [k.v.alloc() for _ in range(5)]
    acc = k.v.alloc(80, 4)
    xr = k.v.alloc(36, 4)
    k.stamp(0)
    k.I(f"""
    s_load_dwordx2 s[36:37], s[0:1], {KA_X}
    s_load_dwordx2 s[38:39], s[0:1], {KA_W2}
    s_load_dwordx2 s[40:41], s[0:1], {KA_WS}
    s_load_dwordx2 s[42:43], s[0:1], {KA_GATE}
    """)
    common_ids(k, vL, vT0)
    k.I(f"""
    s_and_b32 s{G.sRB}, s{sID}, 15
    s_lshr_b32 s{G.sCB}, s{sID}, 4
    s_lshl_b32 s{G.sMT}, s{G.sRB}, 2
    s_add_u32 s{G.sMT}, s{G.sMT}, s{G.sWV}
    s_lshl_b32 s{G.sG}, s{G.sCB}, 1
    s_bfe_u32 s{G.sT0}, s{G.sRB}, 0x10003
    s_add_u32 s{G.sG}, s{G.sG}, s{G.sT0}
    s_mul_i32 s{G.sT1}, s{G.sCB}, 288
    s_mov_b32 s{G.sWB}, 0
    s_mul_i32 s{G.sBB}, s{G.sMT}, {36*1024}
    s_add_u32 s{G.sBB}, s{G.sBB}, {WS_HS}
    v_lshlrev_b32 {v(vB)}, 4, {v(vL)}
    """)
    w_dma_offsets(k, 5, 4, 1152, 18, vWo, vL, vT0, vT1, vT2, G.sT1)
    k.I("s_waitcnt lgkmcnt(0)")
    srd(k, G.sX, 36, S * D * 2); srd(k, G.sW, 38, D * D * 2); srd(k, G.sWS, 40, WS_SIZE); srd(k, 44, 42, D * 2)
    k.I(f"""
    v_and_b32 {v(vT0)}, 31, {v(vL)}
    s_lshl_b32 s{G.sT0}, s{G.sMT}, 5
    v_add_u32 {v(vT0)}, s{G.sT0}, {v(vT0)}
    v_mul_u32_u24 {v(vT0)}, 1152, {v(vT0)}
    v_lshrrev_b32 {v(vT1)}, 5, {v(vL)}
    v_lshlrev_b32 {v(vT2)}, 4, {v(vT1)}
    v_add_u32 {v(vT0)}, {v(vT0)}, {v(vT2)}
    """)
    for sidx in range(9):
        k.I(f"buffer_load_dwordx4 {v(xr+4*sidx,4)}, {v(vT0)}, {s(G.sX,4)}, s{G.sT1} offen offset:{32*sidx}")
    k.I(f"s_mov_b32 s48, s{G.sT1}")
    lds = gemm_main(k, 5, 4, 9, 4, acc, vL, vB, vWo, 64 * 1152, True)
    gw = k.v.alloc(36, 4); st4 = k.v.alloc(4, 4); t2 = k.v.alloc(8, 2); sm = k.v.alloc(2, 2); sq = k.v.alloc(2, 2); pk = k.v.alloc(8, 4)
    for sidx in range(9):
        k.I(f"buffer_load_dwordx4 {v(gw+4*sidx,4)}, {v(vT2)}, s[44:47], s48 offen offset:{32*sidx}")
    k.I(f"""
    v_mov_b32 {v(sm)}, 0
    v_mov_b32 {v(sm+1)}, 0
    v_mov_b32 {v(sq)}, 0
    v_mov_b32 {v(sq+1)}, 0
    v_mov_b32 {v(st4+2)}, 0
    v_mov_b32 {v(st4+3)}, 0
    s_mul_i32 s{G.sT0}, s{G.sMT}, 36
    s_mul_i32 s{G.sT1}, s{G.sCB}, 9
    s_add_u32 s{G.sT0}, s{G.sT0}, s{G.sT1}
    s_lshl_b32 s{G.sT0}, s{G.sT0}, 10
    s_add_u32 s{G.sT0}, s{G.sT0}, {WS_X1}
    """)
    for sidx in range(9):
        p0 = pk + 4 * (sidx & 1)
        for j in range(4):
            k.I(f"v_lshlrev_b32 {v(t2+2*j)}, 16, {v(xr+4*sidx+j)}")
            k.I(f"v_and_b32 {v(t2+2*j+1)}, 0xffff0000, {v(xr+4*sidx+j)}")
        for j in range(4):
            r = acc + 8 * sidx + 2 * j
            k.I(f"v_pk_add_f32 {v(r,2)}, {v(r,2)}, {v(t2+2*j,2)}")
        for j in range(4):
            r = acc + 8 * sidx + 2 * j
            k.I(f"v_cvt_pk_bf16_f32 {v(p0+j)}, {v(r)}, {v(r+1)}")
            k.I(f"v_pk_add_f32 {v(sm,2)}, {v(sm,2)}, {v(r,2)}")
            k.I(f"v_pk_fma_f32 {v(sq,2)}, {v(r,2)}, {v(r,2)}, {v(sq,2)}")
        k.I(f"buffer_store_dwordx4 {v(p0,4)}, {v(vB)}, {s(G.sWS,4)}, s{G.sT0} offen {ST}")
        k.I(f"s_add_u32 s{G.sT0}, s{G.sT0}, 1024")
    k.I("s_waitcnt vmcnt(9)")
    for j in range(36):
        k.I(f"v_dot2_f32_bf16 {v(st4+2+(j&1))}, {v(xr+j)}, {v(gw+j)}, {v(st4+2+(j&1))}")
    k.I(f"""
    v_add_f32 {v(st4)}, {v(sm)}, {v(sm+1)}
    v_add_f32 {v(st4+1)}, {v(sq)}, {v(sq+1)}
    v_add_f32 {v(st4+2)}, {v(st4+2)}, {v(st4+3)}
    """)
    for r in range(3): halfsum(k, st4 + r, t2 + r)
    k.I(f"""
    v_and_b32 {v(vT0)}, 31, {v(vL)}
    v_lshlrev_b32 {v(vT0)}, 6, {v(vT0)}
    s_lshl_b32 s{G.sT0}, s{G.sMT}, 11
    s_lshl_b32 s{G.sT1}, s{G.sCB}, 4
    s_add_u32 s{G.sT0}, s{G.sT0}, s{G.sT1}
    s_add_u32 s{G.sT0}, s{G.sT0}, {WS_ST}
    buffer_store_dwordx4 {v(st4,4)}, {v(vT0)}, {s(G.sWS,4)}, s{G.sT0} offen {ST}
    """)
    k.end(kidx)
    return lds

def emit_cs3(k, sID, kidx):
    k.v.next = 1
    vT0 = k.v.alloc(); vT1 = k.v.alloc(); vA = k.v.alloc()
    d = k.v.alloc(72, 4); ac = k.v.alloc(8, 4); t = k.v.alloc(8, 2)
    k.I(f"""
    s_load_dwordx2 s[38:39], s[0:1], {KA_W3}
    s_load_dwordx2 s[40:41], s[0:1], {KA_WS}
    s_and_b32 s{G.sT0}, s{sID}, 7
    s_mul_i32 s{G.sT0}, s{G.sT0}, 9
    s_lshr_b32 s{G.sT1}, s{sID}, 3
    s_add_u32 s{G.sCB}, s{G.sT0}, s{G.sT1}
    s_lshl_b32 s{G.sT0}, s{G.sCB}, 7
    v_lshrrev_b32 {v(vT0)}, 3, v0
    v_mul_u32_u24 {v(vT0)}, 9216, {v(vT0)}
    v_and_b32 {v(vT1)}, 7, v0
    v_lshl_add_u32 {v(vT0)}, {v(vT1)}, 4, {v(vT0)}
    s_waitcnt lgkmcnt(0)
    """)
    srd(k, G.sW, 38, D * F * 2); srd(k, G.sWS, 40, WS_SIZE)
    for i in range(18):
        k.I(f"buffer_load_dwordx4 {v(d+4*i,4)}, {v(vT0)}, {s(G.sW,4)}, s{G.sT0} offen")
        k.I(f"s_add_u32 s{G.sT0}, s{G.sT0}, {32*9216}")
    for j in range(8): k.I(f"v_mov_b32 {v(ac+j)}, 0")
    for i in range(18):
        k.I(f"s_waitcnt vmcnt({17-i})")
        for j in range(4):
            k.I(f"v_lshlrev_b32 {v(t+2*j)}, 16, {v(d+4*i+j)}")
            k.I(f"v_and_b32 {v(t+2*j+1)}, 0xffff0000, {v(d+4*i+j)}")
        for j in range(4):
            k.I(f"v_pk_add_f32 {v(ac+2*j,2)}, {v(ac+2*j,2)}, {v(t+2*j,2)}")
    k.I(f"""
    v_lshlrev_b32 {v(vA)}, 5, v0
    ds_write_b128 {v(vA)}, {v(ac,4)}
    ds_write_b128 {v(vA)}, {v(ac+4,4)} offset:16
    v_and_b32 {v(vA)}, 63, v0
    v_lshlrev_b32 {v(vA)}, 2, {v(vA)}
    s_waitcnt lgkmcnt(0)
    s_barrier
    """)
    for half in range(4):
        for i in range(8):
            k.I(f"ds_read_b32 {v(d+8*half+i)}, {v(vA)} offset:{256*(8*half+i)}")
        k.I("s_waitcnt lgkmcnt(0)")
    for i in range(1, 32):
        k.I(f"v_add_f32 {v(d)}, {v(d)}, {v(d+i)}")
    k.I(f"""
    s_lshl_b32 s{G.sT0}, s{G.sCB}, 8
    s_add_u32 s{G.sT0}, s{G.sT0}, {WS_CS3}
    buffer_store_dword {v(d)}, {v(vA)}, {s(G.sWS,4)}, s{G.sT0} offen {ST}
    """)
    k.end(kidx)
    return 8192

def load_stats(k, st16, vL, vT0):
    k.I(f"""
    v_and_b32 {v(vT0)}, 31, {v(vL)}
    v_lshlrev_b32 {v(vT0)}, 6, {v(vT0)}
    s_lshl_b32 s{G.sT0}, s{G.sMT}, 11
    s_add_u32 s{G.sT0}, s{G.sT0}, {WS_ST}
    """)
    for c in range(4):
        k.I(f"buffer_load_dwordx4 {v(st16+4*c,4)}, {v(vT0)}, {s(G.sWS,4)}, s{G.sT0} offen offset:{16*c}")

def emit_w3(k, sID, kidx):
    k.v.next = 1
    NT, KPS, ND = 9, 2, 4
    vL = k.v.alloc(); vB = k.v.alloc(); vT0 = k.v.alloc(); vT1 = k.v.alloc(); vT2 = k.v.alloc()
    vWo = [k.v.alloc() for _ in range(5)]
    vR = k.v.alloc(2, 2); vN = vR + 1
    acc = k.v.alloc(144, 4)
    k.stamp(0)
    k.I(f"""
    s_load_dwordx2 s[38:39], s[0:1], {KA_W3}
    s_load_dwordx2 s[40:41], s[0:1], {KA_WS}
    """)
    common_ids(k, vL, vT0)
    k.I(f"""
    s_bfe_u32 s{G.sRB}, s{sID}, 0x40003
    s_and_b32 s{G.sCB}, s{sID}, 7
    s_lshl_b32 s{G.sCB}, s{G.sCB}, 1
    s_lshr_b32 s{G.sT0}, s{sID}, 7
    s_add_u32 s{G.sCB}, s{G.sCB}, s{G.sT0}
    s_lshl_b32 s{G.sMT}, s{G.sRB}, 2
    s_add_u32 s{G.sMT}, s{G.sMT}, s{G.sWV}
    s_mul_i32 s{G.sG}, s{G.sT0}, 9
    s_add_u32 s{G.sG}, s{G.sG}, s{G.sRB}
    s_cmp_ge_u32 s{G.sG}, 18
    s_cselect_b32 s{G.sT0}, 18, 0
    s_sub_u32 s{G.sG}, s{G.sG}, s{G.sT0}
    s_mul_i32 s{G.sT1}, s{G.sCB}, 576
    s_mov_b32 s{G.sWB}, 0
    s_mul_i32 s{G.sBB}, s{G.sMT}, {36*1024}
    s_add_u32 s{G.sBB}, s{G.sBB}, {WS_X1}
    v_lshlrev_b32 {v(vB)}, 4, {v(vL)}
    """)
    w_dma_offsets(k, NT, KPS, 9216, 36, vWo, vL, vT0, vT1, vT2, G.sT1)
    k.I("s_waitcnt lgkmcnt(0)")
    srd(k, G.sW, 38, D * F * 2); srd(k, G.sWS, 40, WS_SIZE)
    st16 = acc
    load_stats(k, st16, vL, vT0)
    CSOFF = 4 * 20480 - 2048
    cs4 = acc + 16
    k.I(f"""
    v_lshlrev_b32 {v(vT1)}, 4, v0
    v_mov_b32 {v(vT2)}, {hx(OOB)}
    v_cmp_gt_u32 vcc, 72, v0
    v_cndmask_b32 {v(vT2)}, {v(vT2)}, {v(vT1)}, vcc
    s_mul_i32 s{G.sT0}, s{G.sCB}, 1152
    s_add_u32 s{G.sT0}, s{G.sT0}, {WS_CS3}
    buffer_load_dwordx4 {v(cs4,4)}, {v(vT2)}, {s(G.sWS,4)}, s{G.sT0} offen
    """)
    csr = k.v.alloc(4, 4)
    def mid():
        for j in range(2):
            k.I(f"v_add_f32 {v(st16+j)}, {v(st16+j)}, {v(st16+4+j)}")
            k.I(f"v_add_f32 {v(st16+8+j)}, {v(st16+8+j)}, {v(st16+12+j)}")
        for j in range(2):
            k.I(f"v_add_f32 {v(st16+j)}, {v(st16+j)}, {v(st16+8+j)}")
        k.I(f"""
        v_mul_f32 {v(st16)}, {hx(f2u(1.0/576))}, {v(st16)}
        v_mul_f32 {v(st16+1)}, {hx(f2u(1.0/576))}, {v(st16+1)}
        v_fma_f32 {v(st16+1)}, -{v(st16)}, {v(st16)}, {v(st16+1)}
        v_max_f32 {v(st16+1)}, 0, {v(st16+1)}
        v_add_f32 {v(st16+1)}, {hx(f2u(1e-5))}, {v(st16+1)}
        v_rsq_f32 {v(vR)}, {v(st16+1)}
        v_mul_f32 {v(vN)}, {v(vR)}, {v(st16)}
        v_sub_f32 {v(vN)}, 0, {v(vN)}
        """)
        for j in range(4): k.I(f"v_mov_b32 {v(csr+j)}, {v(cs4+j)}")
    lds = gemm_main(k, NT, KPS, 18, ND, acc, vL, vB, vWo, 32 * 9216, True, mid=mid)
    cs = k.v.alloc(16, 4); tmp = k.v.alloc(16, 2); pk = k.v.alloc(16, 4); vK1 = k.v.alloc(2, 2); vA = k.v.alloc()
    k.I(f"""
    s_barrier
    v_lshlrev_b32 {v(vT1)}, 4, v0
    ds_write_b128 {v(vT1)}, {v(csr,4)}
    v_mov_b32 {v(vK1)}, {hx(f2u(GK1))}
    s_mov_b32 s{G.sC}, {hx(f2u(GK2))}
    v_lshrrev_b32 {v(vA)}, 5, {v(vL)}
    v_lshlrev_b32 {v(vA)}, 5, {v(vA)}
    s_mul_i32 s{G.sT0}, s{G.sMT}, 288
    s_mul_i32 s{G.sT1}, s{G.sCB}, 18
    s_add_u32 s{G.sT0}, s{G.sT0}, s{G.sT1}
    s_lshl_b32 s{G.sT0}, s{G.sT0}, 10
    s_add_u32 s{G.sT0}, s{G.sT0}, {WS_H}
    s_waitcnt lgkmcnt(0)
    s_barrier
    """)
    for t in range(NT):
        for q in range(4):
            k.I(f"ds_read_b128 {v(cs+4*q,4)}, {v(vA)} offset:{128*t + 64*(q//2) + 16*(q%2)}")
        k.I("s_waitcnt lgkmcnt(0)")
        for p in range(8):
            k.I(f"v_pk_mul_f32 {v(cs+2*p,2)}, {v(cs+2*p,2)}, {v(vR,2)} op_sel:[0,1] op_sel_hi:[1,1]")
        for p in range(8):
            r = acc + 16 * t + 2 * p
            k.I(f"v_pk_fma_f32 {v(r,2)}, {v(r,2)}, {v(vR,2)}, {v(cs+2*p,2)} op_sel_hi:[1,0,1]")
        p0 = pk + 8 * (t & 1)
        gelu_pairs(k, [(acc + 16 * t + 2 * p, p0 + p) for p in range(8)], vK1, G.sC, tmp)
        for e in range(2):
            k.I(f"buffer_store_dwordx4 {v(p0+4*e,4)}, {v(vB)}, {s(G.sWS,4)}, s{G.sT0} offen offset:{1024*e} {ST}")
        k.I(f"s_add_u32 s{G.sT0}, s{G.sT0}, 2048")
    k.end(kidx)
    return lds

def emit_w4(k, sID, kidx):
    k.v.next = 1
    vL = k.v.alloc(); vB = k.v.alloc(); vT0 = k.v.alloc(); vT1 = k.v.alloc(); vT2 = k.v.alloc()
    vWo = [k.v.alloc() for _ in range(5)]
    acc = k.v.alloc(80, 4)
    k.stamp(0)
    k.I(f"""
    s_load_dwordx2 s[38:39], s[0:1], {KA_W4}
    s_load_dwordx2 s[40:41], s[0:1], {KA_WS}
    """)
    common_ids(k, vL, vT0)
    k.I(f"""
    s_and_b32 s{G.sSP}, s{sID}, 3
    s_bfe_u32 s{G.sT0}, s{sID}, 0x10002
    s_bfe_u32 s{G.sRB}, s{sID}, 0x30003
    s_lshr_b32 s{G.sCB}, s{sID}, 6
    s_lshl_b32 s{G.sG}, s{G.sRB}, 1
    s_lshl_b32 s{G.sT1}, s{G.sCB}, 2
    s_add_u32 s{G.sG}, s{G.sG}, s{G.sT1}
    s_cmp_ge_u32 s{G.sG}, 18
    s_cselect_b32 s{G.sT1}, 18, 0
    s_sub_u32 s{G.sG}, s{G.sG}, s{G.sT1}
    s_lshl_b32 s{G.sT0}, s{G.sT0}, 3
    s_add_u32 s{G.sRB}, s{G.sRB}, s{G.sT0}
    s_lshl_b32 s{G.sMT}, s{G.sRB}, 2
    s_add_u32 s{G.sMT}, s{G.sMT}, s{G.sWV}
    s_mul_i32 s{G.sT1}, s{G.sCB}, 288
    s_mul_i32 s{G.sWB}, s{G.sSP}, {1152*1152}
    s_mul_i32 s{G.sBB}, s{G.sMT}, 288
    s_mul_i32 s{G.sT0}, s{G.sSP}, 72
    s_add_u32 s{G.sBB}, s{G.sBB}, s{G.sT0}
    s_lshl_b32 s{G.sBB}, s{G.sBB}, 10
    s_add_u32 s{G.sBB}, s{G.sBB}, {WS_H}
    v_lshlrev_b32 {v(vB)}, 4, {v(vL)}
    """)
    w_dma_offsets(k, 5, 4, 1152, 18, vWo, vL, vT0, vT1, vT2, G.sT1)
    k.I("s_waitcnt lgkmcnt(0)")
    srd(k, G.sW, 38, D * F * 2); srd(k, G.sWS, 40, WS_SIZE)
    lds = gemm_main(k, 5, 4, 18, 4, acc, vL, vB, vWo, 64 * 1152, True)
    pk = k.v.alloc(36, 4)
    k.I(f"""
    s_lshl_b32 s{G.sT0}, s{G.sSP}, 6
    s_add_u32 s{G.sT0}, s{G.sT0}, s{G.sMT}
    s_mul_i32 s{G.sT0}, s{G.sT0}, 36
    s_mul_i32 s{G.sT1}, s{G.sCB}, 9
    s_add_u32 s{G.sT0}, s{G.sT0}, s{G.sT1}
    s_lshl_b32 s{G.sT0}, s{G.sT0}, 10
    s_add_u32 s{G.sT0}, s{G.sT0}, {WS_PART}
    """)
    for sidx in range(9):
        for j in range(4):
            r = acc + 8 * sidx + 2 * j
            k.I(f"v_cvt_pk_bf16_f32 {v(pk+4*sidx+j)}, {v(r)}, {v(r+1)}")
        k.I(f"buffer_store_dwordx4 {v(pk+4*sidx,4)}, {v(vB)}, {s(G.sWS,4)}, s{G.sT0} offen {ST}")
        k.I(f"s_add_u32 s{G.sT0}, s{G.sT0}, 1024")
    k.end(kidx)
    return lds

def emit_fin(k, sID, kidx):
    k.v.next = 1
    vL = k.v.alloc(); vB = k.v.alloc(); vT0 = k.v.alloc(); vT1 = k.v.alloc(); vT2 = k.v.alloc()
    vWo = [k.v.alloc() for _ in range(5)]; vWo2 = [k.v.alloc() for _ in range(5)]
    vG = k.v.alloc(2, 2)
    acc = k.v.alloc(80, 4)
    k.stamp(0)
    k.I(f"""
    s_load_dwordx2 s[36:37], s[0:1], {KA_OUT}
    s_load_dwordx2 s[38:39], s[0:1], {KA_WO}
    s_load_dwordx2 s[40:41], s[0:1], {KA_WS}
    """)
    common_ids(k, vL, vT0)
    k.I(f"""
    s_and_b32 s{G.sRB}, s{sID}, 15
    s_lshr_b32 s{G.sCB}, s{sID}, 4
    s_lshl_b32 s{G.sMT}, s{G.sRB}, 2
    s_add_u32 s{G.sMT}, s{G.sMT}, s{G.sWV}
    s_mov_b32 s{G.sG}, 0
    s_mul_i32 s{G.sT1}, s{G.sCB}, 288
    s_mov_b32 s{G.sWB}, 0
    s_mul_i32 s{G.sBB}, s{G.sMT}, {36*1024}
    s_add_u32 s{G.sBB}, s{G.sBB}, {WS_O}
    v_lshlrev_b32 {v(vB)}, 4, {v(vL)}
    """)
    def map_main(r, t):
        k.I(f"v_lshrrev_b32 {v(t)}, 4, {v(r)}\nv_lshl_add_u32 {v(r)}, {v(t)}, 1, {v(r)}")
    def map_rem(r, t):
        k.I(f"v_lshrrev_b32 {v(t)}, 1, {v(r)}\nv_lshl_add_u32 {v(r)}, {v(t)}, 4, {v(r)}\nv_add_u32 {v(r)}, 16, {v(r)}")
    w_dma_offsets(k, 5, 4, 1152, 18, vWo, vL, vT0, vT1, vT2, G.sT1, rowmap=map_main)
    w_dma_offsets(k, 5, 4, 1152, 18, vWo2, vL, vT0, vT1, vT2, G.sT1, rowmap=map_rem)
    k.I("s_waitcnt lgkmcnt(0)")
    srd(k, G.sX, 36, S * D * 2); srd(k, G.sW, 38, D * D * 2); srd(k, G.sWS, 40, WS_SIZE)
    st16 = acc
    load_stats(k, st16, vL, vT0)
    def mid():
        k.I(f"""
        v_add_f32 {v(st16+2)}, {v(st16+2)}, {v(st16+6)}
        v_add_f32 {v(st16+10)}, {v(st16+10)}, {v(st16+14)}
        v_add_f32 {v(st16+2)}, {v(st16+2)}, {v(st16+10)}
        v_mul_f32 {v(st16+2)}, {hx(f2u(-LOG2E))}, {v(st16+2)}
        v_exp_f32 {v(st16+2)}, {v(st16+2)}
        v_add_f32 {v(st16+2)}, 1.0, {v(st16+2)}
        v_rcp_f32 {v(vG)}, {v(st16+2)}
        v_sub_f32 {v(vG+1)}, 1.0, {v(vG)}
        """)
    lds = gemm_main(k, 5, 4, 9, 4, acc, vL, vB, vWo, 72 * 1152, False, vWoLast=vWo2, mid=mid)
    ld = k.v.alloc(60, 4); t2 = k.v.alloc(8, 2); sm = k.v.alloc(8, 2); pk = k.v.alloc(8, 4)
    k.I(f"""
    s_mul_i32 s{G.sT0}, s{G.sMT}, 36
    s_mul_i32 s{G.sT1}, s{G.sCB}, 9
    s_add_u32 s{G.sT0}, s{G.sT0}, s{G.sT1}
    s_lshl_b32 s{G.sT0}, s{G.sT0}, 10
    s_add_u32 s50, s{G.sT0}, {WS_X1}
    s_add_u32 s51, s{G.sT0}, {WS_PART}
    s_add_u32 s52, s51, {64*36*1024}
    s_add_u32 s53, s52, {64*36*1024}
    s_add_u32 s54, s53, {64*36*1024}
    v_and_b32 {v(vT0)}, 31, {v(vL)}
    s_lshl_b32 s{G.sT0}, s{G.sMT}, 5
    v_add_u32 {v(vT0)}, s{G.sT0}, {v(vT0)}
    v_mul_u32_u24 {v(vT0)}, 1152, {v(vT0)}
    v_lshrrev_b32 {v(vT1)}, 5, {v(vL)}
    v_lshl_add_u32 {v(vT0)}, {v(vT1)}, 4, {v(vT0)}
    s_mul_i32 s{G.sT1}, s{G.sCB}, 288
    """)
    for c in range(3):
        for sx in range(3):
            for a_ in range(5):
                k.I(f"buffer_load_dwordx4 {v(ld+20*sx+4*a_,4)}, {v(vB)}, {s(G.sWS,4)}, s{50+a_} offen offset:{1024*sx}")
        for a_ in range(5): k.I(f"s_add_u32 s{50+a_}, s{50+a_}, 3072")
        for sx in range(3):
            sidx = 3 * c + sx
            k.I(f"s_waitcnt vmcnt({5*(2-sx) + sx})")
            for a_ in range(5):
                dst = sm if a_ == 0 else t2
                for j in range(4):
                    k.I(f"v_lshlrev_b32 {v(dst+2*j)}, 16, {v(ld+20*sx+4*a_+j)}")
                    k.I(f"v_and_b32 {v(dst+2*j+1)}, 0xffff0000, {v(ld+20*sx+4*a_+j)}")
                if a_:
                    for j in range(4):
                        k.I(f"v_pk_add_f32 {v(sm+2*j,2)}, {v(sm+2*j,2)}, {v(t2+2*j,2)}")
            p0 = pk + 4 * (sidx & 1)
            for j in range(4):
                k.I(f"v_pk_mul_f32 {v(sm+2*j,2)}, {v(sm+2*j,2)}, {v(vG,2)} op_sel:[0,1] op_sel_hi:[1,1]")
            for j in range(4):
                r = acc + 8 * sidx + 2 * j
                k.I(f"v_pk_fma_f32 {v(sm+2*j,2)}, {v(r,2)}, {v(vG,2)}, {v(sm+2*j,2)} op_sel_hi:[1,0,1]")
            for j in range(4):
                k.I(f"v_cvt_pk_bf16_f32 {v(p0+j)}, {v(sm+2*j)}, {v(sm+2*j+1)}")
            k.I(f"buffer_store_dwordx4 {v(p0,4)}, {v(vT0)}, {s(G.sX,4)}, s{G.sT1} offen offset:{32*sidx}")
    k.end(kidx)
    return lds

def simple(name, emit, n, kidx):
    k = Kern(name, vlimit=256)
    k.I(f"s_cmp_ge_u32 s2, {n}\ns_cbranch_scc1 L_{name}_exit")
    lds = emit(k, 2, kidx)
    k.L(f"L_{name}_exit"); k.I("s_endpgm")
    return k, (name, n, 256, lds)

def gen_k2(kidx):
    k = Kern("k2_kernel", vlimit=256)
    k.I(f"s_cmp_ge_u32 s2, {64+72}\ns_cbranch_scc1 L_k2_exit\ns_cmp_ge_u32 s2, 64\ns_cbranch_scc1 L_k2_cs")
    lds = emit_w2(k, 2, kidx)
    k.L("L_k2_cs")
    k.I("s_sub_u32 s3, s2, 64")
    emit_cs3(k, 3, kidx)
    k.L("L_k2_exit"); k.I("s_endpgm")
    return k, ("k2_kernel", 136, 256, lds)
```

```python
from common import *

NT = 5
WIMG = 16 * NT * 256
XIMG = 16384
SLOT = WIMG + XIMG
ND = 4
ST = "sc1"

def gen_k1():
    k = Kern("k1_kernel", vlimit=256)
    k.s.next = 40
    sX, sW, sWS = 4, 8, 12
    sRB, sCB, sWV, sROLE = 16, 17, 18, 19
    sCNT, sOW, sOX, sG, sDMA, sNXT, sLDW, sWSTEP, sT0, sT1 = 20, 21, 22, 23, 24, 25, 26, 27, 28, 29
    sC = 30
    sMT = 32
    sM0W, sM0X = 33, 34
    k.v.next = 1
    vL = k.v.alloc(); vT0 = k.v.alloc(); vT1 = k.v.alloc()
    vWo = [k.v.alloc() for _ in range(5)]
    vXo = [k.v.alloc() for _ in range(4)]
    vWa0 = k.v.alloc(); vXa0 = [k.v.alloc() for _ in range(4)]
    vWa = k.v.alloc(); vXa = [k.v.alloc() for _ in range(4)]
    acc = k.v.alloc(80, 4)
    Ab = [[k.v.alloc(4, 4) for t in range(NT)] for b in range(2)]
    Bb = [k.v.alloc(4, 4) for b in range(2)]
    vSum = k.v.alloc(2); vSq = k.v.alloc(2); vCs = k.v.alloc(5); vOnes = k.v.alloc()
    Lend = "L_k1_end"
    k.I(f"""
    s_cmp_ge_u32 s2, 256
    s_cbranch_scc1 {Lend}
    """)
    k.stamp(0)
    k.I(f"""
    s_load_dwordx4 s[36:39], s[0:1], {KA_X}
    s_load_dwordx2 s[40:41], s[0:1], {KA_W1}
    s_load_dwordx2 s[42:43], s[0:1], {KA_WS}
    v_and_b32 {v(vL)}, 63, v0
    v_lshrrev_b32 {v(vT0)}, 6, v0
    s_and_b32 s{sROLE}, s2, 3
    v_readfirstlane_b32 s{sWV}, {v(vT0)}
    s_bfe_u32 s{sT0}, s2, 0x10002
    s_bfe_u32 s{sRB}, s2, 0x30003
    s_lshl_b32 s{sT0}, s{sT0}, 3
    s_add_u32 s{sRB}, s{sRB}, s{sT0}
    s_lshr_b32 s{sCB}, s2, 6
    s_lshl_b32 s{sMT}, s{sRB}, 2
    s_add_u32 s{sMT}, s{sMT}, s{sWV}
    s_and_b32 s{sG}, s{sRB}, 7
    s_lshl_b32 s{sT0}, s{sCB}, 1
    s_add_u32 s{sG}, s{sG}, s{sT0}
    s_cmp_ge_u32 s{sG}, 9
    s_cselect_b32 s{sT0}, 9, 0
    s_sub_u32 s{sG}, s{sG}, s{sT0}
    ; weight matrix params: role 3 -> w1 (ld 1152), else wqkv (ld 3456, col base role*1152)
    s_cmp_eq_u32 s{sROLE}, 3
    s_mov_b32 s{sLDW}, 3456
    s_cselect_b32 s{sLDW}, 1152, s{sLDW}
    s_mul_i32 s{sT0}, s{sROLE}, 1152
    s_cselect_b32 s{sT0}, 0, s{sT0}
    s_mul_i32 s{sT1}, s{sCB}, 288
    s_add_u32 s{sT1}, s{sT1}, s{sT0}
    s_lshl_b32 s{sWSTEP}, s{sLDW}, 6
    """)
    for i in range(5):
        k.I(f"""
        s_mul_i32 s{sT0}, s{sWV}, 20
        s_add_u32 s{sT0}, s{sT0}, {4*i}
        v_lshrrev_b32 {v(vT0)}, 4, {v(vL)}
        v_add_u32 {v(vT0)}, s{sT0}, {v(vT0)}
        v_mul_u32_u24 {v(vT1)}, 0x3334, {v(vT0)}
        v_lshrrev_b32 {v(vT1)}, 16, {v(vT1)}
        v_mul_u32_u24 {v(vWa)}, 5, {v(vT1)}
        v_sub_u32 {v(vT0)}, {v(vT0)}, {v(vWa)}
        v_bfe_u32 {v(vWa)}, {v(vL)}, 2, 2
        v_lshl_add_u32 {v(vT1)}, {v(vT1)}, 2, {v(vWa)}
        v_mul_lo_u32 {v(vT1)}, {v(vT1)}, s{sLDW}
        v_and_b32 {v(vWa)}, 3, {v(vL)}
        v_lshl_add_u32 {v(vT0)}, {v(vT0)}, 2, {v(vWa)}
        v_cmp_gt_u32 vcc, 18, {v(vT0)}
        v_lshl_add_u32 {v(vT1)}, {v(vT0)}, 4, {v(vT1)}
        v_add_u32 {v(vT1)}, s{sT1}, {v(vT1)}
        v_mov_b32 {v(vT0)}, {hx(OOB)}
        v_cndmask_b32 {v(vWo[i])}, {v(vT0)}, {v(vT1)}, vcc
        """)
    for i in range(4):
        k.I(f"""
        v_lshrrev_b32 {v(vT0)}, 3, {v(vL)}
        v_add_u32 {v(vT0)}, {8*i}, {v(vT0)}
        v_bfe_u32 {v(vT1)}, {v(vT0)}, 1, 3
        v_xor_b32 {v(vT1)}, {v(vT1)}, {v(vL)}
        v_and_b32 {v(vT1)}, 7, {v(vT1)}
        s_lshl_b32 s{sT0}, s{sMT}, 5
        v_add_u32 {v(vT0)}, s{sT0}, {v(vT0)}
        v_mul_u32_u24 {v(vT0)}, 1152, {v(vT0)}
        v_lshl_add_u32 {v(vXo[i])}, {v(vT1)}, 4, {v(vT0)}
        """)
    k.I(f"""
    s_mul_i32 s{sM0W}, s{sWV}, 5120
    s_lshl_b32 s{sM0X}, s{sWV}, 12
    s_add_u32 s{sM0X}, s{sM0X}, {WIMG}
    s_mul_i32 s{sOW}, s{sG}, s{sWSTEP}
    s_lshl_b32 s{sOX}, s{sG}, 7
    s_mov_b32 s{sDMA}, 0
    s_waitcnt lgkmcnt(0)
    """)
    srd(k, sX, 36, S * D * 2)
    k.I(f"""
    s_cmp_eq_u32 s{sROLE}, 3
    s_cselect_b32 s{sW}, s40, s38
    s_cselect_b32 s{sW+1}, s41, s39
    s_mov_b32 s{sW+2}, {D*3*D*2}
    s_cselect_b32 s{sW+2}, {D*D*2}, s{sW+2}
    s_and_b32 s{sW+1}, s{sW+1}, 0xffff
    s_mov_b32 s{sW+3}, 0x00020000
    """)
    srd(k, sWS, 42, WS_SIZE)

    def dma_list():
        g = []
        for i in range(5):
            g.append((f"s_add_u32 m0, s{sT0}, {i*1024}", f"buffer_load_dwordx4 {v(vWo[i])}, {s(sW,4)}, s{sOW} offen lds"))
        for i in range(4):
            g.append((f"s_add_u32 m0, s{sT1}, {i*1024}", f"buffer_load_dwordx4 {v(vXo[i])}, {s(sX,4)}, s{sOX} offen lds"))
        return g
    dma_pre = f"s_add_u32 s{sT0}, s{sDMA}, s{sM0W}\ns_add_u32 s{sT1}, s{sDMA}, s{sM0X}"
    dma_post = f"""
    s_add_u32 s{sG}, s{sG}, 1
    s_cmp_eq_u32 s{sG}, 9
    s_cselect_b32 s{sG}, 0, s{sG}
    s_mul_i32 s{sOW}, s{sG}, s{sWSTEP}
    s_lshl_b32 s{sOX}, s{sG}, 7
    s_add_u32 s{sDMA}, s{sDMA}, {SLOT}
    s_cmp_eq_u32 s{sDMA}, {SLOT*ND}
    s_cselect_b32 s{sDMA}, 0, s{sDMA}
    """
    for st in range(ND):
        k.I(dma_pre)
        for m, ld in dma_list():
            k.I(m); k.I("s_nop 0"); k.I(ld)
        k.I(dma_post)
    k.I(f"""
    v_and_b32 {v(vT0)}, 31, {v(vL)}
    v_bfe_u32 {v(vT1)}, {v(vL)}, 1, 3
    v_lshrrev_b32 {v(vWa)}, 5, {v(vL)}
    v_xor_b32 {v(vT1)}, {v(vT1)}, {v(vWa)}
    v_lshlrev_b32 {v(vT1)}, 4, {v(vT1)}
    v_lshlrev_b32 {v(vT0)}, 7, {v(vT0)}
    v_add_u32 {v(vT0)}, s{sM0X}, {v(vT0)}
    """)
    for ks in range(4):
        k.I(f"v_xor_b32 {v(vXa0[ks])}, {32*ks}, {v(vT1)}")
        k.I(f"v_add_u32 {v(vXa0[ks])}, {v(vXa0[ks])}, {v(vT0)}")
    Lw1, Lv = "L_k1_w1", "L_k1_v"
    k.I(f"""
    s_cmp_eq_u32 s{sROLE}, 3
    s_cbranch_scc1 {Lw1}
    """)

    def reads(ks, buf):
        r = [f"ds_read_b128 {v(Bb[buf],4)}, {v(vXa[ks])}"]
        for t in range(NT):
            for rd in range(2):
                off = (4 * ks + rd) * NT * 256 + t * 256
                r.append(f"ds_read_b64_tr_b16 {v(Ab[buf][t]+2*rd,2)}, {v(vWa)} offset:{off}")
        return r
    def set_addr():
        r = [f"v_add_u32 {v(vWa)}, s{sNXT}, {v(vWa0)}"]
        for ks in range(4): r.append(f"v_add_u32 {v(vXa[ks])}, s{sNXT}, {v(vXa0[ks])}")
        r.append(f"s_add_u32 s{sNXT}, s{sNXT}, {SLOT}")
        r.append(f"s_cmp_eq_u32 s{sNXT}, {SLOT*ND}")
        r.append(f"s_cselect_b32 s{sNXT}, 0, s{sNXT}")
        return r
    def mfma(role, t, buf, first):
        c = "0" if first else v(acc + 16 * t, 16)
        if role == "v":
            return f"v_mfma_f32_32x32x16_bf16 {v(acc+16*t,16)}, {v(Bb[buf],4)}, {v(Ab[buf][t],4)}, {c}"
        return f"v_mfma_f32_32x32x16_bf16 {v(acc+16*t,16)}, {v(Ab[buf][t],4)}, {v(Bb[buf],4)}, {c}"
    def stats(t, buf):
        r = []
        for j in range(4):
            r.append(f"v_dot2_f32_bf16 {v(vCs+t)}, {v(Ab[buf][t]+j)}, {v(vOnes)}, {v(vCs+t)}")
        if t < 4:
            j = t
            r.insert(1, f"v_dot2_f32_bf16 {v(vSum+(j&1))}, {v(Bb[buf]+j)}, {v(vOnes)}, {v(vSum+(j&1))}")
            r.insert(3, f"v_dot2_f32_bf16 {v(vSq+(j&1))}, {v(Bb[buf]+j)}, {v(Bb[buf]+j)}, {v(vSq+(j&1))}")
        return r
    def stage(role, first, dma, vm, last):
        d = dma_list() if dma else []
        if dma: k.I(dma_pre)
        for ks in range(4):
            buf = ks & 1
            if ks < 3:
                rd = reads(ks + 1, buf ^ 1)
                split = [3, 3, 3, 2, 0]
                issued = 0
                for t in range(NT):
                    k.I(f"s_waitcnt lgkmcnt({min(15, 2*(NT-1-t) + issued)})")
                    k.I(mfma(role, t, buf, first and ks == 0))
                    if d and t in (0, 2, 4): k.I(d[0][0])
                    for x in rd[issued:issued + split[t]]: k.I(x)
                    issued += split[t]
                    if d and t in (0, 2, 4):
                        if split[t] == 0: k.I("s_nop 0")
                        k.I(d[0][1]); d.pop(0)
                    if role == "w1":
                        for x in stats(t, buf): k.I(x)
            else:
                if dma: k.I(dma_post)
                rd = [] if last else reads(0, buf ^ 1)
                split = [0, 0, 4, 4, 3]
                issued = 0
                for t in range(NT):
                    if t == 0: k.I(f"s_waitcnt lgkmcnt(8)")
                    if t == 1: k.I(f"s_waitcnt lgkmcnt(0)")
                    k.I(mfma(role, t, buf, False))
                    if t == 1 and not last:
                        for x in set_addr(): k.I(x)
                        k.I(f"s_waitcnt vmcnt({vm})")
                        k.I("s_barrier")
                    if not last:
                        for x in rd[issued:issued + split[t]]: k.I(x)
                        issued += split[t]
                    if role == "w1":
                        for x in stats(t, buf): k.I(x)
        assert not d
    def mainloop(role):
        tr_lane_addr(k, vWa0, vL, vT0, vT1, 2 * NT * 256, perm=(role == "w1"))
        k.I(f"s_mov_b32 s{sNXT}, 0")
        if role == "w1":
            k.I(f"v_mov_b32 {v(vOnes)}, 0x3f803f80")
            for r in list(range(vSum, vSum + 2)) + list(range(vSq, vSq + 2)) + list(range(vCs, vCs + 5)):
                k.I(f"v_mov_b32 {v(r)}, 0")
        for x in set_addr(): k.I(x)
        k.stamp(1)
        k.I("s_waitcnt vmcnt(27)")
        k.I("s_barrier")
        k.stamp(2); k.cstamp(4)
        for x in reads(0, 0): k.I(x)
        stage(role, True, False, 18, False)
        k.I(f"s_mov_b32 s{sCNT}, 5")
        Lp = f"L_k1_loop_{role}"
        k.I(".p2align 3")
        k.L(Lp)
        stage(role, False, True, 18, False)
        k.I(f"s_sub_u32 s{sCNT}, s{sCNT}, 1\ns_cmp_lg_u32 s{sCNT}, 0\ns_cbranch_scc1 {Lp}")
        stage(role, False, False, 9, False)
        stage(role, False, False, 0, False)
        stage(role, False, False, None, True)
        k.stamp(3); k.cstamp(5)

    mark = k.v.mark()
    k.I(f"s_cmp_eq_u32 s{sROLE}, 2\ns_cbranch_scc1 {Lv}")
    mainloop("qk")
    pk = k.v.alloc(40, 4)
    vO1 = k.v.alloc(); vO2 = k.v.alloc(); vO3 = k.v.alloc()
    k.I(f"""
    s_cmp_eq_u32 s{sROLE}, 0
    s_cselect_b32 s{sC}, {hx(f2u(QSCALE))}, 1.0
    v_lshlrev_b32 {v(vO1)}, 4, {v(vL)}
    v_and_b32 {v(vO2)}, 31, {v(vL)}
    v_lshlrev_b32 {v(vO2)}, 2, {v(vO2)}
    v_lshrrev_b32 {v(vT0)}, 5, {v(vL)}
    v_mul_u32_u24 {v(vT1)}, {3*8192}, {v(vT0)}
    v_add_u32 {v(vO3)}, {v(vO2)}, {v(vT1)}
    v_lshl_add_u32 {v(vO2)}, {v(vT0)}, 13, {v(vO2)}
    v_cmp_lt_u32 vcc, 31, {v(vL)}
    s_lshl_b32 s{sT0}, s{sCB}, 9
    s_add_u32 s{sT0}, s{sT0}, s{sMT}
    s_lshl_b32 s{sT1}, s{sT0}, 7
    s_lshl_b32 s{sT0}, s{sT0}, 10
    s_lshl_b32 s{sG}, s{sROLE}, 21
    s_add_u32 s{sT0}, s{sT0}, s{sG}
    s_lshl_b32 s{sG}, s{sROLE}, 18
    s_add_u32 s{sT1}, s{sT1}, s{sG}
    s_add_u32 s{sT1}, s{sT1}, {WS_QX}
    """)
    for g in range(2):
        base = pk + 20 * g
        M = [base, base + 4, base + 8, base + 12]
        tA, tB, tC, tD = base + 16, base + 17, base + 18, base + 19
        dst = {0: M[0], 1: M[0] + 1, 2: M[0] + 2, 3: M[0] + 3, 4: tA, 5: M[1] + 1, 6: M[1] + 2, 7: M[1] + 3,
               8: tB, 9: tC, 10: M[2], 11: M[2] + 1, 12: M[2] + 2, 13: tD, 14: M[3], 15: M[3] + 1, 16: M[3] + 2, 17: M[3] + 3}
        for w in range(18):
            r = acc + 2 * (18 * g + w)
            k.I(f"v_pk_mul_f32 {v(r,2)}, {v(r,2)}, {s(sC,2)} op_sel_hi:[1,0]")
        for w in range(18):
            r = acc + 2 * (18 * g + w)
            k.I(f"v_cvt_pk_bf16_f32 {v(dst[w])}, {v(r)}, {v(r+1)}")
        k.I(f"v_cndmask_b32 {v(M[1])}, {v(tB)}, {v(tA)}, vcc")
        k.I(f"v_cndmask_b32 {v(M[2]+3)}, {v(tD)}, {v(tB)}, vcc")
        k.I(f"v_cndmask_b32 {v(tA)}, {v(tA)}, {v(tD)}, vcc")
        for i in range(4):
            k.I(f"buffer_store_dwordx4 {v(M[i],4)}, {v(vO1)}, {s(sWS,4)}, s{sT0} offen {ST}")
            k.I(f"s_add_u32 s{sT0}, s{sT0}, 65536")
        k.I(f"buffer_store_dword {v(tA)}, {v(vO3)}, {s(sWS,4)}, s{sT1} offen {ST}")
        k.I(f"s_add_u32 s{sT1}, s{sT1}, 8192")
        k.I(f"buffer_store_dword {v(tC)}, {v(vO2)}, {s(sWS,4)}, s{sT1} offen {ST}")
        k.I(f"s_add_u32 s{sT1}, s{sT1}, {3*8192}")
    k.end(0)
    k.v.reset(mark)
    k.L(Lv)
    mainloop("v")
    pk = k.v.alloc(40, 4)
    vO = [k.v.alloc() for _ in range(5)]
    k.I(f"""
    s_lshl_b32 s{sT0}, s{sCB}, 10
    s_lshl_b32 s{sT1}, s{sMT}, 1
    s_add_u32 s{sT0}, s{sT0}, s{sT1}
    s_mul_i32 s{sT0}, s{sT0}, {VT_STEP}
    s_add_u32 s{sT0}, s{sT0}, {WS_VT}
    s_mov_b32 s{sT1}, {128*VT_STEP}
    v_lshrrev_b32 {v(vWa)}, 5, {v(vL)}
    v_mul_u32_u24 {v(vWa)}, 304, {v(vWa)}
    """)
    for t in range(NT):
        k.I(f"""
        v_and_b32 {v(vT0)}, 31, {v(vL)}
        v_add_u32 {v(vT0)}, {32*t}, {v(vT0)}
        v_mul_u32_u24 {v(vT1)}, 3641, {v(vT0)}
        v_lshrrev_b32 {v(vT1)}, 16, {v(vT1)}
        v_mul_u32_u24 {v(vO[t])}, 18, {v(vT1)}
        v_sub_u32 {v(vO[t])}, {v(vT0)}, {v(vO[t])}
        """)
        if t == 4:
            k.I(f"""
            v_cmp_lt_u32 vcc, 143, {v(vT0)}
            v_subrev_u32 {v(vXa[0])}, 144, {v(vT0)}
            v_cndmask_b32 {v(vT1)}, {v(vT1)}, {v(vXa[0])}, vcc
            v_mov_b32 {v(vXa[0])}, 18
            v_cndmask_b32 {v(vO[t])}, {v(vO[t])}, {v(vXa[0])}, vcc
            """)
        k.I(f"""
        v_mul_lo_u32 {v(vT1)}, {v(vT1)}, s{sT1}
        v_lshl_add_u32 {v(vO[t])}, {v(vO[t])}, 4, {v(vT1)}
        v_add_u32 {v(vO[t])}, {v(vO[t])}, {v(vWa)}
        """)
        if t == 4:
            k.I(f"""
            v_cmp_lt_u32 s[44:45], 151, {v(vT0)}
            v_mov_b32 {v(vXa[0])}, {hx(OOB)}
            v_cndmask_b32 {v(vO[t])}, {v(vO[t])}, {v(vXa[0])}, s[44:45]
            v_mov_b32 {v(vXa[1])}, 0x3f803f80
            """.replace("v_cmp_lt_u32 s[44:45], 151,", f"s_mov_b32 s46, 151\nv_cmp_lt_u32 s[44:45], s46,"))
    for t in range(NT):
        for j in range(8):
            k.I(f"v_cvt_pk_bf16_f32 {v(pk+8*t+j)}, {v(acc+16*t+2*j)}, {v(acc+16*t+2*j+1)}")
        if t == 4:
            for j in range(8):
                k.I(f"v_cndmask_b32 {v(pk+8*t+j)}, {v(pk+8*t+j)}, {v(vXa[1])}, vcc")
        k.I(f"buffer_store_dwordx4 {v(pk+8*t,4)}, {v(vO[t])}, {s(sWS,4)}, s{sT0} offen {ST}")
        k.I(f"buffer_store_dwordx4 {v(pk+8*t+4,4)}, {v(vO[t])}, {s(sWS,4)}, s{sT0} offen offset:{VT_STEP} {ST}")
    k.end(0)
    k.v.reset(mark)
    k.L(Lw1)
    mainloop("w1")
    cs = k.v.alloc(16, 4); tmp = k.v.alloc(16, 2); pk = k.v.alloc(8, 4)
    vR = k.v.alloc(2); vN = k.v.alloc(2); vK1 = k.v.alloc(2); vO = k.v.alloc(); vA = k.v.alloc()
    k.I(f"""
    v_add_f32 {v(vSum)}, {v(vSum)}, {v(vSum+1)}
    v_add_f32 {v(vSq)}, {v(vSq)}, {v(vSq+1)}
    v_mov_b32 {v(vSum+1)}, {v(vSum)}
    v_mov_b32 {v(vSq+1)}, {v(vSq)}
    v_permlane32_swap_b32 {v(vSum)}, {v(vSum+1)}
    v_permlane32_swap_b32 {v(vSq)}, {v(vSq+1)}
    v_add_f32 {v(vSum)}, {v(vSum)}, {v(vSum+1)}
    v_add_f32 {v(vSq)}, {v(vSq)}, {v(vSq+1)}
    s_barrier
    """)
    k.I(f"v_and_b32 {v(vA)}, 31, {v(vL)}\nv_lshlrev_b32 {v(vA)}, 2, {v(vA)}\ns_lshl_b32 s{sT0}, s{sWV}, 10\nv_add_u32 {v(vA)}, s{sT0}, {v(vA)}")
    for t in range(NT):
        k.I(f"v_mov_b32 {v(tmp+t)}, {v(vCs+t)}")
    for t in range(NT):
        k.I(f"v_permlane32_swap_b32 {v(tmp+t)}, {v(vCs+t)}")
    for t in range(NT):
        k.I(f"v_add_f32 {v(tmp+t)}, {v(tmp+t)}, {v(vCs+t)}")
    for t in range(NT):
        k.I(f"ds_write_b32 {v(vA)}, {v(tmp+t)} offset:{128*t}")
    k.I(f"""
    v_mul_f32 {v(vSum)}, {hx(f2u(1.0/576))}, {v(vSum)}
    v_mul_f32 {v(vSq)}, {hx(f2u(1.0/576))}, {v(vSq)}
    v_fma_f32 {v(vSq)}, -{v(vSum)}, {v(vSum)}, {v(vSq)}
    v_max_f32 {v(vSq)}, 0, {v(vSq)}
    v_add_f32 {v(vSq)}, {hx(f2u(1e-5))}, {v(vSq)}
    v_rsq_f32 {v(vR)}, {v(vSq)}
    s_lshr_b32 s{sT0}, s{sCB}, 1
    s_add_u32 s{sT0}, s{sT0}, 1
    s_sub_u32 s{sT1}, 0, s{sT0}
    s_bitcmp1_b32 s{sCB}, 0
    s_cselect_b32 s{sT0}, s{sT1}, s{sT0}
    s_lshl_b32 s{sT1}, s{sMT}, 5
    s_add_u32 s{sT0}, s{sT0}, s{sT1}
    v_and_b32 {v(vT0)}, 31, {v(vL)}
    v_add_u32 {v(vT0)}, s{sT0}, {v(vT0)}
    s_mov_b32 s{sT1}, 2048
    v_cmp_gt_u32 vcc, s{sT1}, {v(vT0)}
    v_and_b32 {v(vT0)}, 2047, {v(vT0)}
    v_cndmask_b32 {v(vR)}, 0, {v(vR)}, vcc
    v_mul_f32 {v(vN)}, {v(vR)}, {v(vSum)}
    v_sub_f32 {v(vN)}, 0, {v(vN)}
    v_lshrrev_b32 {v(vT1)}, 5, {v(vT0)}
    v_mul_u32_u24 {v(vT1)}, {36*1024}, {v(vT1)}
    v_and_b32 {v(vT0)}, 31, {v(vT0)}
    v_and_b32 {v(vO)}, 32, {v(vL)}
    v_add_u32 {v(vT0)}, {v(vT0)}, {v(vO)}
    v_lshl_add_u32 {v(vO)}, {v(vT0)}, 4, {v(vT1)}
    s_mul_i32 s{sT0}, s{sCB}, {9*1024}
    s_add_u32 s{sT0}, s{sT0}, {WS_HS}
    v_mov_b32 {v(vK1)}, {hx(f2u(GK1))}
    s_mov_b32 s{sC}, {hx(f2u(GK2))}
    v_lshrrev_b32 {v(vA)}, 5, {v(vL)}
    v_lshlrev_b32 {v(vA)}, 4, {v(vA)}
    s_lshl_b32 s{sT1}, s{sWV}, 10
    v_add_u32 {v(vA)}, s{sT1}, {v(vA)}
    s_waitcnt lgkmcnt(0)
    """)
    for t in range(NT):
        nq = 4 if t < 4 else 2
        for q in range(nq):
            k.I(f"ds_read_b128 {v(cs+4*q,4)}, {v(vA)} offset:{128*t+32*q}")
        k.I("s_waitcnt lgkmcnt(0)")
        for p in range(2 * nq):
            k.I(f"v_pk_mul_f32 {v(cs+2*p,2)}, {v(cs+2*p,2)}, {v(vN,2)} op_sel_hi:[1,0]")
        for p in range(2 * nq):
            r = acc + 16 * t + 2 * p
            k.I(f"v_pk_fma_f32 {v(r,2)}, {v(r,2)}, {v(vR,2)}, {v(cs+2*p,2)} op_sel_hi:[1,0,1]")
        gelu_pairs(k, [(acc + 16 * t + 2 * p, pk + p) for p in range(2 * nq)], vK1, sC, tmp)
        for e in range(nq // 2):
            k.I(f"buffer_store_dwordx4 {v(pk+4*e,4)}, {v(vO)}, {s(sWS,4)}, s{sT0} offen offset:{1024*e} {ST}")
        k.I(f"s_add_u32 s{sT0}, s{sT0}, 2048")
    k.end(0)
    k.L(Lend)
    k.I("s_endpgm")
    return k, ("k1_kernel", 256, 256, SLOT * ND)

if __name__ == "__main__":
    import sys
    STAMP[0] = len(sys.argv) > 1
    kk, l = gen_k1()
    open("k1.s", "w").write(build([kk], [l]))
    print("vgprs", kk.v.hi)
```

```python
import sys
from common import *
import k1, attn, gemm
STAMP[0] = "nostamp" not in sys.argv
ks = [k1.gen_k1(), attn.gen_attn(1), gemm.gen_k2(2), gemm.simple("w3_kernel", gemm.emit_w3, 256, 3),
      gemm.simple("w4_kernel", gemm.emit_w4, 256, 4), gemm.simple("fin_kernel", gemm.emit_fin, 64, 5)]
hdr = "".join(l for l in open("gated_mix__mha_block__mixer_s_mlp__prompt.s.ref").readlines()[:13])
out = sys.argv[1] if len(sys.argv) > 1 else "all.s"
open(out, "w").write(build([a for a, b in ks], [b for a, b in ks], header=hdr))
for a, b in ks: print(b, "vgprs", a.v.hi)
```

```python
from common import *
import sync
ST = "sc1"
ATT_LDS = 4 * 4 * 3 * 1024 + 64

def emit_attn(k, sID, kidx, pfx="at", rounds=1, sig=False):
    sWS = 4
    sWV, sHD, sQB, sJ, sKO, sXO, sVO, sKB, sXB, sVB, sCNT, sT0, sT1, sRETRY = range(8, 22)
    k.v.next = 1
    vL = k.v.alloc(); vK = k.v.alloc(); vX = k.v.alloc(); vV = k.v.alloc(); vT0 = k.v.alloc(); vT1 = k.v.alloc()
    O = k.v.alloc(64, 4)
    Sb = [k.v.alloc(16, 4) for _ in range(2)]
    P = k.v.alloc(8, 4)
    Qm = [k.v.alloc(4, 4) for _ in range(4)]
    Qx = [k.v.alloc(2, 2) for _ in range(4)]
    Km = [k.v.alloc(4, 4) for _ in range(4)]
    Vf = [k.v.alloc(8, 4) for _ in range(4)]
    Kx = [k.v.alloc(2, 2) for _ in range(4)]
    k.stamp(0)
    k.I(f"""
    s_load_dwordx2 s[24:25], s[0:1], {KA_WS}
    v_and_b32 {v(vL)}, 63, v0
    v_lshrrev_b32 {v(vT0)}, 6, v0
    s_and_b32 s{sHD}, s{sID}, 7
    v_readfirstlane_b32 s{sWV}, {v(vT0)}
    s_lshl_b32 s{sHD}, s{sHD}, 2
    s_bfe_u32 s{sT0}, s{sID}, 0x20003
    s_add_u32 s{sHD}, s{sHD}, s{sT0}
    s_lshr_b32 s{sQB}, s{sID}, 5
    v_lshlrev_b32 {v(vK)}, 4, {v(vL)}
    v_cmp_gt_u32 vcc, 32, {v(vL)}
    v_lshlrev_b32 {v(vT0)}, 2, {v(vL)}
    v_mov_b32 {v(vT1)}, {hx(OOB)}
    v_cndmask_b32 {v(vX)}, {v(vT1)}, {v(vT0)}, vcc
    v_and_b32 {v(vV)}, 0x13, {v(vL)}
    v_and_b32 {v(vT0)}, 4, {v(vL)}
    v_lshl_or_b32 {v(vV)}, {v(vT0)}, 1, {v(vV)}
    v_bfe_u32 {v(vT0)}, {v(vL)}, 3, 1
    v_lshl_or_b32 {v(vV)}, {v(vT0)}, 2, {v(vV)}
    v_cmp_gt_u32 vcc, 19, {v(vV)}
    v_lshrrev_b32 {v(vT0)}, 5, {v(vL)}
    v_mul_u32_u24 {v(vT0)}, 304, {v(vT0)}
    v_lshl_add_u32 {v(vV)}, {v(vV)}, 4, {v(vT0)}
    v_cndmask_b32 {v(vV)}, {v(vT1)}, {v(vV)}, vcc
    s_lshl_b32 s{sT0}, s{sHD}, 6
    s_lshl_b32 s{sT1}, s{sWV}, 4
    s_add_u32 s{sT1}, s{sT1}, s{sT0}
    s_lshl_b32 s{sKB}, s{sT1}, 10
    s_add_u32 s{sKB}, s{sKB}, {WS_KM}
    s_lshl_b32 s{sXB}, s{sT1}, 7
    s_add_u32 s{sXB}, s{sXB}, {WS_KX}
    s_mul_i32 s{sVB}, s{sT1}, {2*VT_STEP}
    s_add_u32 s{sVB}, s{sVB}, {WS_VT}
    s_mov_b32 s22, {rounds}
    s_waitcnt lgkmcnt(0)
    """)
    srd(k, sWS, 24, WS_SIZE)
    k.I(f"""
    L_{pfx}_round:
    s_lshl_b32 s{sT0}, s{sHD}, 6
    s_lshl_b32 s{sT1}, s{sQB}, 2
    s_add_u32 s{sT0}, s{sT0}, s{sT1}
    s_lshl_b32 s{sT1}, s{sT0}, 7
    s_add_u32 s{sT1}, s{sT1}, {WS_QX}
    s_lshl_b32 s{sT0}, s{sT0}, 10
    s_mov_b32 s{sRETRY}, 0
    """)
    for i in range(4):
        k.I(f"buffer_load_dwordx4 {v(Qm[i],4)}, {v(vK)}, {s(sWS,4)}, s{sT0} offen offset:{1024*i}")
        k.I(f"buffer_load_dword {v(Qx[i])}, {v(vX)}, {s(sWS,4)}, s{sT1} offen offset:{128*i}")
    for i in range(4):
        k.I(f"v_mov_b32 {v(Qx[i]+1)}, 0")
        k.I(f"v_mov_b32 {v(Kx[i]+1)}, 0x3f803f80")
    def offs():
        return f"""
        s_lshl_b32 s{sKO}, s{sJ}, 10
        s_add_u32 s{sKO}, s{sKO}, s{sKB}
        s_lshl_b32 s{sXO}, s{sJ}, 7
        s_add_u32 s{sXO}, s{sXO}, s{sXB}
        s_mul_i32 s{sVO}, s{sJ}, {2*VT_STEP}
        s_add_u32 s{sVO}, s{sVO}, s{sVB}
        s_add_u32 s{sJ}, s{sJ}, 1
        s_and_b32 s{sJ}, s{sJ}, 15
        """.strip().split("\n")
    def loads(b):
        return [f"buffer_load_dwordx4 {v(Km[b],4)}, {v(vK)}, {s(sWS,4)}, s{sKO} offen",
                f"buffer_load_dword {v(Kx[b])}, {v(vX)}, {s(sWS,4)}, s{sXO} offen",
                f"buffer_load_dwordx4 {v(Vf[b],4)}, {v(vV)}, {s(sWS,4)}, s{sVO} offen",
                f"buffer_load_dwordx4 {v(Vf[b]+4,4)}, {v(vV)}, {s(sWS,4)}, s{sVO} offen offset:{VT_STEP}"]
    Lmain = f"L_{pfx}_main"; Lloop = f"L_{pfx}_loop"; Lfb = f"L_{pfx}_fb"; Ldone = f"L_{pfx}_done"
    k.L(Lmain)
    k.I(f"s_lshl_b32 s{sJ}, s{sQB}, {1 if rounds > 1 else 0}\ns_and_b32 s{sJ}, s{sJ}, 15")
    for b in range(3):
        for x in offs() + loads(b): k.I(x)
    for r in range(64): k.I(f"v_mov_b32 {v(O+r)}, 0")
    for r in range(4):
        k.I(f"v_mov_b32 {v(P+4+r)}, 0")
        k.I(f"v_mov_b32 {v(Vf[3]+4+r)}, 0")
    k.I(f"v_mov_b32 {v(vT0)}, {ATT_LDS-64}\nv_mov_b32 {v(vT1)}, 0\nds_write_b32 {v(vT0)}, {v(vT1)}")
    def S1(sb, b, i): return f"v_mfma_f32_32x32x16_bf16 {v(Sb[sb],16)}, {v(Km[b],4)}, {v(Qm[i],4)}, 0"
    def S2(sb, b, i): return f"v_mfma_f32_32x32x8_bf16 {v(Sb[sb],16)}, {v(Kx[b],2)}, {v(Qx[i],2)}, {v(Sb[sb],16)}"
    def PV(half, b, i): return f"v_mfma_f32_32x32x16_bf16 {v(O+16*i,16)}, {v(Vf[b]+4*half,4)}, {v(P+4*half,4)}, {v(O+16*i,16)}"
    def grp(sb, g):
        r = Sb[sb] + 4 * g
        return [f"v_exp_f32 {v(r+j)}, {v(r+j)}" for j in range(4)] + \
               [f"v_cvt_pk_bf16_f32 {v(P+2*g)}, {v(r)}, {v(r+1)}", f"v_cvt_pk_bf16_f32 {v(P+2*g+1)}, {v(r+2)}, {v(r+3)}"]
    k.I("s_waitcnt vmcnt(8)")
    k.stamp(1)
    k.I(S1(0, 0, 0)); k.I(S2(0, 0, 0))
    k.I(f"s_mov_b32 s{sCNT}, 4")
    k.I("s_nop 7")
    k.I(".p2align 3")
    k.L(Lloop)
    for t in range(4):
        for i in range(4):
            sb = i & 1
            nb, ni = (t, i + 1) if i < 3 else ((t + 1) & 3, 0)
            pb, pi = (t, i - 1) if i > 0 else ((t - 1) & 3, 3)
            extra = [[], [], [], []]
            if i == 0:
                o = offs(); extra[0] = o[:2]; extra[1] = o[2:4]; extra[2] = o[4:6]; extra[3] = o[6:]
            if i == 1:
                ld = loads((t + 3) & 3); extra = [[x] for x in ld]
            if i == 3: k.I("s_waitcnt vmcnt(8)")
            ms = [S1(sb ^ 1, nb, ni), PV(1, pb, pi), S2(sb ^ 1, nb, ni), PV(0, t, i)]
            for g in range(4):
                k.I(ms[g])
                for x in extra[g]: k.I(x)
                if t == 3 and i == 3 and g == 3:
                    k.I(f"s_sub_u32 s{sCNT}, s{sCNT}, 1\ns_cmp_lg_u32 s{sCNT}, 0")
                for x in grp(sb, g): k.I(x)
    k.I(f"s_cbranch_scc1 {Lloop}")
    k.I(PV(1, 3, 3))
    k.stamp(2)
    k.I(f"""
    s_mul_i32 s{sT0}, s{sWV}, 3072
    v_add_u32 {v(vT0)}, s{sT0}, {v(vK)}
    s_mul_i32 s{sT0}, s{sWV}, 12288
    v_add_u32 {v(vT1)}, s{sT0}, {v(vK)}
    """)
    for i in range(4):
        for c in range(3):
            k.I(f"ds_write_b128 {v(vT0)}, {v(O+16*i+4*c,4)} offset:{12288*i+1024*c}")
    k.I("s_waitcnt vmcnt(0) lgkmcnt(0)\ns_barrier")
    M = O
    for w in range(4):
        for c in range(3):
            k.I(f"ds_read_b128 {v(M+12*w+4*c,4)}, {v(vT1)} offset:{3072*w+1024*c}")
    k.I(f"""
    s_lshl_b32 s{sT0}, s{sQB}, 2
    s_add_u32 s{sT0}, s{sT0}, s{sWV}
    s_mul_i32 s{sT0}, s{sT0}, 36
    s_lshr_b32 s{sT1}, s{sHD}, 3
    s_add_u32 s{sT1}, s{sT1}, s{sT0}
    s_add_u32 s{sT1}, s{sT1}, 32
    s_lshl_b32 s{sT1}, s{sT1}, 10
    s_bfe_u32 s{sKO}, s{sHD}, 0x10002
    s_lshl_b32 s{sKO}, s{sKO}, 9
    s_add_u32 s{sT1}, s{sT1}, s{sKO}
    s_and_b32 s{sKO}, s{sHD}, 3
    s_lshl_b32 s{sKO}, s{sKO}, 2
    s_add_u32 s{sT1}, s{sT1}, s{sKO}
    s_add_u32 s{sT1}, s{sT1}, {WS_O}
    s_add_u32 s{sT0}, s{sT0}, s{sHD}
    s_lshl_b32 s{sT0}, s{sT0}, 10
    s_add_u32 s{sT0}, s{sT0}, {WS_O}
    v_lshlrev_b32 {v(Sb[1])}, 2, {v(vX)}
    v_cmp_gt_u32 vcc, 32, {v(vL)}
    v_cndmask_b32 {v(Sb[1])}, {v(vX)}, {v(Sb[1])}, vcc
    s_waitcnt lgkmcnt(0)
    """)
    for p in range(11):
        k.I(f"v_add_f32 {v(M+p)}, {v(M+p)}, {v(M+12+p)}")
        k.I(f"v_add_f32 {v(M+24+p)}, {v(M+24+p)}, {v(M+36+p)}")
    for p in range(11):
        k.I(f"v_add_f32 {v(M+p)}, {v(M+p)}, {v(M+24+p)}")
    vLs = Sb[0]; vR = Sb[0] + 2
    k.I(f"""
    v_mov_b32 {v(vLs)}, {v(M+10)}
    v_mov_b32 {v(vLs+1)}, {v(M+10)}
    v_permlane32_swap_b32 {v(vLs)}, {v(vLs+1)}
    v_rcp_f32 {v(vR)}, {v(vLs)}
    s_mov_b32 s{sKO}, {hx(f2u(2.0**-32))}
    s_mov_b32 s{sXO}, {hx(f2u(2.0**64))}
    v_cmp_nle_f32 s[26:27], s{sKO}, {v(vLs)}
    v_cmp_nge_f32 s[28:29], s{sXO}, {v(vLs)}
    s_or_b64 s[26:27], s[26:27], s[28:29]
    s_mov_b32 s{sKO}, 0x207
    """)
    for p in range(10):
        k.I(f"v_mul_f32 {v(M+p)}, {v(M+p)}, {v(vR)}")
    for r in range(10):
        k.I(f"v_cmp_class_f32 s[28:29], {v(M+r)}, s{sKO}")
        k.I(f"s_or_b64 s[26:27], s[26:27], s[28:29]")
    for p in range(5):
        k.I(f"v_cvt_pk_bf16_f32 {v(P+p)}, {v(M+2*p)}, {v(M+2*p+1)}")
    k.I(f"buffer_store_dwordx4 {v(P,4)}, {v(vK)}, {s(sWS,4)}, s{sT0} offen {ST}")
    k.I(f"buffer_store_dword {v(P+4)}, {v(Sb[1])}, {s(sWS,4)}, s{sT1} offen {ST}")
    Lnf = f"L_{pfx}_nf"
    k.I(f"""
    v_mov_b32 {v(vT0)}, {ATT_LDS-64}
    s_cmp_lg_u32 s{sRETRY}, 0
    s_cbranch_scc1 {Lnf}
    s_cmp_eq_u64 s[26:27], 0
    s_cbranch_scc1 {Lnf}
    v_mov_b32 {v(vT1)}, 1
    ds_write_b32 {v(vT0)}, {v(vT1)}
    {Lnf}:
    s_waitcnt vmcnt(0) lgkmcnt(0)
    s_barrier
    ds_read_b32 {v(vT1)}, {v(vT0)}
    s_waitcnt lgkmcnt(0)
    v_readfirstlane_b32 s{sT0}, {v(vT1)}
    s_cmp_lg_u32 s{sT0}, 0
    s_cbranch_scc1 {Lfb}
    """)
    if sig:
        k.I(f"s_lshl_b32 s{sT0}, s{sQB}, 7\ns_add_u32 s{sT0}, s{sT0}, {sync.WS_CNT + 128*sync.CA}")
        sync.signal(k, sWS, sWV, sT0, Sb[0])
    if rounds > 1:
        k.I(f"""
        s_add_u32 s{sQB}, s{sQB}, 8
        s_sub_u32 s22, s22, 1
        s_cmp_lg_u32 s22, 0
        s_cbranch_scc0 {Ldone}
        s_barrier
        s_branch L_{pfx}_round
        {Ldone}:
        """)
    k.end(kidx)
    k.L(Lfb)
    mx = O
    k.I(f"s_waitcnt vmcnt(0)\ns_mov_b32 s{sRETRY}, 1\ns_mov_b32 s{sJ}, 0\ns_mov_b32 s{sCNT}, 16")
    for i in range(4): k.I(f"v_mov_b32 {v(mx+i)}, 0xff800000")
    Lm = f"L_{pfx}_mx"
    k.L(Lm)
    for x in offs() + loads(0)[:2]: k.I(x)
    k.I("s_waitcnt vmcnt(0)")
    for i in range(4):
        k.I(S1(0, 0, i)); k.I(S2(0, 0, i))
        for j in range(8):
            k.I(f"v_max3_f32 {v(mx+i)}, {v(Sb[0]+2*j)}, {v(Sb[0]+2*j+1)}, {v(mx+i)}")
    k.I(f"s_sub_u32 s{sCNT}, s{sCNT}, 1\ns_cmp_lg_u32 s{sCNT}, 0\ns_cbranch_scc1 {Lm}")
    k.I(f"""
    s_lshl_b32 s{sT0}, s{sWV}, 10
    v_add_u32 {v(vT0)}, s{sT0}, {v(vK)}
    s_barrier
    ds_write_b128 {v(vT0)}, {v(mx,4)}
    v_and_b32 {v(vT0)}, 0x1f0, {v(vK)}
    s_waitcnt lgkmcnt(0)
    s_barrier
    """)
    t = O + 4
    for j in range(8):
        k.I(f"ds_read_b128 {v(t+4*j,4)}, {v(vT0)} offset:{512*j}")
    k.I("s_waitcnt lgkmcnt(0)\ns_barrier")
    k.I(f"v_cmp_gt_u32 vcc, 32, {v(vL)}")
    for i in range(4):
        for j in range(0, 8, 2):
            k.I(f"v_max3_f32 {v(mx+i)}, {v(t+4*j+i)}, {v(t+4*j+4+i)}, {v(mx+i)}")
        a0, a1, a2 = Sb[0], Sb[0] + 1, Sb[0] + 2
        k.I(f"""
        v_sub_f32 {v(mx+i)}, 0, {v(mx+i)}
        v_and_b32 {v(a0)}, 0xffff0000, {v(mx+i)}
        v_sub_f32 {v(mx+i)}, {v(mx+i)}, {v(a0)}
        v_and_b32 {v(a1)}, 0xffff0000, {v(mx+i)}
        v_sub_f32 {v(mx+i)}, {v(mx+i)}, {v(a1)}
        v_lshrrev_b32 {v(a0)}, 16, {v(a0)}
        v_or_b32 {v(a0)}, {v(a0)}, {v(a1)}
        v_lshrrev_b32 {v(a2)}, 16, {v(mx+i)}
        v_cndmask_b32 {v(Qx[i]+1)}, {v(a2)}, {v(a0)}, vcc
        """)
    k.I(f"s_branch {Lmain}")

def gen_attn(kidx=1):
    k = Kern("attn_kernel", vlimit=256)
    k.I("s_cmp_ge_u32 s2, 512\ns_cbranch_scc1 L_at_exit")
    emit_attn(k, 2, kidx)
    k.L("L_at_exit")
    k.I("s_endpgm")
    return k, ("attn_kernel", 512, 256, ATT_LDS)
```

```python
from common import *
ST = "sc1"

class G:
    sW, sWS, sX = 4, 8, 12
    sRB, sCB, sWV, sSP, sMT, sG, sOW, sOB, sBB, sWB, sT0, sT1, sM0, sM0D = range(16, 30)
    sC = 30
    sC2 = 32

def w_dma_offsets(k, NT, KPS, ldw, nvalid_chunks, vWo, vL, vT0, vT1, vT2, sCOL, rowmap=None):
    nins = KPS * 4 * NT // 4
    per = (nins + 3) // 4
    magic = (65536 + NT - 1) // NT
    for i in range(per):
        full = nins // 4
        if i < full:
            k.I(f"s_mul_i32 s{G.sT0}, s{G.sWV}, {4*full}\ns_add_u32 s{G.sT0}, s{G.sT0}, {4*i}")
        else:
            k.I(f"s_lshl_b32 s{G.sT0}, s{G.sWV}, 2\ns_add_u32 s{G.sT0}, s{G.sT0}, {16*full}")
        k.I(f"""
        v_lshrrev_b32 {v(vT0)}, 4, {v(vL)}
        v_add_u32 {v(vT0)}, s{G.sT0}, {v(vT0)}
        v_mul_u32_u24 {v(vT1)}, {magic}, {v(vT0)}
        v_lshrrev_b32 {v(vT1)}, 16, {v(vT1)}
        v_mul_u32_u24 {v(vT2)}, {NT}, {v(vT1)}
        v_sub_u32 {v(vT0)}, {v(vT0)}, {v(vT2)}
        v_bfe_u32 {v(vT2)}, {v(vL)}, 2, 2
        v_lshl_add_u32 {v(vT1)}, {v(vT1)}, 2, {v(vT2)}
        """)
        if i >= full:
            k.I(f"v_cmp_gt_u32 s[34:35], {KPS*16}, {v(vT1)}")
        if rowmap: rowmap(vT1, vT2)
        k.I(f"""
        v_mul_u32_u24 {v(vT1)}, {ldw}, {v(vT1)}
        v_and_b32 {v(vT2)}, 3, {v(vL)}
        v_lshl_add_u32 {v(vT0)}, {v(vT0)}, 2, {v(vT2)}
        v_cmp_gt_u32 vcc, {nvalid_chunks}, {v(vT0)}
        v_lshl_add_u32 {v(vT1)}, {v(vT0)}, 4, {v(vT1)}
        v_add_u32 {v(vT1)}, s{sCOL}, {v(vT1)}
        v_mov_b32 {v(vT0)}, {hx(OOB)}
        """)
        if i >= full: k.I("s_and_b64 vcc, vcc, s[34:35]")
        k.I(f"v_cndmask_b32 {v(vWo[i])}, {v(vT0)}, {v(vT1)}, vcc")
    k.I(f"s_mul_i32 s{G.sM0}, s{G.sWV}, {(nins//4)*1024}")
    if nins % 4:
        k.I(f"s_lshl_b32 s{G.sM0D}, s{G.sWV}, 10\ns_add_u32 s{G.sM0D}, s{G.sM0D}, {(nins//4)*4096}")
    return per

def gemm_main(k, NT, KPS, NST, ND, acc, vL, vB, vWo, wstep, rotate, vWoLast=None, mid=None, RA=5, npro=None):
    nins = KPS * NT
    per = (nins + 3) // 4
    full = nins // 4
    SLOT = per * 4096 if nins % 4 else nins * 1024
    R = RA + 1
    m = k.v.mark()
    vWa = [k.v.alloc() for _ in range(ND)]
    Ab = [k.v.alloc(4, 4) for t in range(R)]
    Bf = [[k.v.alloc(4, 4) for ks in range(KPS)] for d in range(ND)]
    vT0 = Ab[0]; vT1 = Ab[0] + 1
    NL = per + KPS
    def adv():
        r = [f"s_mul_i32 s{G.sOW}, s{G.sG}, {wstep}", f"s_add_u32 s{G.sOW}, s{G.sOW}, s{G.sWB}",
             f"s_mul_i32 s{G.sOB}, s{G.sG}, {KPS*1024}", f"s_add_u32 s{G.sOB}, s{G.sOB}, s{G.sBB}",
             f"s_add_u32 s{G.sG}, s{G.sG}, 1"]
        if rotate: r += [f"s_cmp_eq_u32 s{G.sG}, {NST}", f"s_cselect_b32 s{G.sG}, 0, s{G.sG}"]
        return r
    def loads(st):
        sl = st % ND
        wo = vWoLast if (vWoLast and st == NST - 1) else vWo
        so = f"s{G.sWB}" if (vWoLast and st == NST - 1) else f"s{G.sOW}"
        g = []
        for i in range(per):
            mm = f"s_add_u32 m0, s{G.sM0}, {sl*SLOT + i*1024}" if i < full else f"s_add_u32 m0, s{G.sM0D}, {sl*SLOT}"
            g.append([mm, f"buffer_load_dwordx4 {v(wo[i])}, {s(G.sW,4)}, {so} offen lds"])
        for ks in range(KPS):
            g.append([f"buffer_load_dwordx4 {v(Bf[sl][ks],4)}, {v(vB)}, {s(G.sWS,4)}, s{G.sOB} offen offset:{1024*ks}"])
        return g
    NS = KPS * NT
    def reads(n):
        st, r = divmod(n, NS); ks, t = divmod(r, NT)
        return [f"ds_read_b64_tr_b16 {v(Ab[n % R]+2*rd,2)}, {v(vWa[st % ND])} offset:{(4*ks+rd)*NT*256 + t*256}" for rd in range(2)]
    npro = npro or min(ND, NST)
    for st in range(npro):
        for x in adv(): k.I(x)
        for g in loads(st):
            if len(g) == 2: k.I(g[0]); k.I("s_nop 0"); k.I(g[1])
            else: k.I(g[0])
        if st == 0:
            tr_lane_addr(k, vWa[0], vL, vT0, vT1, 2 * NT * 256, perm=True)
            for d in range(1, ND): k.I(f"v_add_u32 {v(vWa[d])}, {d*SLOT}, {v(vWa[0])}")
    k.stamp(1)
    k.I(f"s_waitcnt vmcnt({(npro-1)*NL})")
    if mid: mid()
    k.I("s_barrier")
    k.stamp(2); k.cstamp(4)
    nread = 0
    for n in range(RA):
        for x in reads(n): k.I(x)
    nread = RA
    N = NST * NS
    limit = NS
    nissued = npro
    queue = []
    outstanding = []
    for st in range(npro): outstanding += [st] * NL
    nxt = npro
    for p in range(N):
        st, r = divmod(p, NS); ks, t = divmod(r, NT)
        if r == 0:
            tgt = [q for q in range(nxt, min(NST, st + ND))]
            nxt = max(nxt, min(NST, st + ND))
            gl = []
            for q in tgt:
                a_ = adv()
                ls = loads(q)
                ls[0] = a_ + ls[0]
                gl += [(q, g) for g in ls]
            span = NS - RA + 1
            where = {}
            for j, g in enumerate(gl): where.setdefault(j * span // len(gl), []).append(g)
        k.I(f"s_waitcnt lgkmcnt({min(15, 2*(nread-p-1))})")
        c = "0" if p < NT else v(acc + 16 * t, 16)
        k.I(f"v_mfma_f32_32x32x16_bf16 {v(acc+16*t,16)}, {v(Ab[p % R],4)}, {v(Bf[st % ND][ks],4)}, {c}")
        if r == NS - RA + 1 and st < NST - 1:
            assert nread == limit
            allowed = sum(1 for q in outstanding if q > st + 1)
            k.I(f"s_waitcnt vmcnt({allowed}) lgkmcnt(0)")
            k.I("s_barrier")
            limit += NS
        gs = where.get(r, [])
        post = []
        for j, (q, g) in enumerate(gs):
            if j == 0:
                for x in g[:-1]: k.I(x)
                post.append(g[-1])
            else: post += g
            outstanding.append(q)
        cnt = 0
        while nread < min(p + RA + 1, limit, N) and cnt < 2:
            for x in reads(nread): k.I(x)
            nread += 1; cnt += 1
        for x in post: k.I(x)
    k.stamp(3); k.cstamp(5)
    k.v.reset(m)
    return SLOT * ND

def common_ids(k, vL, vT0):
    k.I(f"""
    v_and_b32 {v(vL)}, 63, v0
    v_lshrrev_b32 {v(vT0)}, 6, v0
    v_readfirstlane_b32 s{G.sWV}, {v(vT0)}
    """)

def halfsum(k, r, tmp):
    k.I(f"v_mov_b32 {v(tmp)}, {v(r)}\nv_permlane32_swap_b32 {v(r)}, {v(tmp)}\nv_add_f32 {v(r)}, {v(r)}, {v(tmp)}")

def emit_w2(k, sID, kidx):
    k.v.next = 1
    vL = k.v.alloc(); vB = k.v.alloc(); vT0 = k.v.alloc(); vT1 = k.v.alloc(); vT2 = k.v.alloc()
    vWo = [k.v.alloc() for _ in range(5)]
    acc = k.v.alloc(80, 4)
    xr = k.v.alloc(36, 4)
    k.stamp(0)
    k.I(f"""
    s_load_dwordx2 s[36:37], s[0:1], {KA_X}
    s_load_dwordx2 s[38:39], s[0:1], {KA_W2}
    s_load_dwordx2 s[40:41], s[0:1], {KA_WS}
    s_load_dwordx2 s[42:43], s[0:1], {KA_GATE}
    """)
    common_ids(k, vL, vT0)
    k.I(f"""
    s_and_b32 s{G.sRB}, s{sID}, 15
    s_lshr_b32 s{G.sCB}, s{sID}, 4
    s_lshl_b32 s{G.sMT}, s{G.sRB}, 2
    s_add_u32 s{G.sMT}, s{G.sMT}, s{G.sWV}
    s_lshl_b32 s{G.sG}, s{G.sCB}, 1
    s_bfe_u32 s{G.sT0}, s{G.sRB}, 0x10003
    s_add_u32 s{G.sG}, s{G.sG}, s{G.sT0}
    s_mul_i32 s{G.sT1}, s{G.sCB}, 288
    s_mov_b32 s{G.sWB}, 0
    s_mul_i32 s{G.sBB}, s{G.sMT}, {36*1024}
    s_add_u32 s{G.sBB}, s{G.sBB}, {WS_HS}
    v_lshlrev_b32 {v(vB)}, 4, {v(vL)}
    """)
    w_dma_offsets(k, 5, 4, 1152, 18, vWo, vL, vT0, vT1, vT2, G.sT1)
    k.I("s_waitcnt lgkmcnt(0)")
    srd(k, G.sX, 36, S * D * 2); srd(k, G.sW, 38, D * D * 2); srd(k, G.sWS, 40, WS_SIZE); srd(k, 44, 42, D * 2)
    k.I(f"""
    v_and_b32 {v(vT0)}, 31, {v(vL)}
    s_lshl_b32 s{G.sT0}, s{G.sMT}, 5
    v_add_u32 {v(vT0)}, s{G.sT0}, {v(vT0)}
    v_mul_u32_u24 {v(vT0)}, 1152, {v(vT0)}
    v_lshrrev_b32 {v(vT1)}, 5, {v(vL)}
    v_lshlrev_b32 {v(vT2)}, 4, {v(vT1)}
    v_add_u32 {v(vT0)}, {v(vT0)}, {v(vT2)}
    """)
    for sidx in range(9):
        k.I(f"buffer_load_dwordx4 {v(xr+4*sidx,4)}, {v(vT0)}, {s(G.sX,4)}, s{G.sT1} offen offset:{32*sidx}")
    k.I(f"s_mov_b32 s48, s{G.sT1}")
    lds = gemm_main(k, 5, 4, 9, 4, acc, vL, vB, vWo, 64 * 1152, True)
    gw = k.v.alloc(36, 4); st4 = k.v.alloc(4, 4); t2 = k.v.alloc(8, 2); sm = k.v.alloc(2, 2); sq = k.v.alloc(2, 2); pk = k.v.alloc(8, 4)
    for sidx in range(9):
        k.I(f"buffer_load_dwordx4 {v(gw+4*sidx,4)}, {v(vT2)}, s[44:47], s48 offen offset:{32*sidx}")
    k.I(f"""
    v_mov_b32 {v(sm)}, 0
    v_mov_b32 {v(sm+1)}, 0
    v_mov_b32 {v(sq)}, 0
    v_mov_b32 {v(sq+1)}, 0
    v_mov_b32 {v(st4+2)}, 0
    v_mov_b32 {v(st4+3)}, 0
    s_mul_i32 s{G.sT0}, s{G.sMT}, 36
    s_mul_i32 s{G.sT1}, s{G.sCB}, 9
    s_add_u32 s{G.sT0}, s{G.sT0}, s{G.sT1}
    s_lshl_b32 s{G.sT0}, s{G.sT0}, 10
    s_add_u32 s{G.sT0}, s{G.sT0}, {WS_X1}
    """)
    for sidx in range(9):
        p0 = pk + 4 * (sidx & 1)
        for j in range(4):
            k.I(f"v_lshlrev_b32 {v(t2+2*j)}, 16, {v(xr+4*sidx+j)}")
            k.I(f"v_and_b32 {v(t2+2*j+1)}, 0xffff0000, {v(xr+4*sidx+j)}")
        for j in range(4):
            r = acc + 8 * sidx + 2 * j
            k.I(f"v_pk_add_f32 {v(r,2)}, {v(r,2)}, {v(t2+2*j,2)}")
        for j in range(4):
            r = acc + 8 * sidx + 2 * j
            k.I(f"v_cvt_pk_bf16_f32 {v(p0+j)}, {v(r)}, {v(r+1)}")
            k.I(f"v_pk_add_f32 {v(sm,2)}, {v(sm,2)}, {v(r,2)}")
            k.I(f"v_pk_fma_f32 {v(sq,2)}, {v(r,2)}, {v(r,2)}, {v(sq,2)}")
        k.I(f"buffer_store_dwordx4 {v(p0,4)}, {v(vB)}, {s(G.sWS,4)}, s{G.sT0} offen {ST}")
        k.I(f"s_add_u32 s{G.sT0}, s{G.sT0}, 1024")
    k.I("s_waitcnt vmcnt(9)")
    for j in range(36):
        k.I(f"v_dot2_f32_bf16 {v(st4+2+(j&1))}, {v(xr+j)}, {v(gw+j)}, {v(st4+2+(j&1))}")
    k.I(f"""
    v_add_f32 {v(st4)}, {v(sm)}, {v(sm+1)}
    v_add_f32 {v(st4+1)}, {v(sq)}, {v(sq+1)}
    v_add_f32 {v(st4+2)}, {v(st4+2)}, {v(st4+3)}
    """)
    for r in range(3): halfsum(k, st4 + r, t2 + r)
    k.I(f"""
    v_and_b32 {v(vT0)}, 31, {v(vL)}
    v_lshlrev_b32 {v(vT0)}, 6, {v(vT0)}
    s_lshl_b32 s{G.sT0}, s{G.sMT}, 11
    s_lshl_b32 s{G.sT1}, s{G.sCB}, 4
    s_add_u32 s{G.sT0}, s{G.sT0}, s{G.sT1}
    s_add_u32 s{G.sT0}, s{G.sT0}, {WS_ST}
    buffer_store_dwordx4 {v(st4,4)}, {v(vT0)}, {s(G.sWS,4)}, s{G.sT0} offen {ST}
    """)
    k.end(kidx)
    return lds

def emit_cs3(k, sID, kidx):
    k.v.next = 1
    vT0 = k.v.alloc(); vT1 = k.v.alloc(); vA = k.v.alloc()
    d = k.v.alloc(72, 4); ac = k.v.alloc(8, 4); t = k.v.alloc(8, 2)
    k.I(f"""
    s_load_dwordx2 s[38:39], s[0:1], {KA_W3}
    s_load_dwordx2 s[40:41], s[0:1], {KA_WS}
    s_and_b32 s{G.sT0}, s{sID}, 7
    s_mul_i32 s{G.sT0}, s{G.sT0}, 9
    s_lshr_b32 s{G.sT1}, s{sID}, 3
    s_add_u32 s{G.sCB}, s{G.sT0}, s{G.sT1}
    s_lshl_b32 s{G.sT0}, s{G.sCB}, 7
    v_lshrrev_b32 {v(vT0)}, 3, v0
    v_mul_u32_u24 {v(vT0)}, 9216, {v(vT0)}
    v_and_b32 {v(vT1)}, 7, v0
    v_lshl_add_u32 {v(vT0)}, {v(vT1)}, 4, {v(vT0)}
    s_waitcnt lgkmcnt(0)
    """)
    srd(k, G.sW, 38, D * F * 2); srd(k, G.sWS, 40, WS_SIZE)
    for i in range(18):
        k.I(f"buffer_load_dwordx4 {v(d+4*i,4)}, {v(vT0)}, {s(G.sW,4)}, s{G.sT0} offen")
        k.I(f"s_add_u32 s{G.sT0}, s{G.sT0}, {32*9216}")
    for j in range(8): k.I(f"v_mov_b32 {v(ac+j)}, 0")
    for i in range(18):
        k.I(f"s_waitcnt vmcnt({17-i})")
        for j in range(4):
            k.I(f"v_lshlrev_b32 {v(t+2*j)}, 16, {v(d+4*i+j)}")
            k.I(f"v_and_b32 {v(t+2*j+1)}, 0xffff0000, {v(d+4*i+j)}")
        for j in range(4):
            k.I(f"v_pk_add_f32 {v(ac+2*j,2)}, {v(ac+2*j,2)}, {v(t+2*j,2)}")
    k.I(f"""
    v_lshlrev_b32 {v(vA)}, 5, v0
    ds_write_b128 {v(vA)}, {v(ac,4)}
    ds_write_b128 {v(vA)}, {v(ac+4,4)} offset:16
    v_and_b32 {v(vA)}, 63, v0
    v_lshlrev_b32 {v(vA)}, 2, {v(vA)}
    s_waitcnt lgkmcnt(0)
    s_barrier
    """)
    for half in range(4):
        for i in range(8):
            k.I(f"ds_read_b32 {v(d+8*half+i)}, {v(vA)} offset:{256*(8*half+i)}")
        k.I("s_waitcnt lgkmcnt(0)")
    for i in range(1, 32):
        k.I(f"v_add_f32 {v(d)}, {v(d)}, {v(d+i)}")
    k.I(f"""
    v_and_b32 {v(t)}, 0xffff0000, {v(d)}
    v_sub_f32 {v(d)}, {v(d)}, {v(t)}
    v_and_b32 {v(t+1)}, 0xffff0000, {v(d)}
    v_sub_f32 {v(d)}, {v(d)}, {v(t+1)}
    v_lshrrev_b32 {v(t+2)}, 16, {v(t)}
    v_or_b32 {v(ac)}, {v(t+2)}, {v(t)}
    v_lshrrev_b32 {v(t+2)}, 16, {v(t+1)}
    v_or_b32 {v(ac+1)}, {v(t+2)}, {v(t+1)}
    v_lshrrev_b32 {v(t+2)}, 16, {v(d)}
    v_or_b32 {v(ac+2)}, {v(t+2)}, {v(t)}
    v_mov_b32 {v(ac+3)}, 0
    v_and_b32 {v(vT0)}, 0x13, v0
    v_and_b32 {v(vT1)}, 4, v0
    v_lshl_or_b32 {v(vT0)}, {v(vT1)}, 1, {v(vT0)}
    v_bfe_u32 {v(vT1)}, v0, 3, 1
    v_lshl_or_b32 {v(vT0)}, {v(vT1)}, 2, {v(vT0)}
    v_lshlrev_b32 {v(vT0)}, 3, {v(vT0)}
    v_bfe_u32 {v(vT1)}, v0, 5, 1
    v_lshl_add_u32 {v(vT0)}, {v(vT1)}, 9, {v(vT0)}
    s_lshl_b32 s{G.sT0}, s{G.sCB}, 10
    s_add_u32 s{G.sT0}, s{G.sT0}, {WS_CS3}
    buffer_store_dwordx2 {v(ac,2)}, {v(vT0)}, {s(G.sWS,4)}, s{G.sT0} offen {ST}
    buffer_store_dwordx2 {v(ac+2,2)}, {v(vT0)}, {s(G.sWS,4)}, s{G.sT0} offen offset:256 {ST}
    """)
    k.end(kidx)
    return 8192

def load_stats(k, st16, vL, vT0):
    k.I(f"""
    v_and_b32 {v(vT0)}, 31, {v(vL)}
    v_lshlrev_b32 {v(vT0)}, 6, {v(vT0)}
    s_lshl_b32 s{G.sT0}, s{G.sMT}, 11
    s_add_u32 s{G.sT0}, s{G.sT0}, {WS_ST}
    """)
    for c in range(4):
        k.I(f"buffer_load_dwordx4 {v(st16+4*c,4)}, {v(vT0)}, {s(G.sWS,4)}, s{G.sT0} offen offset:{16*c}")

def emit_w3(k, sID, kidx):
    k.v.next = 1
    NT, KPS, ND = 9, 2, 4
    vL = k.v.alloc(); vB = k.v.alloc(); vT0 = k.v.alloc(); vT1 = k.v.alloc(); vT2 = k.v.alloc()
    vWo = [k.v.alloc() for _ in range(5)]
    vR = k.v.alloc(2, 2); vN = vR + 1
    acc = k.v.alloc(144, 4)
    k.stamp(0)
    k.I(f"""
    s_load_dwordx2 s[38:39], s[0:1], {KA_W3}
    s_load_dwordx2 s[40:41], s[0:1], {KA_WS}
    """)
    common_ids(k, vL, vT0)
    k.I(f"""
    s_bfe_u32 s{G.sRB}, s{sID}, 0x40003
    s_and_b32 s{G.sCB}, s{sID}, 7
    s_lshl_b32 s{G.sCB}, s{G.sCB}, 1
    s_lshr_b32 s{G.sT0}, s{sID}, 7
    s_add_u32 s{G.sCB}, s{G.sCB}, s{G.sT0}
    s_lshl_b32 s{G.sMT}, s{G.sRB}, 2
    s_add_u32 s{G.sMT}, s{G.sMT}, s{G.sWV}
    s_mul_i32 s{G.sG}, s{G.sT0}, 9
    s_add_u32 s{G.sG}, s{G.sG}, s{G.sRB}
    s_cmp_ge_u32 s{G.sG}, 18
    s_cselect_b32 s{G.sT0}, 18, 0
    s_sub_u32 s{G.sG}, s{G.sG}, s{G.sT0}
    s_mul_i32 s{G.sT1}, s{G.sCB}, 576
    s_mov_b32 s{G.sWB}, 0
    s_mul_i32 s{G.sBB}, s{G.sMT}, {36*1024}
    s_add_u32 s{G.sBB}, s{G.sBB}, {WS_X1}
    v_lshlrev_b32 {v(vB)}, 4, {v(vL)}
    """)
    w_dma_offsets(k, NT, KPS, 9216, 36, vWo, vL, vT0, vT1, vT2, G.sT1)
    k.I("s_waitcnt lgkmcnt(0)")
    srd(k, G.sW, 38, D * F * 2); srd(k, G.sWS, 40, WS_SIZE)
    st16 = acc
    load_stats(k, st16, vL, vT0)
    CSOFF = 4 * 20480 - 2048
    cs4 = acc + 16
    k.I(f"""
    v_lshlrev_b32 {v(vT1)}, 4, v0
    v_mov_b32 {v(vT2)}, {hx(OOB)}
    v_cmp_gt_u32 vcc, 72, v0
    v_cndmask_b32 {v(vT2)}, {v(vT2)}, {v(vT1)}, vcc
    s_mul_i32 s{G.sT0}, s{G.sCB}, 1152
    s_add_u32 s{G.sT0}, s{G.sT0}, {WS_CS3}
    buffer_load_dwordx4 {v(cs4,4)}, {v(vT2)}, {s(G.sWS,4)}, s{G.sT0} offen
    """)
    csr = k.v.alloc(4, 4)
    def mid():
        for j in range(2):
            k.I(f"v_add_f32 {v(st16+j)}, {v(st16+j)}, {v(st16+4+j)}")
            k.I(f"v_add_f32 {v(st16+8+j)}, {v(st16+8+j)}, {v(st16+12+j)}")
        for j in range(2):
            k.I(f"v_add_f32 {v(st16+j)}, {v(st16+j)}, {v(st16+8+j)}")
        k.I(f"""
        v_mul_f32 {v(st16)}, {hx(f2u(1.0/576))}, {v(st16)}
        v_mul_f32 {v(st16+1)}, {hx(f2u(1.0/576))}, {v(st16+1)}
        v_fma_f32 {v(st16+1)}, -{v(st16)}, {v(st16)}, {v(st16+1)}
        v_max_f32 {v(st16+1)}, 0, {v(st16+1)}
        v_add_f32 {v(st16+1)}, {hx(f2u(1e-5))}, {v(st16+1)}
        v_rsq_f32 {v(vR)}, {v(st16+1)}
        v_mul_f32 {v(vN)}, {v(vR)}, {v(st16)}
        v_sub_f32 {v(vN)}, 0, {v(vN)}
        """)
        for j in range(4): k.I(f"v_mov_b32 {v(csr+j)}, {v(cs4+j)}")
    lds = gemm_main(k, NT, KPS, 18, ND, acc, vL, vB, vWo, 32 * 9216, True, mid=mid)
    cs = k.v.alloc(16, 4); tmp = k.v.alloc(16, 2); pk = k.v.alloc(16, 4); vK1 = k.v.alloc(2, 2); vA = k.v.alloc()
    k.I(f"""
    s_barrier
    v_lshlrev_b32 {v(vT1)}, 4, v0
    ds_write_b128 {v(vT1)}, {v(csr,4)}
    v_mov_b32 {v(vK1)}, {hx(f2u(GK1))}
    s_mov_b32 s{G.sC}, {hx(f2u(GK2))}
    v_lshrrev_b32 {v(vA)}, 5, {v(vL)}
    v_lshlrev_b32 {v(vA)}, 5, {v(vA)}
    s_mul_i32 s{G.sT0}, s{G.sMT}, 288
    s_mul_i32 s{G.sT1}, s{G.sCB}, 18
    s_add_u32 s{G.sT0}, s{G.sT0}, s{G.sT1}
    s_lshl_b32 s{G.sT0}, s{G.sT0}, 10
    s_add_u32 s{G.sT0}, s{G.sT0}, {WS_H}
    s_waitcnt lgkmcnt(0)
    s_barrier
    """)
    for t in range(NT):
        for q in range(4):
            k.I(f"ds_read_b128 {v(cs+4*q,4)}, {v(vA)} offset:{128*t + 64*(q//2) + 16*(q%2)}")
        k.I("s_waitcnt lgkmcnt(0)")
        for p in range(8):
            k.I(f"v_pk_mul_f32 {v(cs+2*p,2)}, {v(cs+2*p,2)}, {v(vR,2)} op_sel:[0,1] op_sel_hi:[1,1]")
        for p in range(8):
            r = acc + 16 * t + 2 * p
            k.I(f"v_pk_fma_f32 {v(r,2)}, {v(r,2)}, {v(vR,2)}, {v(cs+2*p,2)} op_sel_hi:[1,0,1]")
        p0 = pk + 8 * (t & 1)
        gelu_pairs(k, [(acc + 16 * t + 2 * p, p0 + p) for p in range(8)], vK1, G.sC, tmp)
        for e in range(2):
            k.I(f"buffer_store_dwordx4 {v(p0+4*e,4)}, {v(vB)}, {s(G.sWS,4)}, s{G.sT0} offen offset:{1024*e} {ST}")
        k.I(f"s_add_u32 s{G.sT0}, s{G.sT0}, 2048")
    k.end(kidx)
    return lds

def emit_w4(k, sID, kidx):
    k.v.next = 1
    vL = k.v.alloc(); vB = k.v.alloc(); vT0 = k.v.alloc(); vT1 = k.v.alloc(); vT2 = k.v.alloc()
    vWo = [k.v.alloc() for _ in range(5)]
    acc = k.v.alloc(80, 4)
    k.stamp(0)
    k.I(f"""
    s_load_dwordx2 s[38:39], s[0:1], {KA_W4}
    s_load_dwordx2 s[40:41], s[0:1], {KA_WS}
    """)
    common_ids(k, vL, vT0)
    k.I(f"""
    s_and_b32 s{G.sSP}, s{sID}, 3
    s_bfe_u32 s{G.sT0}, s{sID}, 0x10002
    s_bfe_u32 s{G.sRB}, s{sID}, 0x30003
    s_lshr_b32 s{G.sCB}, s{sID}, 6
    s_lshl_b32 s{G.sG}, s{G.sRB}, 1
    s_lshl_b32 s{G.sT1}, s{G.sCB}, 2
    s_add_u32 s{G.sG}, s{G.sG}, s{G.sT1}
    s_cmp_ge_u32 s{G.sG}, 18
    s_cselect_b32 s{G.sT1}, 18, 0
    s_sub_u32 s{G.sG}, s{G.sG}, s{G.sT1}
    s_lshl_b32 s{G.sT0}, s{G.sT0}, 3
    s_add_u32 s{G.sRB}, s{G.sRB}, s{G.sT0}
    s_lshl_b32 s{G.sMT}, s{G.sRB}, 2
    s_add_u32 s{G.sMT}, s{G.sMT}, s{G.sWV}
    s_mul_i32 s{G.sT1}, s{G.sCB}, 288
    s_mul_i32 s{G.sWB}, s{G.sSP}, {1152*1152}
    s_mul_i32 s{G.sBB}, s{G.sMT}, 288
    s_mul_i32 s{G.sT0}, s{G.sSP}, 72
    s_add_u32 s{G.sBB}, s{G.sBB}, s{G.sT0}
    s_lshl_b32 s{G.sBB}, s{G.sBB}, 10
    s_add_u32 s{G.sBB}, s{G.sBB}, {WS_H}
    v_lshlrev_b32 {v(vB)}, 4, {v(vL)}
    """)
    w_dma_offsets(k, 5, 4, 1152, 18, vWo, vL, vT0, vT1, vT2, G.sT1)
    k.I("s_waitcnt lgkmcnt(0)")
    srd(k, G.sW, 38, D * F * 2); srd(k, G.sWS, 40, WS_SIZE)
    lds = gemm_main(k, 5, 4, 18, 4, acc, vL, vB, vWo, 64 * 1152, True)
    pk = k.v.alloc(36, 4)
    k.I(f"""
    s_lshl_b32 s{G.sT0}, s{G.sSP}, 6
    s_add_u32 s{G.sT0}, s{G.sT0}, s{G.sMT}
    s_mul_i32 s{G.sT0}, s{G.sT0}, 36
    s_mul_i32 s{G.sT1}, s{G.sCB}, 9
    s_add_u32 s{G.sT0}, s{G.sT0}, s{G.sT1}
    s_lshl_b32 s{G.sT0}, s{G.sT0}, 10
    s_add_u32 s{G.sT0}, s{G.sT0}, {WS_PART}
    """)
    for sidx in range(9):
        for j in range(4):
            r = acc + 8 * sidx + 2 * j
            k.I(f"v_cvt_pk_bf16_f32 {v(pk+4*sidx+j)}, {v(r)}, {v(r+1)}")
        k.I(f"buffer_store_dwordx4 {v(pk+4*sidx,4)}, {v(vB)}, {s(G.sWS,4)}, s{G.sT0} offen {ST}")
        k.I(f"s_add_u32 s{G.sT0}, s{G.sT0}, 1024")
    k.end(kidx)
    return lds

def emit_fin(k, sID, kidx):
    k.v.next = 1
    vL = k.v.alloc(); vB = k.v.alloc(); vT0 = k.v.alloc(); vT1 = k.v.alloc(); vT2 = k.v.alloc()
    vWo = [k.v.alloc() for _ in range(5)]; vWo2 = [k.v.alloc() for _ in range(5)]
    vG = k.v.alloc(2, 2)
    acc = k.v.alloc(80, 4)
    k.stamp(0)
    k.I(f"""
    s_load_dwordx2 s[36:37], s[0:1], {KA_OUT}
    s_load_dwordx2 s[38:39], s[0:1], {KA_WO}
    s_load_dwordx2 s[40:41], s[0:1], {KA_WS}
    """)
    common_ids(k, vL, vT0)
    k.I(f"""
    s_and_b32 s{G.sRB}, s{sID}, 15
    s_lshr_b32 s{G.sCB}, s{sID}, 4
    s_lshl_b32 s{G.sMT}, s{G.sRB}, 2
    s_add_u32 s{G.sMT}, s{G.sMT}, s{G.sWV}
    s_mov_b32 s{G.sG}, 0
    s_mul_i32 s{G.sT1}, s{G.sCB}, 288
    s_mov_b32 s{G.sWB}, 0
    s_mul_i32 s{G.sBB}, s{G.sMT}, {36*1024}
    s_add_u32 s{G.sBB}, s{G.sBB}, {WS_O}
    v_lshlrev_b32 {v(vB)}, 4, {v(vL)}
    """)
    def map_main(r, t):
        k.I(f"v_lshrrev_b32 {v(t)}, 4, {v(r)}\nv_lshl_add_u32 {v(r)}, {v(t)}, 1, {v(r)}")
    def map_rem(r, t):
        k.I(f"v_lshrrev_b32 {v(t)}, 1, {v(r)}\nv_lshl_add_u32 {v(r)}, {v(t)}, 4, {v(r)}\nv_add_u32 {v(r)}, 16, {v(r)}")
    w_dma_offsets(k, 5, 4, 1152, 18, vWo, vL, vT0, vT1, vT2, G.sT1, rowmap=map_main)
    w_dma_offsets(k, 5, 4, 1152, 18, vWo2, vL, vT0, vT1, vT2, G.sT1, rowmap=map_rem)
    k.I("s_waitcnt lgkmcnt(0)")
    srd(k, G.sX, 36, S * D * 2); srd(k, G.sW, 38, D * D * 2); srd(k, G.sWS, 40, WS_SIZE)
    st16 = acc
    load_stats(k, st16, vL, vT0)
    def mid():
        k.I(f"""
        v_add_f32 {v(st16+2)}, {v(st16+2)}, {v(st16+6)}
        v_add_f32 {v(st16+10)}, {v(st16+10)}, {v(st16+14)}
        v_add_f32 {v(st16+2)}, {v(st16+2)}, {v(st16+10)}
        v_mul_f32 {v(st16+2)}, {hx(f2u(-LOG2E))}, {v(st16+2)}
        v_exp_f32 {v(st16+2)}, {v(st16+2)}
        v_add_f32 {v(st16+2)}, 1.0, {v(st16+2)}
        v_rcp_f32 {v(vG)}, {v(st16+2)}
        v_sub_f32 {v(vG+1)}, 1.0, {v(vG)}
        """)
    lds = gemm_main(k, 5, 4, 9, 4, acc, vL, vB, vWo, 72 * 1152, False, vWoLast=vWo2, mid=mid)
    ld = k.v.alloc(60, 4); t2 = k.v.alloc(8, 2); sm = k.v.alloc(8, 2); pk = k.v.alloc(8, 4)
    k.I(f"""
    s_mul_i32 s{G.sT0}, s{G.sMT}, 36
    s_mul_i32 s{G.sT1}, s{G.sCB}, 9
    s_add_u32 s{G.sT0}, s{G.sT0}, s{G.sT1}
    s_lshl_b32 s{G.sT0}, s{G.sT0}, 10
    s_add_u32 s50, s{G.sT0}, {WS_X1}
    s_add_u32 s51, s{G.sT0}, {WS_PART}
    s_add_u32 s52, s51, {64*36*1024}
    s_add_u32 s53, s52, {64*36*1024}
    s_add_u32 s54, s53, {64*36*1024}
    v_and_b32 {v(vT0)}, 31, {v(vL)}
    s_lshl_b32 s{G.sT0}, s{G.sMT}, 5
    v_add_u32 {v(vT0)}, s{G.sT0}, {v(vT0)}
    v_mul_u32_u24 {v(vT0)}, 1152, {v(vT0)}
    v_lshrrev_b32 {v(vT1)}, 5, {v(vL)}
    v_lshl_add_u32 {v(vT0)}, {v(vT1)}, 4, {v(vT0)}
    s_mul_i32 s{G.sT1}, s{G.sCB}, 288
    """)
    for c in range(3):
        for sx in range(3):
            for a_ in range(5):
                k.I(f"buffer_load_dwordx4 {v(ld+20*sx+4*a_,4)}, {v(vB)}, {s(G.sWS,4)}, s{50+a_} offen offset:{1024*sx}")
        for a_ in range(5): k.I(f"s_add_u32 s{50+a_}, s{50+a_}, 3072")
        for sx in range(3):
            sidx = 3 * c + sx
            k.I(f"s_waitcnt vmcnt({5*(2-sx) + sx})")
            for a_ in range(5):
                dst = sm if a_ == 0 else t2
                for j in range(4):
                    k.I(f"v_lshlrev_b32 {v(dst+2*j)}, 16, {v(ld+20*sx+4*a_+j)}")
                    k.I(f"v_and_b32 {v(dst+2*j+1)}, 0xffff0000, {v(ld+20*sx+4*a_+j)}")
                if a_:
                    for j in range(4):
                        k.I(f"v_pk_add_f32 {v(sm+2*j,2)}, {v(sm+2*j,2)}, {v(t2+2*j,2)}")
            p0 = pk + 4 * (sidx & 1)
            for j in range(4):
                k.I(f"v_pk_mul_f32 {v(sm+2*j,2)}, {v(sm+2*j,2)}, {v(vG,2)} op_sel:[0,1] op_sel_hi:[1,1]")
            for j in range(4):
                r = acc + 8 * sidx + 2 * j
                k.I(f"v_pk_fma_f32 {v(sm+2*j,2)}, {v(r,2)}, {v(vG,2)}, {v(sm+2*j,2)} op_sel_hi:[1,0,1]")
            for j in range(4):
                k.I(f"v_cvt_pk_bf16_f32 {v(p0+j)}, {v(sm+2*j)}, {v(sm+2*j+1)}")
            k.I(f"buffer_store_dwordx4 {v(p0,4)}, {v(vT0)}, {s(G.sX,4)}, s{G.sT1} offen offset:{32*sidx}")
    k.end(kidx)
    return lds

def simple(name, emit, n, kidx):
    k = Kern(name, vlimit=256)
    k.I(f"s_cmp_ge_u32 s2, {n}\ns_cbranch_scc1 L_{name}_exit")
    lds = emit(k, 2, kidx)
    k.L(f"L_{name}_exit"); k.I("s_endpgm")
    return k, (name, n, 256, lds)

def gen_k2(kidx):
    k = Kern("k2_kernel", vlimit=256)
    k.I(f"s_cmp_ge_u32 s2, {64+72}\ns_cbranch_scc1 L_k2_exit\ns_cmp_ge_u32 s2, 64\ns_cbranch_scc1 L_k2_cs")
    lds = emit_w2(k, 2, kidx)
    k.L("L_k2_cs")
    k.I("s_sub_u32 s3, s2, 64")
    emit_cs3(k, 3, kidx)
    k.L("L_k2_exit"); k.I("s_endpgm")
    return k, ("k2_kernel", 136, 256, lds)
```

```python
from common import *

NT = 5
WIMG = 16 * NT * 256
XIMG = 16384
SLOT = WIMG + XIMG
ND = 4
NPRO = 2
ST = "sc1"

def gen_k1(kidx=0):
    k = Kern("k1_kernel", vlimit=256)
    k.s.next = 40
    sX, sW, sWS = 4, 8, 12
    sRB, sCB, sWV, sROLE = 16, 17, 18, 19
    sCNT, sOW, sOX, sG, sDMA, sNXT, sLDW, sWSTEP, sT0, sT1 = 20, 21, 22, 23, 24, 25, 26, 27, 28, 29
    sC = 30
    sMT = 32
    sM0W, sM0X = 33, 34
    k.v.next = 1
    vL = k.v.alloc(); vT0 = k.v.alloc(); vT1 = k.v.alloc()
    vWo = [k.v.alloc() for _ in range(5)]
    vXo = [k.v.alloc() for _ in range(4)]
    vWa0 = k.v.alloc(); vXa0 = [k.v.alloc() for _ in range(4)]
    vWa = k.v.alloc(); vXa = [k.v.alloc() for _ in range(4)]
    acc = k.v.alloc(80, 4)
    Ab = [[k.v.alloc(4, 4) for t in range(NT)] for b in range(2)]
    Bb = [k.v.alloc(4, 4) for b in range(2)]
    vSum = k.v.alloc(2); vSq = k.v.alloc(2); vCs = k.v.alloc(5); vOnes = k.v.alloc(); vU = k.v.alloc(2)
    Lend = "L_k1_end"
    k.I(f"""
    s_cmp_ge_u32 s2, 256
    s_cbranch_scc1 {Lend}
    """)
    k.stamp(0)
    k.I(f"""
    s_load_dwordx4 s[36:39], s[0:1], {KA_X}
    s_load_dwordx2 s[40:41], s[0:1], {KA_W1}
    s_load_dwordx2 s[42:43], s[0:1], {KA_WS}
    v_and_b32 {v(vL)}, 63, v0
    v_lshrrev_b32 {v(vT0)}, 6, v0
    s_and_b32 s{sROLE}, s2, 3
    v_readfirstlane_b32 s{sWV}, {v(vT0)}
    s_bfe_u32 s{sT0}, s2, 0x10002
    s_bfe_u32 s{sRB}, s2, 0x30003
    s_lshl_b32 s{sT0}, s{sT0}, 3
    s_add_u32 s{sRB}, s{sRB}, s{sT0}
    s_lshr_b32 s{sCB}, s2, 6
    s_lshl_b32 s{sMT}, s{sRB}, 2
    s_add_u32 s{sMT}, s{sMT}, s{sWV}
    s_and_b32 s{sG}, s{sRB}, 7
    s_lshl_b32 s{sT0}, s{sCB}, 1
    s_add_u32 s{sG}, s{sG}, s{sT0}
    s_cmp_ge_u32 s{sG}, 9
    s_cselect_b32 s{sT0}, 9, 0
    s_sub_u32 s{sG}, s{sG}, s{sT0}
    ; weight matrix params: role 3 -> w1 (ld 1152), else wqkv (ld 3456, col base role*1152)
    s_cmp_eq_u32 s{sROLE}, 3
    s_mov_b32 s{sLDW}, 3456
    s_cselect_b32 s{sLDW}, 1152, s{sLDW}
    s_mul_i32 s{sT0}, s{sROLE}, 1152
    s_cselect_b32 s{sT0}, 0, s{sT0}
    s_mul_i32 s{sT1}, s{sCB}, 288
    s_add_u32 s{sT1}, s{sT1}, s{sT0}
    s_lshl_b32 s{sWSTEP}, s{sLDW}, 6
    """)
    for i in range(5):
        k.I(f"""
        s_mul_i32 s{sT0}, s{sWV}, 20
        s_add_u32 s{sT0}, s{sT0}, {4*i}
        v_lshrrev_b32 {v(vT0)}, 4, {v(vL)}
        v_add_u32 {v(vT0)}, s{sT0}, {v(vT0)}
        v_mul_u32_u24 {v(vT1)}, 0x3334, {v(vT0)}
        v_lshrrev_b32 {v(vT1)}, 16, {v(vT1)}
        v_mul_u32_u24 {v(vWa)}, 5, {v(vT1)}
        v_sub_u32 {v(vT0)}, {v(vT0)}, {v(vWa)}
        v_bfe_u32 {v(vWa)}, {v(vL)}, 2, 2
        v_lshl_add_u32 {v(vT1)}, {v(vT1)}, 2, {v(vWa)}
        v_mul_lo_u32 {v(vT1)}, {v(vT1)}, s{sLDW}
        v_and_b32 {v(vWa)}, 3, {v(vL)}
        v_lshl_add_u32 {v(vT0)}, {v(vT0)}, 2, {v(vWa)}
        v_cmp_gt_u32 vcc, 18, {v(vT0)}
        v_lshl_add_u32 {v(vT1)}, {v(vT0)}, 4, {v(vT1)}
        v_add_u32 {v(vT1)}, s{sT1}, {v(vT1)}
        v_mov_b32 {v(vT0)}, {hx(OOB)}
        v_cndmask_b32 {v(vWo[i])}, {v(vT0)}, {v(vT1)}, vcc
        """)
    for i in range(4):
        k.I(f"""
        v_lshrrev_b32 {v(vT0)}, 3, {v(vL)}
        v_add_u32 {v(vT0)}, {8*i}, {v(vT0)}
        v_bfe_u32 {v(vT1)}, {v(vT0)}, 1, 3
        v_xor_b32 {v(vT1)}, {v(vT1)}, {v(vL)}
        v_and_b32 {v(vT1)}, 7, {v(vT1)}
        s_lshl_b32 s{sT0}, s{sMT}, 5
        v_add_u32 {v(vT0)}, s{sT0}, {v(vT0)}
        v_mul_u32_u24 {v(vT0)}, 1152, {v(vT0)}
        v_lshl_add_u32 {v(vXo[i])}, {v(vT1)}, 4, {v(vT0)}
        """)
    k.I(f"""
    s_mul_i32 s{sM0W}, s{sWV}, 5120
    s_lshl_b32 s{sM0X}, s{sWV}, 12
    s_add_u32 s{sM0X}, s{sM0X}, {WIMG}
    s_mul_i32 s{sOW}, s{sG}, s{sWSTEP}
    s_lshl_b32 s{sOX}, s{sG}, 7
    s_mov_b32 s{sDMA}, 0
    s_waitcnt lgkmcnt(0)
    """)
    srd(k, sX, 36, S * D * 2)
    k.I(f"""
    s_cmp_eq_u32 s{sROLE}, 3
    s_cselect_b32 s{sW}, s40, s38
    s_cselect_b32 s{sW+1}, s41, s39
    s_mov_b32 s{sW+2}, {D*3*D*2}
    s_cselect_b32 s{sW+2}, {D*D*2}, s{sW+2}
    s_and_b32 s{sW+1}, s{sW+1}, 0xffff
    s_mov_b32 s{sW+3}, 0x00020000
    """)
    srd(k, sWS, 42, WS_SIZE)

    def dma_list():
        g = []
        for i in range(5):
            g.append((f"s_add_u32 m0, s{sT0}, {i*1024}", f"buffer_load_dwordx4 {v(vWo[i])}, {s(sW,4)}, s{sOW} offen lds"))
        for i in range(4):
            g.append((f"s_add_u32 m0, s{sT1}, {i*1024}", f"buffer_load_dwordx4 {v(vXo[i])}, {s(sX,4)}, s{sOX} offen lds"))
        return g
    dma_pre = f"s_add_u32 s{sT0}, s{sDMA}, s{sM0W}\ns_add_u32 s{sT1}, s{sDMA}, s{sM0X}"
    dma_post = f"""
    s_add_u32 s{sG}, s{sG}, 1
    s_cmp_eq_u32 s{sG}, 9
    s_cselect_b32 s{sG}, 0, s{sG}
    s_mul_i32 s{sOW}, s{sG}, s{sWSTEP}
    s_lshl_b32 s{sOX}, s{sG}, 7
    s_add_u32 s{sDMA}, s{sDMA}, {SLOT}
    s_cmp_eq_u32 s{sDMA}, {SLOT*ND}
    s_cselect_b32 s{sDMA}, 0, s{sDMA}
    """
    for st in range(NPRO):
        k.I(dma_pre)
        for m, ld in dma_list():
            k.I(m); k.I("s_nop 0"); k.I(ld)
        k.I(dma_post)
    k.I(f"""
    v_and_b32 {v(vT0)}, 31, {v(vL)}
    v_bfe_u32 {v(vT1)}, {v(vL)}, 1, 3
    v_lshrrev_b32 {v(vWa)}, 5, {v(vL)}
    v_xor_b32 {v(vT1)}, {v(vT1)}, {v(vWa)}
    v_lshlrev_b32 {v(vT1)}, 4, {v(vT1)}
    v_lshlrev_b32 {v(vT0)}, 7, {v(vT0)}
    v_add_u32 {v(vT0)}, s{sM0X}, {v(vT0)}
    """)
    for ks in range(4):
        k.I(f"v_xor_b32 {v(vXa0[ks])}, {32*ks}, {v(vT1)}")
        k.I(f"v_add_u32 {v(vXa0[ks])}, {v(vXa0[ks])}, {v(vT0)}")
    Lw1, Lv = "L_k1_w1", "L_k1_v"
    k.I(f"""
    s_cmp_eq_u32 s{sROLE}, 3
    s_cbranch_scc1 {Lw1}
    """)

    def reads(ks, buf):
        r = [f"ds_read_b128 {v(Bb[buf],4)}, {v(vXa[ks])}"]
        for t in range(NT):
            for rd in range(2):
                off = (4 * ks + rd) * NT * 256 + t * 256
                r.append(f"ds_read_b64_tr_b16 {v(Ab[buf][t]+2*rd,2)}, {v(vWa)} offset:{off}")
        return r
    def set_addr():
        r = [f"v_add_u32 {v(vWa)}, s{sNXT}, {v(vWa0)}"]
        for ks in range(4): r.append(f"v_add_u32 {v(vXa[ks])}, s{sNXT}, {v(vXa0[ks])}")
        r.append(f"s_add_u32 s{sNXT}, s{sNXT}, {SLOT}")
        r.append(f"s_cmp_eq_u32 s{sNXT}, {SLOT*ND}")
        r.append(f"s_cselect_b32 s{sNXT}, 0, s{sNXT}")
        return r
    def mfma(role, t, buf, first):
        c = "0" if first else v(acc + 16 * t, 16)
        if role == "v":
            return f"v_mfma_f32_32x32x16_bf16 {v(acc+16*t,16)}, {v(Bb[buf],4)}, {v(Ab[buf][t],4)}, {c}"
        return f"v_mfma_f32_32x32x16_bf16 {v(acc+16*t,16)}, {v(Ab[buf][t],4)}, {v(Bb[buf],4)}, {c}"
    def stats(t, buf):
        if t == 4: return []
        x = Bb[buf] + t
        return [f"v_lshlrev_b32 {v(vU)}, 16, {v(x)}", f"v_and_b32 {v(vU+1)}, 0xffff0000, {v(x)}",
                f"v_add_f32 {v(vSum)}, {v(vSum)}, {v(vU)}", f"v_add_f32 {v(vSum+1)}, {v(vSum+1)}, {v(vU+1)}",
                f"v_fmac_f32 {v(vSq)}, {v(vU)}, {v(vU)}", f"v_fmac_f32 {v(vSq+1)}, {v(vU+1)}, {v(vU+1)}"]
    def colsum(ks, buf):
        L = k.label("cs")
        k.I(f"s_cmp_lg_u32 s{sWV}, {ks}\ns_cbranch_scc1 {L}")
        for j in range(4):
            for t in range(NT):
                k.I(f"v_dot2_f32_bf16 {v(vCs+t)}, {v(Ab[buf][t]+j)}, {v(vOnes)}, {v(vCs+t)}")
        k.L(L)
    def stage(role, first, dma, vm, last):
        d = []
        for q in range(dma):
            dl = dma_list()
            dl[0] = ((dma_post + "\n" if q else "") + dma_pre + "\n" + dl[0][0], dl[0][1])
            d += dl
        every = (0, 2, 4) if dma <= 1 else (0, 1, 2, 3, 4, 5)
        for ks in range(4):
            buf = ks & 1
            if ks < 3:
                rd = reads(ks + 1, buf ^ 1)
                split = [3, 3, 3, 2, 0]
                issued = 0
                for t in range(NT):
                    k.I(f"s_waitcnt lgkmcnt({min(15, 2*(NT-1-t) + issued)})")
                    k.I(mfma(role, t, buf, first and ks == 0))
                    if d and t in every: k.I(d[0][0])
                    for x in rd[issued:issued + split[t]]: k.I(x)
                    issued += split[t]
                    if d and t in every:
                        k.I(d[0][1]); d.pop(0)
                        if t == 4 and dma > 1 and d:
                            k.I(d[0][0]); k.I(d[0][1]); d.pop(0)
                    if role == "w1":
                        for x in stats(t, buf): k.I(x)
                if role == "w1": colsum(ks, buf)
            else:
                if dma: k.I(dma_post)
                rd = [] if last else reads(0, buf ^ 1)
                split = [0, 0, 4, 4, 3]
                issued = 0
                for t in range(NT):
                    if t == 0: k.I(f"s_waitcnt lgkmcnt(8)")
                    if t == 1: k.I(f"s_waitcnt lgkmcnt(0)")
                    k.I(mfma(role, t, buf, False))
                    if t == 1 and not last:
                        for x in set_addr(): k.I(x)
                        k.I(f"s_waitcnt vmcnt({vm})")
                        k.I("s_barrier")
                    if not last:
                        for x in rd[issued:issued + split[t]]: k.I(x)
                        issued += split[t]
                    if role == "w1":
                        for x in stats(t, buf): k.I(x)
                if role == "w1": colsum(ks, buf)
        assert not d
    def mainloop(role):
        tr_lane_addr(k, vWa0, vL, vT0, vT1, 2 * NT * 256, perm=(role == "w1"))
        k.I(f"s_mov_b32 s{sNXT}, 0")
        if role == "w1":
            k.I(f"v_mov_b32 {v(vOnes)}, 0x3f803f80")
            for r in list(range(vSum, vSum + 2)) + list(range(vSq, vSq + 2)) + list(range(vCs, vCs + 5)):
                k.I(f"v_mov_b32 {v(r)}, 0")
        for x in set_addr(): k.I(x)
        k.stamp(1)
        k.I(f"s_waitcnt vmcnt({9*(NPRO-1)})")
        k.I("s_barrier")
        k.stamp(2); k.cstamp(4)
        for x in reads(0, 0): k.I(x)
        stage(role, True, ND - NPRO, 18, False)
        k.I(f"s_mov_b32 s{sCNT}, 5")
        Lp = f"L_k1_loop_{role}"
        k.I(".p2align 3")
        k.L(Lp)
        stage(role, False, 1, 18, False)
        k.I(f"s_sub_u32 s{sCNT}, s{sCNT}, 1\ns_cmp_lg_u32 s{sCNT}, 0\ns_cbranch_scc1 {Lp}")
        stage(role, False, 0, 9, False)
        stage(role, False, 0, 0, False)
        stage(role, False, 0, None, True)
        k.stamp(3); k.cstamp(5)

    mark = k.v.mark()
    k.I(f"s_cmp_eq_u32 s{sROLE}, 2\ns_cbranch_scc1 {Lv}")
    mainloop("qk")
    pk = k.v.alloc(40, 4)
    vO1 = k.v.alloc(); vO2 = k.v.alloc(); vO3 = k.v.alloc()
    k.I(f"""
    s_cmp_eq_u32 s{sROLE}, 0
    s_cselect_b32 s{sC}, {hx(f2u(QSCALE))}, 1.0
    v_lshlrev_b32 {v(vO1)}, 4, {v(vL)}
    v_and_b32 {v(vO2)}, 31, {v(vL)}
    v_lshlrev_b32 {v(vO2)}, 2, {v(vO2)}
    v_lshrrev_b32 {v(vT0)}, 5, {v(vL)}
    v_mul_u32_u24 {v(vT1)}, {3*8192}, {v(vT0)}
    v_add_u32 {v(vO3)}, {v(vO2)}, {v(vT1)}
    v_lshl_add_u32 {v(vO2)}, {v(vT0)}, 13, {v(vO2)}
    v_cmp_lt_u32 vcc, 31, {v(vL)}
    s_lshl_b32 s{sT0}, s{sCB}, 9
    s_add_u32 s{sT0}, s{sT0}, s{sMT}
    s_lshl_b32 s{sT1}, s{sT0}, 7
    s_lshl_b32 s{sT0}, s{sT0}, 10
    s_lshl_b32 s{sG}, s{sROLE}, 21
    s_add_u32 s{sT0}, s{sT0}, s{sG}
    s_lshl_b32 s{sG}, s{sROLE}, 18
    s_add_u32 s{sT1}, s{sT1}, s{sG}
    s_add_u32 s{sT1}, s{sT1}, {WS_QX}
    """)
    for g in range(2):
        base = pk + 20 * g
        M = [base, base + 4, base + 8, base + 12]
        tA, tB, tC, tD = base + 16, base + 17, base + 18, base + 19
        dst = {0: M[0], 1: M[0] + 1, 2: M[0] + 2, 3: M[0] + 3, 4: tA, 5: M[1] + 1, 6: M[1] + 2, 7: M[1] + 3,
               8: tB, 9: tC, 10: M[2], 11: M[2] + 1, 12: M[2] + 2, 13: tD, 14: M[3], 15: M[3] + 1, 16: M[3] + 2, 17: M[3] + 3}
        for w in range(18):
            r = acc + 2 * (18 * g + w)
            k.I(f"v_pk_mul_f32 {v(r,2)}, {v(r,2)}, {s(sC,2)} op_sel_hi:[1,0]")
        for w in range(18):
            r = acc + 2 * (18 * g + w)
            k.I(f"v_cvt_pk_bf16_f32 {v(dst[w])}, {v(r)}, {v(r+1)}")
        k.I(f"v_cndmask_b32 {v(M[1])}, {v(tB)}, {v(tA)}, vcc")
        k.I(f"v_cndmask_b32 {v(M[2]+3)}, {v(tD)}, {v(tB)}, vcc")
        k.I(f"v_cndmask_b32 {v(tA)}, {v(tA)}, {v(tD)}, vcc")
        for i in range(4):
            k.I(f"buffer_store_dwordx4 {v(M[i],4)}, {v(vO1)}, {s(sWS,4)}, s{sT0} offen {ST}")
            k.I(f"s_add_u32 s{sT0}, s{sT0}, 65536")
        k.I(f"buffer_store_dword {v(tA)}, {v(vO3)}, {s(sWS,4)}, s{sT1} offen {ST}")
        k.I(f"s_add_u32 s{sT1}, s{sT1}, 8192")
        k.I(f"buffer_store_dword {v(tC)}, {v(vO2)}, {s(sWS,4)}, s{sT1} offen {ST}")
        k.I(f"s_add_u32 s{sT1}, s{sT1}, {3*8192}")
    k.end(kidx)
    k.v.reset(mark)
    k.L(Lv)
    mainloop("v")
    pk = k.v.alloc(40, 4)
    vO = [k.v.alloc() for _ in range(5)]
    k.I(f"""
    s_lshl_b32 s{sT0}, s{sCB}, 10
    s_lshl_b32 s{sT1}, s{sMT}, 1
    s_add_u32 s{sT0}, s{sT0}, s{sT1}
    s_mul_i32 s{sT0}, s{sT0}, {VT_STEP}
    s_add_u32 s{sT0}, s{sT0}, {WS_VT}
    s_mov_b32 s{sT1}, {128*VT_STEP}
    v_lshrrev_b32 {v(vWa)}, 5, {v(vL)}
    v_mul_u32_u24 {v(vWa)}, 304, {v(vWa)}
    """)
    for t in range(NT):
        k.I(f"""
        v_and_b32 {v(vT0)}, 31, {v(vL)}
        v_add_u32 {v(vT0)}, {32*t}, {v(vT0)}
        v_mul_u32_u24 {v(vT1)}, 3641, {v(vT0)}
        v_lshrrev_b32 {v(vT1)}, 16, {v(vT1)}
        v_mul_u32_u24 {v(vO[t])}, 18, {v(vT1)}
        v_sub_u32 {v(vO[t])}, {v(vT0)}, {v(vO[t])}
        """)
        if t == 4:
            k.I(f"""
            v_cmp_lt_u32 vcc, 143, {v(vT0)}
            v_subrev_u32 {v(vXa[0])}, 144, {v(vT0)}
            v_cndmask_b32 {v(vT1)}, {v(vT1)}, {v(vXa[0])}, vcc
            v_mov_b32 {v(vXa[0])}, 18
            v_cndmask_b32 {v(vO[t])}, {v(vO[t])}, {v(vXa[0])}, vcc
            """)
        k.I(f"""
        v_mul_lo_u32 {v(vT1)}, {v(vT1)}, s{sT1}
        v_lshl_add_u32 {v(vO[t])}, {v(vO[t])}, 4, {v(vT1)}
        v_add_u32 {v(vO[t])}, {v(vO[t])}, {v(vWa)}
        """)
        if t == 4:
            k.I(f"""
            v_cmp_lt_u32 s[44:45], 151, {v(vT0)}
            v_mov_b32 {v(vXa[0])}, {hx(OOB)}
            v_cndmask_b32 {v(vO[t])}, {v(vO[t])}, {v(vXa[0])}, s[44:45]
            v_mov_b32 {v(vXa[1])}, 0x3f803f80
            """.replace("v_cmp_lt_u32 s[44:45], 151,", f"s_mov_b32 s46, 151\nv_cmp_lt_u32 s[44:45], s46,"))
    for t in range(NT):
        for j in range(8):
            k.I(f"v_cvt_pk_bf16_f32 {v(pk+8*t+j)}, {v(acc+16*t+2*j)}, {v(acc+16*t+2*j+1)}")
        if t == 4:
            for j in range(8):
                k.I(f"v_cndmask_b32 {v(pk+8*t+j)}, {v(pk+8*t+j)}, {v(vXa[1])}, vcc")
        k.I(f"buffer_store_dwordx4 {v(pk+8*t,4)}, {v(vO[t])}, {s(sWS,4)}, s{sT0} offen {ST}")
        k.I(f"buffer_store_dwordx4 {v(pk+8*t+4,4)}, {v(vO[t])}, {s(sWS,4)}, s{sT0} offen offset:{VT_STEP} {ST}")
    k.end(kidx)
    k.v.reset(mark)
    k.L(Lw1)
    mainloop("w1")
    cs = k.v.alloc(16, 4); tmp = k.v.alloc(16, 2); pk = k.v.alloc(8, 4)
    vR = k.v.alloc(2); vN = k.v.alloc(2); vK1 = k.v.alloc(2); vO = k.v.alloc(); vA = k.v.alloc()
    k.I(f"""
    v_add_f32 {v(vSum)}, {v(vSum)}, {v(vSum+1)}
    v_add_f32 {v(vSq)}, {v(vSq)}, {v(vSq+1)}
    v_mov_b32 {v(vSum+1)}, {v(vSum)}
    v_mov_b32 {v(vSq+1)}, {v(vSq)}
    v_permlane32_swap_b32 {v(vSum)}, {v(vSum+1)}
    v_permlane32_swap_b32 {v(vSq)}, {v(vSq+1)}
    v_add_f32 {v(vSum)}, {v(vSum)}, {v(vSum+1)}
    v_add_f32 {v(vSq)}, {v(vSq)}, {v(vSq+1)}
    s_barrier
    """)
    k.I(f"v_and_b32 {v(vA)}, 31, {v(vL)}\nv_lshlrev_b32 {v(vA)}, 2, {v(vA)}\ns_lshl_b32 s{sT0}, s{sWV}, 10\nv_add_u32 {v(vA)}, s{sT0}, {v(vA)}")
    for t in range(NT):
        k.I(f"v_mov_b32 {v(tmp+t)}, {v(vCs+t)}")
    for t in range(NT):
        k.I(f"v_permlane32_swap_b32 {v(tmp+t)}, {v(vCs+t)}")
    for t in range(NT):
        k.I(f"v_add_f32 {v(tmp+t)}, {v(tmp+t)}, {v(vCs+t)}")
    for t in range(NT):
        k.I(f"ds_write_b32 {v(vA)}, {v(tmp+t)} offset:{128*t}")
    k.I(f"""
    v_mul_f32 {v(vSum)}, {hx(f2u(1.0/576))}, {v(vSum)}
    v_mul_f32 {v(vSq)}, {hx(f2u(1.0/576))}, {v(vSq)}
    v_fma_f32 {v(vSq)}, -{v(vSum)}, {v(vSum)}, {v(vSq)}
    v_max_f32 {v(vSq)}, 0, {v(vSq)}
    v_add_f32 {v(vSq)}, {hx(f2u(1e-5))}, {v(vSq)}
    v_rsq_f32 {v(vR)}, {v(vSq)}
    s_lshr_b32 s{sT0}, s{sCB}, 1
    s_add_u32 s{sT0}, s{sT0}, 1
    s_sub_u32 s{sT1}, 0, s{sT0}
    s_bitcmp1_b32 s{sCB}, 0
    s_cselect_b32 s{sT0}, s{sT1}, s{sT0}
    s_lshl_b32 s{sT1}, s{sMT}, 5
    s_add_u32 s{sT0}, s{sT0}, s{sT1}
    v_and_b32 {v(vT0)}, 31, {v(vL)}
    v_add_u32 {v(vT0)}, s{sT0}, {v(vT0)}
    s_mov_b32 s{sT1}, 2048
    v_cmp_gt_u32 vcc, s{sT1}, {v(vT0)}
    v_and_b32 {v(vT0)}, 2047, {v(vT0)}
    v_cndmask_b32 {v(vR)}, 0, {v(vR)}, vcc
    v_mul_f32 {v(vN)}, {v(vR)}, {v(vSum)}
    v_sub_f32 {v(vN)}, 0, {v(vN)}
    v_lshrrev_b32 {v(vT1)}, 5, {v(vT0)}
    v_mul_u32_u24 {v(vT1)}, {36*1024}, {v(vT1)}
    v_and_b32 {v(vT0)}, 31, {v(vT0)}
    v_and_b32 {v(vO)}, 32, {v(vL)}
    v_add_u32 {v(vT0)}, {v(vT0)}, {v(vO)}
    v_lshl_add_u32 {v(vO)}, {v(vT0)}, 4, {v(vT1)}
    s_mul_i32 s{sT0}, s{sCB}, {9*1024}
    s_add_u32 s{sT0}, s{sT0}, {WS_HS}
    v_mov_b32 {v(vK1)}, {hx(f2u(GK1))}
    s_mov_b32 s{sC}, {hx(f2u(GK2))}
    v_lshrrev_b32 {v(vA)}, 5, {v(vL)}
    v_lshlrev_b32 {v(vA)}, 4, {v(vA)}
    v_lshlrev_b32 {v(vT0)}, 2, v0
    s_waitcnt lgkmcnt(0)
    s_barrier
    ds_read_b32 {v(tmp)}, {v(vT0)}
    ds_read_b32 {v(tmp+1)}, {v(vT0)} offset:1024
    ds_read_b32 {v(tmp+2)}, {v(vT0)} offset:2048
    ds_read_b32 {v(tmp+3)}, {v(vT0)} offset:3072
    s_waitcnt lgkmcnt(0)
    v_add_f32 {v(tmp)}, {v(tmp)}, {v(tmp+1)}
    v_add_f32 {v(tmp+2)}, {v(tmp+2)}, {v(tmp+3)}
    v_add_f32 {v(tmp)}, {v(tmp)}, {v(tmp+2)}
    ds_write_b32 {v(vT0)}, {v(tmp)} offset:4096
    s_waitcnt lgkmcnt(0)
    s_barrier
    """)
    csall = Ab[0][0]
    for t in range(NT):
        nq = 4 if t < 4 else 2
        if t == 0:
            for q in range(nq):
                k.I(f"ds_read_b128 {v(cs+4*q,4)}, {v(vA)} offset:{4096+128*t+32*q}")
        cs, csall = (cs, csall)
        if t + 1 < NT:
            for q in range(4 if t + 1 < 4 else 2):
                k.I(f"ds_read_b128 {v(csall+4*q,4)}, {v(vA)} offset:{4096+128*(t+1)+32*q}")
            k.I(f"s_waitcnt lgkmcnt({4 if t + 1 < 4 else 2})")
        else:
            k.I("s_waitcnt lgkmcnt(0)")
        for p in range(2 * nq):
            k.I(f"v_pk_mul_f32 {v(cs+2*p,2)}, {v(cs+2*p,2)}, {v(vN,2)} op_sel_hi:[1,0]")
        for p in range(2 * nq):
            r = acc + 16 * t + 2 * p
            k.I(f"v_pk_fma_f32 {v(r,2)}, {v(r,2)}, {v(vR,2)}, {v(cs+2*p,2)} op_sel_hi:[1,0,1]")
        gelu_pairs(k, [(acc + 16 * t + 2 * p, pk + p) for p in range(2 * nq)], vK1, sC, tmp)
        for e in range(nq // 2):
            k.I(f"buffer_store_dwordx4 {v(pk+4*e,4)}, {v(vO)}, {s(sWS,4)}, s{sT0} offen offset:{1024*e} {ST}")
        k.I(f"s_add_u32 s{sT0}, s{sT0}, 2048")
        cs, csall = csall, cs
    k.end(kidx)
    k.L(Lend)
    k.I("s_endpgm")
    return k, ("k1_kernel", 256, 256, SLOT * ND)

if __name__ == "__main__":
    import sys
    STAMP[0] = len(sys.argv) > 1
    kk, l = gen_k1()
    open("k1.s", "w").write(build([kk], [l]))
    print("vgprs", kk.v.hi)
```

```python
from common import *
from gemm import G
import attn, sync, small, w3f, w4m
from sync import WS_CNT, C1, C2, C3, CA

def gen_mega(kidx, prio="0000"):
    k = Kern("mega_kernel", vlimit=256)
    k.I("s_cmp_ge_u32 s2, 512\ns_cbranch_scc1 L_mega_exit\ns_cmp_ge_u32 s2, 256\ns_cbranch_scc1 L_mega_b")
    if prio[0] != "0": k.I(f"s_setprio {prio[0]}")
    attn.emit_attn(k, 2, kidx, pfx="ma", rounds=2, sig=True)
    k.L("L_mega_b")
    k.stamp(0)
    sP = 60
    sCN = 56
    k.I(f"""
    s_load_dwordx2 s[36:37], s[0:1], {KA_X}
    s_load_dwordx2 s[38:39], s[0:1], {KA_W2}
    s_load_dwordx2 s[40:41], s[0:1], {KA_WS}
    s_load_dwordx2 s[42:43], s[0:1], {KA_GATE}
    s_load_dwordx4 s[60:63], s[0:1], {KA_W3}
    s_load_dwordx2 s[64:65], s[0:1], {KA_WO}
    s_load_dwordx2 s[66:67], s[0:1], {KA_OUT}
    v_lshrrev_b32 v1, 6, v0
    v_readfirstlane_b32 s{G.sWV}, v1
    s_setprio {prio[1]}
    """)
    w3f.ids_b(k, 2)
    k.I("s_waitcnt lgkmcnt(0)")
    srd(k, G.sWS, 40, WS_SIZE)
    st = STAMP[0]; STAMP[0] = False
    small.emit_w2s(k)
    STAMP[0] = st
    k.I(f"s_lshl_b32 s{sCN}, s{G.sRB}, 7\ns_add_u32 s{sCN}, s{sCN}, {WS_CNT + 128*C1}")
    k.I("s_waitcnt vmcnt(0)\ns_barrier")
    sync.signal(k, G.sWS, G.sWV, sCN, 2)
    k.stamp(1)
    k.I(f"s_mov_b32 s38, s60\ns_mov_b32 s39, s61\ns_setprio {prio[2]}")
    STAMP[0] = False
    def st2():
        STAMP[0] = st; k.stamp(2); STAMP[0] = False
    w3f.emit_w3f(k, poll=lambda vt: sync.poll(k, G.sWS, G.sWV, sCN, 16, vt, 57), after_sync=st2)
    STAMP[0] = st
    k.I(f"""
    s_lshl_b32 s{sCN}, s{G.sRB}, 2
    s_lshr_b32 s{G.sT0}, s{G.sCB}, 2
    s_add_u32 s{sCN}, s{sCN}, s{G.sT0}
    s_lshl_b32 s{sCN}, s{sCN}, 7
    s_add_u32 s{sCN}, s{sCN}, {WS_CNT + 128*C2}
    s_waitcnt vmcnt(0)
    s_barrier
    """)
    sync.signal(k, G.sWS, G.sWV, sCN, 2)
    k.stamp(3)
    k.I(f"s_mov_b32 s38, s62\ns_mov_b32 s39, s63\ns_setprio {prio[3]}")
    w4m.emit_w4m(k, poll=lambda vt: sync.poll(k, G.sWS, G.sWV, sCN, 4, vt, 57))
    k.I(f"""
    s_setprio 3
    s_mov_b32 s36, s66
    s_mov_b32 s37, s67
    s_mov_b32 s38, s64
    s_mov_b32 s39, s65
    s_lshl_b32 s{sCN}, s{G.sRB}, 2
    s_and_b32 s{G.sT0}, s{G.sCB}, 3
    s_add_u32 s{sCN}, s{sCN}, s{G.sT0}
    s_lshl_b32 s{sCN}, s{sCN}, 7
    s_add_u32 s{sCN}, s{sCN}, {WS_CNT + 128*C3}
    s_lshl_b32 s55, s{G.sRB}, 7
    s_add_u32 s55, s55, {WS_CNT + 128*CA}
    """)
    def pre(sm):
        k.I("s_waitcnt vmcnt(0)\ns_barrier")
        sync.signal(k, G.sWS, G.sWV, sCN, sm.acc)
        sync.poll(k, G.sWS, G.sWV, 55, 32, sm.acc, 57)
        sm.prefetch()
    def syncA(vt):
        k.I("s_barrier")
        STAMP[0] = st; k.stamp(6); STAMP[0] = False
    STAMP[0] = False
    small.emit_fins(k, pre=pre, syncA=syncA, syncP=lambda vt: sync.poll(k, G.sWS, G.sWV, sCN, 4, vt, 57))
    STAMP[0] = st
    k.end(kidx)
    k.L("L_mega_exit"); k.I("s_endpgm")
    return k, ("mega_kernel", 512, 256, 81920)

def gen_init(kidx):
    import gemm
    k = Kern("cs_kernel", vlimit=256)
    k.I(f"""
    s_cmp_ge_u32 s2, 72
    s_cbranch_scc1 L_cs_exit
    s_load_dwordx2 s[40:41], s[0:1], {KA_WS}
    v_lshlrev_b32 v1, 7, v0
    v_mov_b32 v2, 0
    s_waitcnt lgkmcnt(0)
    """)
    srd(k, G.sWS, 40, WS_CNT + 128 * sync.NCNT)
    k.I(f"s_mov_b32 s20, {WS_CNT}\nbuffer_store_dword v2, v1, {s(G.sWS,4)}, s20 offen sc1\ns_waitcnt vmcnt(0)")
    gemm.emit_cs3(k, 2, kidx)
    k.L("L_cs_exit"); k.I("s_endpgm")
    return k, ("cs_kernel", 72, 256, 8192)
```

```python
from common import *
from gemm import G
ST = "sc1"
LD = "sc1"

class Small:
    def __init__(self, k, wo):
        self.k = k; self.wo = wo
        self.vWo = [k.v.alloc() for _ in range(5)]
        self.vWr = [k.v.alloc() for _ in range(5)] if wo else None
        self.vWa = k.v.alloc(); self.vB = k.v.alloc()
        self.acc = k.v.alloc(80, 4)
        self.Ab = [[k.v.alloc(4, 4) for t in range(5)] for b in range(2)]
        self.Bf = [k.v.alloc(4, 4) for _ in range(9)]
        self.vm = []
    def allowed(self, tags):
        last = max(i for i, t in enumerate(self.vm) if t in tags)
        return len(self.vm) - 1 - last
    def setup(self, sCOL):
        k = self.k
        vL, t0, t1, t2 = self.acc, self.acc + 1, self.acc + 2, self.acc + 3
        k.I(f"v_and_b32 {v(vL)}, 63, v0\nv_lshlrev_b32 {v(self.vB)}, 4, {v(vL)}")
        for i in range(5):
            k.I(f"""
            v_lshrrev_b32 {v(t0)}, 4, {v(vL)}
            v_add_u32 {v(t0)}, {4*i}, {v(t0)}
            v_mul_u32_u24 {v(t1)}, 13108, {v(t0)}
            v_lshrrev_b32 {v(t1)}, 16, {v(t1)}
            v_mul_u32_u24 {v(t2)}, 5, {v(t1)}
            v_sub_u32 {v(t0)}, {v(t0)}, {v(t2)}
            v_bfe_u32 {v(t2)}, {v(vL)}, 2, 2
            v_lshl_add_u32 {v(t1)}, {v(t1)}, 2, {v(t2)}
            v_and_b32 {v(t2)}, 3, {v(vL)}
            v_lshl_add_u32 {v(t0)}, {v(t0)}, 2, {v(t2)}
            v_cmp_gt_u32 vcc, 18, {v(t0)}
            v_lshlrev_b32 {v(t0)}, 4, {v(t0)}
            v_mov_b32 {v(t2)}, {hx(OOB)}
            v_cndmask_b32 {v(t0)}, {v(t2)}, {v(t0)}, vcc
            v_mul_u32_u24 {v(t2)}, 1152, {v(t1)}
            v_add_u32 {v(self.vWo[i])}, {v(t0)}, {v(t2)}
            """)
            if self.wo:
                k.I(f"""
                v_lshrrev_b32 {v(t2)}, 1, {v(t1)}
                v_lshl_add_u32 {v(t1)}, {v(t2)}, 4, {v(t1)}
                v_add_u32 {v(t1)}, 16, {v(t1)}
                v_mul_u32_u24 {v(t2)}, 1152, {v(t1)}
                v_add_u32 {v(self.vWr[i])}, {v(t0)}, {v(t2)}
                """)
        k.I(f"""
        s_mul_i32 s{G.sM0}, s{G.sWV}, 20480
        s_mul_i32 s{G.sWB}, s{G.sWV}, {144*1152}
        s_add_u32 s{G.sWB}, s{G.sWB}, s{sCOL}
        """)
        tr_lane_addr(k, self.vWa, vL, t0, t1, 2 * 5 * 256, perm=True)
        k.I(f"v_add_u32 {v(self.vWa)}, s{G.sM0}, {v(self.vWa)}")
    def dma(self, c):
        k = self.k
        rem = self.wo and c == 8
        rows = 0 if rem else (18 if self.wo else 16) * c
        k.I(f"s_add_u32 s{G.sOW}, s{G.sWB}, {rows*1152}")
        for i in range(5):
            k.I(f"s_add_u32 m0, s{G.sM0}, {(c%4)*5120 + i*1024}")
            k.I(f"buffer_load_dwordx4 {v((self.vWr if rem else self.vWo)[i])}, {s(G.sW,4)}, s{G.sOW} offen lds")
            self.vm.append(("w", c))
    def prefetch(self):
        for c in range(4): self.dma(c)
    def load_b(self, sBASE):
        k = self.k
        if self.wo:
            k.I(f"s_lshl_b32 s{G.sOB}, s{G.sWV}, 13\ns_add_u32 s{G.sOB}, s{G.sOB}, s{sBASE}")
        else:
            k.I(f"s_mul_i32 s{G.sOB}, s{G.sWV}, 9216\ns_add_u32 s{G.sOB}, s{G.sOB}, s{sBASE}")
        for c in range(9):
            if c == 4: k.I(f"s_add_u32 s{G.sOB}, s{G.sOB}, 4096")
            if c == 8:
                if self.wo: k.I(f"s_lshl_b32 s{G.sOB}, s{G.sWV}, 10\ns_add_u32 s{G.sOB}, s{G.sOB}, s{sBASE}\ns_add_u32 s{G.sOB}, s{G.sOB}, 32768")
                else: k.I(f"s_add_u32 s{G.sOB}, s{G.sOB}, 4096")
            k.I(f"buffer_load_dwordx4 {v(self.Bf[c],4)}, {v(self.vB)}, {s(G.sWS,4)}, s{G.sOB} offen offset:{1024*(c%4)} {LD}")
            self.vm.append(("b", c))
    def reads(self, c):
        for t in range(5):
            for rd in range(2):
                self.k.I(f"ds_read_b64_tr_b16 {v(self.Ab[c&1][t]+2*rd,2)}, {v(self.vWa)} offset:{(c%4)*5120 + rd*1280 + t*256}")
    def main(self):
        k = self.k
        k.I(f"s_waitcnt vmcnt({self.allowed([('w',0)])})")
        self.reads(0)
        for c in range(9):
            if c + 1 < 9:
                k.I(f"s_waitcnt vmcnt({self.allowed([('w',c+1), ('b',c)])})")
                self.reads(c + 1)
                k.I("s_waitcnt lgkmcnt(10)")
            else:
                k.I(f"s_waitcnt vmcnt({self.allowed([('b',c)])}) lgkmcnt(0)")
            for t in range(5):
                a = self.acc + 16 * t
                k.I(f"v_mfma_f32_32x32x16_bf16 {v(a,16)}, {v(self.Ab[c&1][t],4)}, {v(self.Bf[c],4)}, {'0' if c == 0 else v(a,16)}")
                if t == 0 and c + 4 < 9: self.dma(c + 4)
    def reduce_write(self):
        k = self.k
        t = self.vWa
        k.I(f"s_mul_i32 s{G.sT0}, s{G.sWV}, 18432\nv_add_u32 {v(t)}, s{G.sT0}, {v(self.vB)}\ns_barrier")
        for b in range(9):
            for h in range(2):
                k.I(f"ds_write_b128 {v(t)}, {v(self.acc+8*b+4*h,4)} offset:{2048*b+1024*h}")
        k.I("s_waitcnt lgkmcnt(0)\ns_barrier")
    def map_rows(self, vAF, vRM, vT):
        k = self.k
        k.I(f"""
        v_and_b32 {v(vT)}, 7, v0
        s_lshl_b32 s{G.sT0}, s{G.sWV}, 3
        v_add_u32 {v(vT)}, s{G.sT0}, {v(vT)}
        v_mul_u32_u24 {v(vRM)}, 1152, {v(vT)}
        v_lshlrev_b32 {v(vAF)}, 4, {v(vT)}
        v_bfe_u32 {v(vT)}, v0, 3, 3
        v_lshl_add_u32 {v(vRM)}, {v(vT)}, 4, {v(vRM)}
        v_lshl_add_u32 {v(vAF)}, {v(vT)}, 9, {v(vAF)}
        """)
    def reduce_read(self, vAF, dst, vT):
        k = self.k
        k.I(f"v_and_b32 {v(vT)}, 0xc00, {v(vAF)}\nv_add_u32 {v(vT)}, {v(vT)}, {v(vAF)}")
        sc = self.acc
        for sl in range(3):
            for w in range(4):
                for h in range(2):
                    d = dst + 8 * sl + 4 * h if w == 0 else sc + 24 * sl + 8 * (w - 1) + 4 * h
                    k.I(f"ds_read_b128 {v(d,4)}, {v(vT)} offset:{min(18432*w + 8192*sl + 1024*h, 65535) if 18432*w + 8192*sl + 1024*h < 65536 else 0}"
                        if 18432 * w + 8192 * sl + 1024 * h < 65536 else
                        f"ds_read_b128 {v(d,4)}, {v(vT+1)} offset:{18432*w + 8192*sl + 1024*h - 32768}")
            if sl == 0:
                k.I(f"v_add_u32 {v(vT+1)}, 32768, {v(vT)}")
        for sl in range(3):
            k.I(f"s_waitcnt lgkmcnt({min(15, 8*(2-sl))})")
            for j in range(8):
                k.I(f"v_add_f32 {v(dst+8*sl+j)}, {v(dst+8*sl+j)}, {v(sc+24*sl+j)}")
                k.I(f"v_add_f32 {v(sc+24*sl+8+j)}, {v(sc+24*sl+8+j)}, {v(sc+24*sl+16+j)}")
            for j in range(8):
                k.I(f"v_add_f32 {v(dst+8*sl+j)}, {v(dst+8*sl+j)}, {v(sc+24*sl+8+j)}")

def xsum8(k, r, tmp):
    k.I(f"v_add_f32_dpp {v(r)}, {v(r)}, {v(r)} row_ror:8 row_mask:0xf bank_mask:0xf")
    k.I(f"v_mov_b32 {v(tmp)}, {v(r)}\nv_permlane16_swap_b32 {v(r)}, {v(tmp)}\nv_add_f32 {v(r)}, {v(r)}, {v(tmp)}")
    k.I(f"v_mov_b32 {v(tmp)}, {v(r)}\nv_permlane32_swap_b32 {v(r)}, {v(tmp)}\nv_add_f32 {v(r)}, {v(r)}, {v(tmp)}")

def emit_w2s(k):
    k.v.next = 1
    sm = Small(k, False)
    vAF = k.v.alloc(); vRM = k.v.alloc(); vT = k.v.alloc(2, 2)
    xr = k.v.alloc(12, 4); gw = k.v.alloc(12, 4); dst = k.v.alloc(24, 4); st4 = k.v.alloc(4, 4); u = k.v.alloc(4, 2)
    sCOL = 48
    srd(k, G.sX, 36, S * D * 2); srd(k, G.sW, 38, D * D * 2); srd(k, 44, 42, D * 2)
    k.I(f"""
    s_lshl_b32 s{G.sMT}, s{G.sRB}, 2
    s_lshr_b32 s{G.sT0}, s{G.sCB}, 2
    s_add_u32 s{G.sMT}, s{G.sMT}, s{G.sT0}
    s_and_b32 s{G.sSP}, s{G.sCB}, 3
    s_mul_i32 s{sCOL}, s{G.sSP}, 288
    s_mul_i32 s{G.sBB}, s{G.sMT}, {36*1024}
    s_add_u32 s{G.sBB}, s{G.sBB}, {WS_HS}
    """)
    sm.setup(sCOL)
    sm.load_b(G.sBB)
    sm.prefetch()
    sm.map_rows(vAF, vRM, vT)
    k.I(f"""
    s_mul_i32 s{G.sT0}, s{G.sMT}, {32*1152}
    s_add_u32 s{G.sT0}, s{G.sT0}, s{sCOL}
    v_lshlrev_b32 {v(vT)}, 4, {v(vT)}
    """)
    for sl in range(3):
        if sl == 2: k.I("s_mov_b64 exec, 0xffff")
        k.I(f"buffer_load_dwordx4 {v(xr+4*sl,4)}, {v(vRM)}, {s(G.sX,4)}, s{G.sT0} offen offset:{128*sl}")
        k.I(f"buffer_load_dwordx4 {v(gw+4*sl,4)}, {v(vT)}, s[44:47], s{sCOL} offen offset:{128*sl}")
        sm.vm += ["x", "x"]
    k.I("s_mov_b64 exec, -1")
    k.stamp(1)
    sm.main()
    k.stamp(2)
    sm.reduce_write()
    sm.reduce_read(vAF, dst, vT)
    k.I(f"""
    v_mov_b32 {v(st4)}, 0
    v_mov_b32 {v(st4+1)}, 0
    v_mov_b32 {v(st4+2)}, 0
    v_mov_b32 {v(st4+3)}, 0
    s_mul_i32 s{G.sT0}, s{G.sMT}, 36
    s_mul_i32 s{G.sT1}, s{G.sSP}, 9
    s_add_u32 s{G.sT0}, s{G.sT0}, s{G.sT1}
    s_lshl_b32 s{G.sT0}, s{G.sT0}, 10
    s_add_u32 s{G.sT0}, s{G.sT0}, {WS_X1}
    """)
    for sl in range(3):
        if sl == 2: k.I("s_mov_b64 exec, 0xffff")
        for j in range(4):
            d = dst + 8 * sl + 2 * j
            k.I(f"""
            v_lshlrev_b32 {v(u)}, 16, {v(xr+4*sl+j)}
            v_and_b32 {v(u+1)}, 0xffff0000, {v(xr+4*sl+j)}
            v_lshlrev_b32 {v(u+2)}, 16, {v(gw+4*sl+j)}
            v_and_b32 {v(u+3)}, 0xffff0000, {v(gw+4*sl+j)}
            v_add_f32 {v(d)}, {v(d)}, {v(u)}
            v_add_f32 {v(d+1)}, {v(d+1)}, {v(u+1)}
            v_fmac_f32 {v(st4+2)}, {v(u)}, {v(u+2)}
            v_fmac_f32 {v(st4+3)}, {v(u+1)}, {v(u+3)}
            v_cvt_pk_bf16_f32 {v(xr+4*sl+j)}, {v(d)}, {v(d+1)}
            v_add_f32 {v(st4)}, {v(st4)}, {v(d)}
            v_fmac_f32 {v(st4+1)}, {v(d)}, {v(d)}
            v_add_f32 {v(st4)}, {v(st4)}, {v(d+1)}
            v_fmac_f32 {v(st4+1)}, {v(d+1)}, {v(d+1)}
            """)
        k.I(f"buffer_store_dwordx4 {v(xr+4*sl,4)}, {v(vAF)}, {s(G.sWS,4)}, s{G.sT0} offen {ST}")
        k.I(f"s_add_u32 s{G.sT0}, s{G.sT0}, 4096")
    k.I("s_mov_b64 exec, -1")
    k.I(f"v_add_f32 {v(st4+2)}, {v(st4+2)}, {v(st4+3)}")
    for r in range(3): xsum8(k, st4 + r, u + r)
    k.I(f"""
    v_and_b32 {v(vT)}, 7, v0
    v_lshlrev_b32 {v(vT)}, 6, {v(vT)}
    s_lshl_b32 s{G.sT0}, s{G.sMT}, 11
    s_lshl_b32 s{G.sT1}, s{G.sWV}, 9
    s_add_u32 s{G.sT0}, s{G.sT0}, s{G.sT1}
    s_lshl_b32 s{G.sT1}, s{G.sSP}, 4
    s_add_u32 s{G.sT0}, s{G.sT0}, s{G.sT1}
    s_add_u32 s{G.sT0}, s{G.sT0}, {WS_ST}
    s_mov_b64 exec, 0xff
    buffer_store_dwordx4 {v(st4,4)}, {v(vT)}, {s(G.sWS,4)}, s{G.sT0} offen {ST}
    s_mov_b64 exec, -1
    """)
    return 81920

def emit_fins(k, pre=None, syncA=None, syncP=None, base=1):
    k.v.next = base
    sm = Small(k, True)
    vAF = k.v.alloc(); vRM = k.v.alloc(); vT = k.v.alloc(2, 2)
    dst = k.v.alloc(24, 4); g4 = k.v.alloc(4, 4); u = k.v.alloc(4, 2)
    ld = sm.Ab[0][0]
    assert sm.Bf[0] == ld + 40
    sCOL = 48
    srd(k, G.sX, 36, S * D * 2); srd(k, G.sW, 38, D * D * 2)
    k.I(f"""
    s_lshl_b32 s{G.sMT}, s{G.sRB}, 2
    s_lshr_b32 s{G.sT0}, s{G.sCB}, 2
    s_add_u32 s{G.sMT}, s{G.sMT}, s{G.sT0}
    s_and_b32 s{G.sSP}, s{G.sCB}, 3
    s_mul_i32 s{sCOL}, s{G.sSP}, 288
    s_mul_i32 s{G.sBB}, s{G.sMT}, {36*1024}
    s_add_u32 s{G.sBB}, s{G.sBB}, {WS_O}
    """)
    sm.setup(sCOL)
    if pre: pre(sm)
    else: sm.prefetch()
    if syncA: syncA(vT)
    sm.load_b(G.sBB)
    sm.map_rows(vAF, vRM, vT)
    k.I(f"""
    v_and_b32 {v(vT)}, 7, v0
    v_lshlrev_b32 {v(vT)}, 6, {v(vT)}
    s_lshl_b32 s{G.sT0}, s{G.sMT}, 11
    s_lshl_b32 s{G.sT1}, s{G.sWV}, 9
    s_add_u32 s{G.sT0}, s{G.sT0}, s{G.sT1}
    s_add_u32 s{G.sT0}, s{G.sT0}, {WS_ST}
    """)
    for c in range(4):
        k.I(f"buffer_load_dword {v(g4+c)}, {v(vT)}, {s(G.sWS,4)}, s{G.sT0} offen offset:{16*c+8} {LD}")
        sm.vm.append("g")
    k.stamp(1)
    sm.main()
    k.stamp(2)
    if syncP: syncP(vT)
    k.I(f"""
    s_mul_i32 s{G.sT0}, s{G.sMT}, 36
    s_mul_i32 s{G.sT1}, s{G.sSP}, 9
    s_add_u32 s{G.sT0}, s{G.sT0}, s{G.sT1}
    s_lshl_b32 s{G.sT0}, s{G.sT0}, 10
    s_add_u32 s50, s{G.sT0}, {WS_X1}
    s_add_u32 s51, s{G.sT0}, {WS_PART}
    s_add_u32 s52, s51, {64*36*1024}
    s_add_u32 s53, s52, {64*36*1024}
    s_add_u32 s54, s53, {64*36*1024}
    """)
    t = sm.vWa
    k.I(f"s_mul_i32 s{G.sT0}, s{G.sWV}, 18432\nv_add_u32 {v(t)}, s{G.sT0}, {v(sm.vB)}\ns_barrier")
    for sl in range(3):
        if sl == 2: k.I("s_mov_b64 exec, 0xffff")
        for a_ in range(5):
            k.I(f"buffer_load_dwordx4 {v(ld+20*sl+4*a_,4)}, {v(vAF)}, {s(G.sWS,4)}, s{50+a_} offen {LD}")
            if sl < 2: k.I(f"s_add_u32 s{50+a_}, s{50+a_}, 4096")
    k.I("s_mov_b64 exec, -1")
    for b in range(9):
        for h in range(2):
            k.I(f"ds_write_b128 {v(t)}, {v(sm.acc+8*b+4*h,4)} offset:{2048*b+1024*h}")
    k.I(f"""
    v_add_f32 {v(g4)}, {v(g4)}, {v(g4+1)}
    v_add_f32 {v(g4+2)}, {v(g4+2)}, {v(g4+3)}
    v_add_f32 {v(g4)}, {v(g4)}, {v(g4+2)}
    v_mul_f32 {v(g4)}, {hx(f2u(-LOG2E))}, {v(g4)}
    v_exp_f32 {v(g4)}, {v(g4)}
    v_add_f32 {v(g4)}, 1.0, {v(g4)}
    v_rcp_f32 {v(g4)}, {v(g4)}
    v_sub_f32 {v(g4+1)}, 1.0, {v(g4)}
    s_waitcnt lgkmcnt(0)
    s_barrier
    """)
    sm.reduce_read(vAF, dst, vT)
    k.I(f"s_mul_i32 s{G.sT0}, s{G.sMT}, {32*1152}\ns_add_u32 s{G.sT0}, s{G.sT0}, s{sCOL}")
    for sl in range(3):
        k.I(f"s_waitcnt vmcnt({5*(2-sl) + sl})")
        if sl == 2: k.I("s_mov_b64 exec, 0xffff")
        for j in range(4):
            d = dst + 8 * sl + 2 * j
            k.I(f"v_lshlrev_b32 {v(u)}, 16, {v(ld+20*sl+j)}\nv_and_b32 {v(u+1)}, 0xffff0000, {v(ld+20*sl+j)}")
            for a_ in range(1, 5):
                x = ld + 20 * sl + 4 * a_ + j
                k.I(f"""
                v_lshlrev_b32 {v(u+2)}, 16, {v(x)}
                v_and_b32 {v(u+3)}, 0xffff0000, {v(x)}
                v_add_f32 {v(u)}, {v(u)}, {v(u+2)}
                v_add_f32 {v(u+1)}, {v(u+1)}, {v(u+3)}
                """)
            k.I(f"""
            v_mul_f32 {v(d)}, {v(g4)}, {v(d)}
            v_mul_f32 {v(d+1)}, {v(g4)}, {v(d+1)}
            v_fmac_f32 {v(d)}, {v(g4+1)}, {v(u)}
            v_fmac_f32 {v(d+1)}, {v(g4+1)}, {v(u+1)}
            v_cvt_pk_bf16_f32 {v(ld+20*sl+j)}, {v(d)}, {v(d+1)}
            """)
        k.I(f"buffer_store_dwordx4 {v(ld+20*sl,4)}, {v(vRM)}, {s(G.sX,4)}, s{G.sT0} offen offset:{128*sl}")
    k.I("s_mov_b64 exec, -1")
    return 81920

from w3f import ids_b
def w2_standalone(k, sID, kidx):
    k.stamp(0)
    k.I(f"s_load_dwordx2 s[36:37], s[0:1], {KA_X}\ns_load_dwordx2 s[38:39], s[0:1], {KA_W2}\ns_load_dwordx2 s[40:41], s[0:1], {KA_WS}\ns_load_dwordx2 s[42:43], s[0:1], {KA_GATE}")
    k.I(f"v_lshrrev_b32 v1, 6, v0\nv_readfirstlane_b32 s{G.sWV}, v1")
    ids_b(k, sID)
    k.I("s_waitcnt lgkmcnt(0)")
    srd(k, G.sWS, 40, WS_SIZE)
    lds = emit_w2s(k)
    k.end(kidx)
    return lds
def fin_standalone(k, sID, kidx):
    k.stamp(0)
    k.I(f"s_load_dwordx2 s[36:37], s[0:1], {KA_OUT}\ns_load_dwordx2 s[38:39], s[0:1], {KA_WO}\ns_load_dwordx2 s[40:41], s[0:1], {KA_WS}")
    k.I(f"v_lshrrev_b32 v1, 6, v0\nv_readfirstlane_b32 s{G.sWV}, v1")
    ids_b(k, sID)
    k.I("s_waitcnt lgkmcnt(0)")
    srd(k, G.sWS, 40, WS_SIZE)
    lds = emit_fins(k)
    k.end(kidx)
    return lds
```

```python
from common import *
WS_CNT = 0x0BC0000
C1, C2, C3, CA = 0, 16, 80, 144
NCNT = 160
SPIN = 1 << 18

def signal(k, sWS, sWV, sOFF, vt):
    L = k.label("sig")
    k.I(f"""
    s_cmp_lg_u32 s{sWV}, 0
    s_cbranch_scc1 {L}
    v_mov_b32 {v(vt)}, 1
    v_mov_b32 {v(vt+1)}, 0
    s_mov_b64 exec, 1
    buffer_atomic_add {v(vt)}, {v(vt+1)}, {s(sWS,4)}, s{sOFF} offen sc1
    s_mov_b64 exec, -1
    s_waitcnt vmcnt(0)
    {L}:
    """)

def poll(k, sWS, sWV, sOFF, target, vt, st, wave=0):
    L = k.label("pw"); Lp = k.label("pp")
    k.I(f"""
    s_cmp_lg_u32 s{sWV}, {wave}
    s_cbranch_scc1 {L}
    v_mov_b32 {v(vt+1)}, 0
    s_mov_b32 s{st}, {SPIN}
    {Lp}:
    buffer_load_dword {v(vt)}, {v(vt+1)}, {s(sWS,4)}, s{sOFF} offen sc1
    s_waitcnt vmcnt(0)
    v_readfirstlane_b32 s{st+1}, {v(vt)}
    s_cmp_ge_u32 s{st+1}, {target}
    s_cbranch_scc1 {L}
    s_sleep 1
    s_sub_u32 s{st}, s{st}, 1
    s_cmp_lg_u32 s{st}, 0
    s_cbranch_scc1 {Lp}
    {L}:
    """)
```

```python
from common import *
from gemm import G, common_ids, load_stats
ST = "sc1"
LD = "sc1"
W3_SLOT = 24576
W3_CS = 3 * W3_SLOT
W3_LDS = W3_CS + 5120
WS_CSA = WS_CS3

def ids_b(k, sID):
    k.I(f"""
    s_bfe_u32 s{G.sT0}, s{sID}, 0x10002
    s_bfe_u32 s{G.sRB}, s{sID}, 0x30003
    s_lshl_b32 s{G.sT0}, s{G.sT0}, 3
    s_add_u32 s{G.sRB}, s{G.sRB}, s{G.sT0}
    s_and_b32 s{G.sCB}, s{sID}, 3
    s_lshl_b32 s{G.sCB}, s{G.sCB}, 2
    s_bfe_u32 s{G.sT0}, s{sID}, 0x20006
    s_add_u32 s{G.sCB}, s{G.sCB}, s{G.sT0}
    """)

def emit_w3f(k, poll=None, after_sync=None, RA=4):
    sPR, sK3, sPC, sSO, sHO = 50, 51, 52, 53, 54
    k.v.next = 1
    R = RA + 1
    vB = k.v.alloc(); vWo = k.v.alloc(); vWo1 = k.v.alloc(); vWa = [k.v.alloc(), k.v.alloc()]; vCa = k.v.alloc()
    c1 = k.v.alloc(); c2 = k.v.alloc(); ri = k.v.alloc()
    Bp = k.v.alloc(2, 2); Ap = k.v.alloc(2, 2)
    T = k.v.alloc(4, 2)
    acc = [k.v.alloc(32, 4), k.v.alloc(32, 4)]
    Ab = [k.v.alloc(4, 4) for _ in range(R)]
    Bf = [k.v.alloc(4, 4) for _ in range(36)]
    vL, vT0, vT1 = T, T + 1, T + 2
    srd(k, G.sW, 38, D * F * 2)
    k.I(f"""
    v_and_b32 {v(vL)}, 63, v0
    s_lshl_b32 s{G.sMT}, s{G.sRB}, 2
    s_add_u32 s{G.sMT}, s{G.sMT}, s{G.sWV}
    v_lshlrev_b32 {v(vB)}, 4, {v(vL)}
    s_and_b32 s{sPR}, s{G.sRB}, 3
    s_bfe_u32 s{sK3}, s{G.sRB}, 0x10002
    v_bfe_u32 {v(vT0)}, {v(vL)}, 2, 2
    v_lshrrev_b32 {v(vT1)}, 5, {v(vL)}
    v_lshl_add_u32 {v(vT0)}, {v(vT1)}, 2, {v(vT0)}
    s_mul_i32 s{G.sT0}, s{G.sWV}, 48
    v_add_u32 {v(vT0)}, s{G.sT0}, {v(vT0)}
    v_mul_u32_u24 {v(vWo)}, 9216, {v(vT0)}
    v_bfe_u32 {v(vT0)}, {v(vL)}, 4, 1
    v_lshl_add_u32 {v(vWo)}, {v(vT0)}, 6, {v(vWo)}
    v_and_b32 {v(vT1)}, 3, {v(vL)}
    v_lshl_add_u32 {v(vWo)}, {v(vT1)}, 4, {v(vWo)}
    v_lshrrev_b32 {v(vT0)}, 2, {v(vL)}
    v_add_u32 {v(vT0)}, s{G.sT0}, {v(vT0)}
    v_mul_u32_u24 {v(vWo1)}, 9216, {v(vT0)}
    v_lshl_add_u32 {v(vWo1)}, {v(vT1)}, 4, {v(vWo1)}
    s_mul_i32 s{G.sWB}, s{G.sCB}, 576
    s_mul_i32 s{G.sM0}, s{G.sWV}, 6144
    s_mul_i32 s{G.sM0D}, s{G.sWV}, 3072
    """)
    NQ = 15
    def stage_setup(q):
        p, th = divmod(q, 3)
        r = []
        if th == 0:
            if p < 4:
                r += [f"s_add_u32 s{sPC}, s{sPR}, {p}", f"s_and_b32 s{sPC}, s{sPC}, 3", f"s_lshl_b32 s{sPC}, s{sPC}, 7",
                      f"s_add_u32 s{sPC}, s{sPC}, s{G.sWB}"]
            else:
                r += [f"s_add_u32 s{sPC}, s{G.sWB}, 512"]
        r += [f"s_add_u32 s{sSO}, s{sK3}, {th}"]
        if th == 2: r += [f"s_cmp_eq_u32 s{sSO}, 3", f"s_cselect_b32 s{sSO}, 0, s{sSO}"]
        r += [f"s_mul_i32 s{sSO}, s{sSO}, {192*9216}", f"s_add_u32 s{sSO}, s{sSO}, s{sPC}"]
        return r
    def loads(q):
        p, th = divmod(q, 3)
        g = []
        n = 6 if p < 4 else 3
        for i in range(n):
            pre = stage_setup(q) if i == 0 else [f"s_add_u32 s{sSO}, s{sSO}, {(8 if p < 4 else 16)*9216}"]
            pre = pre + [f"s_add_u32 m0, s{G.sM0 if p < 4 else G.sM0D}, {th*W3_SLOT + i*1024}"]
            g.append(pre + [f"buffer_load_dwordx4 {v(vWo if p < 4 else vWo1)}, {s(G.sW,4)}, s{sSO} offen lds"])
        return g
    vm = []
    def emit_group(g, tag):
        for x in g: k.I(x)
        vm.append(tag)
    def allowed(tags):
        last = max(i for i, t in enumerate(vm) if t in tags)
        return len(vm) - 1 - last
    tr_lane_addr(k, vWa[0], vL, vT0, vT1, 2 * 2 * 256, perm=True)
    k.I(f"v_add_u32 {v(vWa[1])}, {2*W3_SLOT}, {v(vWa[0])}")
    if poll: poll(acc[0])
    k.I(f"""
    s_mul_i32 s{G.sT0}, s{G.sCB}, 4608
    s_add_u32 s{G.sT0}, s{G.sT0}, {WS_CSA}
    s_lshl_b32 s{G.sT1}, s{G.sWV}, 10
    s_add_u32 m0, s{G.sT1}, {W3_CS}
    s_add_u32 s{G.sT1}, s{G.sT1}, s{G.sT0}
    buffer_load_dwordx4 {v(vB)}, {s(G.sWS,4)}, s{G.sT1} offen lds
    s_mov_b32 m0, {W3_CS + 4096}
    s_add_u32 s{G.sT0}, s{G.sT0}, 4096
    buffer_load_dwordx4 {v(vB)}, {s(G.sWS,4)}, s{G.sT0} offen lds
    """)
    vm += [0, 0]
    for q in range(2):
        for g in loads(q): emit_group(g, q)
    if poll: k.I("s_barrier")
    if after_sync: after_sync()
    st16 = acc[1]
    k.I(f"""
    v_and_b32 {v(vT0)}, 31, v0
    v_lshlrev_b32 {v(vT0)}, 6, {v(vT0)}
    s_lshl_b32 s{G.sT0}, s{G.sMT}, 11
    s_add_u32 s{G.sT0}, s{G.sT0}, {WS_ST}
    """)
    for c in range(4):
        k.I(f"buffer_load_dwordx4 {v(st16+4*c,4)}, {v(vT0)}, {s(G.sWS,4)}, s{G.sT0} offen offset:{16*c} {LD}")
        vm.append("st")
    k.I(f"s_mul_i32 s{G.sBB}, s{G.sMT}, {36*1024}\ns_add_u32 s{G.sBB}, s{G.sBB}, {WS_X1}")
    for th in range(3):
        k.I(f"s_add_u32 s{G.sOB}, s{sK3}, {th}")
        if th == 2: k.I(f"s_cmp_eq_u32 s{G.sOB}, 3\ns_cselect_b32 s{G.sOB}, 0, s{G.sOB}")
        k.I(f"s_mul_i32 s{G.sOB}, s{G.sOB}, {12*1024}\ns_add_u32 s{G.sOB}, s{G.sOB}, s{G.sBB}")
        for i in range(12):
            if i and i % 4 == 0: k.I(f"s_add_u32 s{G.sOB}, s{G.sOB}, 4096")
            k.I(f"buffer_load_dwordx4 {v(Bf[12*th+i],4)}, {v(vB)}, {s(G.sWS,4)}, s{G.sOB} offen offset:{1024*(i%4)} {LD}")
            vm.append(("b", 12 * th + i))
        if th == 0:
            k.stamp(1)
            k.I(f"s_waitcnt vmcnt({allowed(['st'])})")
            for j in range(2):
                k.I(f"v_add_f32 {v(st16+j)}, {v(st16+j)}, {v(st16+4+j)}")
                k.I(f"v_add_f32 {v(st16+8+j)}, {v(st16+8+j)}, {v(st16+12+j)}")
            for j in range(2):
                k.I(f"v_add_f32 {v(st16+j)}, {v(st16+j)}, {v(st16+8+j)}")
            m, q2, r = st16, st16 + 1, st16 + 2
            k.I(f"""
            v_mul_f32 {v(m)}, {hx(f2u(-1.0/576))}, {v(m)}
            v_mul_f32 {v(q2)}, {hx(f2u(1.0/576))}, {v(q2)}
            v_fma_f32 {v(q2)}, -{v(m)}, {v(m)}, {v(q2)}
            v_max_f32 {v(q2)}, 0, {v(q2)}
            v_add_f32 {v(q2)}, {hx(f2u(1e-5))}, {v(q2)}
            v_rsq_f32 {v(r)}, {v(q2)}
            v_sqrt_f32 {v(ri)}, {v(q2)}
            v_and_b32 {v(st16+4)}, 0xffff0000, {v(m)}
            v_sub_f32 {v(m)}, {v(m)}, {v(st16+4)}
            v_and_b32 {v(st16+5)}, 0xffff0000, {v(m)}
            v_sub_f32 {v(m)}, {v(m)}, {v(st16+5)}
            v_and_b32 {v(st16+6)}, 0xffff0000, {v(m)}
            v_mul_f32 {v(c1)}, {hx(f2u(GK1))}, {v(r)}
            v_mul_f32 {v(c2)}, {v(r)}, {v(r)}
            v_mul_f32 {v(c2)}, {v(c2)}, {v(r)}
            v_mul_f32 {v(c2)}, {hx(f2u(GK2))}, {v(c2)}
            v_lshrrev_b32 {v(st16+4)}, 16, {v(st16+4)}
            v_or_b32 {v(st16+5)}, {v(st16+4)}, {v(st16+5)}
            v_or_b32 {v(st16+6)}, {v(st16+4)}, {v(st16+6)}
            v_cmp_gt_u32 vcc, 512, {v(vB)}
            v_cndmask_b32 {v(Bp)}, {v(st16+6)}, {v(st16+5)}, vcc
            v_cndmask_b32 {v(Bp+1)}, 0, {v(st16+5)}, vcc
            """.replace("v_cmp_gt_u32 vcc, 512,", "v_cmp_gt_u32 vcc, 0x200,"))
    k.I(f"s_mul_i32 s{sHO}, s{G.sMT}, 288\ns_mul_i32 s{G.sT0}, s{G.sCB}, 18\ns_add_u32 s{sHO}, s{sHO}, s{G.sT0}")
    k.I(f"s_lshl_b32 s{sHO}, s{sHO}, 10\ns_add_u32 s{sHO}, s{sHO}, {WS_H}")
    k.I(f"s_waitcnt vmcnt({allowed([0])})\ns_barrier")
    k.stamp(2); k.cstamp(4)
    seq = []
    for q in range(NQ):
        nt = 2 if q < 12 else 1
        for ks in range(12):
            for t in range(nt): seq.append((q, ks, t, nt))
    N = len(seq)
    stage_end = {}
    for n, (q, ks, t, nt) in enumerate(seq): stage_end[q] = n + 1
    lg = []
    def reads(n):
        q, ks, t, nt = seq[n]; th = q % 3
        base = vWa[1] if th == 2 else vWa[0]
        off0 = (th % 2) * W3_SLOT if th < 2 else 0
        for rd in range(2):
            k.I(f"ds_read_b64_tr_b16 {v(Ab[n % R]+2*rd,2)}, {v(base)} offset:{off0 + (4*ks+rd)*nt*256 + t*256}")
            lg.append(n)
    def lgwait(tag):
        last = max(i for i, t in enumerate(lg) if t == tag)
        return min(15, len(lg) - 1 - last)
    def cs_setup(p):
        if p < 4:
            return [f"s_add_u32 s{G.sT0}, s{sPR}, {p}", f"s_and_b32 s{G.sT0}, s{G.sT0}, 3", f"s_lshl_b32 s{G.sT0}, s{G.sT0}, 10",
                    f"s_add_u32 s{G.sT0}, s{G.sT0}, {W3_CS}", f"v_lshrrev_b32 {v(vCa)}, 1, {v(vB)}", f"v_add_u32 {v(vCa)}, s{G.sT0}, {v(vCa)}"]
        return [f"v_lshrrev_b32 {v(vCa)}, 1, {v(vB)}", f"v_add_u32 {v(vCa)}, {W3_CS + 4096}, {v(vCa)}"]
    def gelu_ops(p):
        a0 = acc[p & 1]; nt = 2 if p < 4 else 1
        ops = []
        if p < 4:
            ops += [f"s_add_u32 s{G.sT1}, s{sPR}, {p}", f"s_and_b32 s{G.sT1}, s{G.sT1}, 3", f"s_lshl_b32 s{G.sT1}, s{G.sT1}, 12",
                    f"s_add_u32 s{G.sT1}, s{G.sT1}, s{sHO}"]
        else:
            ops += [f"s_add_u32 s{G.sT1}, s{sHO}, 16384"]
        for g in range(4 * nt):
            a = a0 + 4 * g
            ops += [f"v_mul_f32 {v(T+j)}, {v(a+j)}, {v(a+j)}" for j in range(4)]
            ops += [f"v_fma_f32 {v(T+j)}, {v(T+j)}, {v(c2)}, {v(c1)}" for j in range(4)]
            ops += [f"v_mul_f32 {v(T+j)}, {v(T+j)}, {v(a+j)}" for j in range(4)]
            ops += [f"v_exp_f32 {v(T+j)}, {v(T+j)}" for j in range(4)]
            ops += [f"v_fma_f32 {v(T+j)}, {v(T+j)}, {v(ri)}, {v(ri)}" for j in range(4)]
            ops += [f"v_rcp_f32 {v(T+j)}, {v(T+j)}" for j in range(4)]
            ops += [f"v_mul_f32 {v(T+j)}, {v(T+j)}, {v(a+j)}" for j in range(4)]
            d = a0 + 8 * (g // 2) + 2 * (g % 2)
            ops += [f"v_cvt_pk_bf16_f32 {v(d)}, {v(T)}, {v(T+1)}", f"v_cvt_pk_bf16_f32 {v(d+1)}, {v(T+2)}, {v(T+3)}"]
            if g % 2:
                ops += [f"buffer_store_dwordx4 {v(a0+8*(g//2),4)}, {v(vB)}, {s(G.sWS,4)}, s{G.sT1} offen offset:{1024*(g//2)} {ST}"]
        return ops
    def cost(x):
        return 8 if x.startswith(("v_exp", "v_rcp")) else 4
    def emit_fill(x):
        k.I(x)
        if x.startswith("buffer_"): vm.append("store")
    for x in cs_setup(0): k.I(x)
    k.I(f"ds_read_b64 {v(Ap,2)}, {v(vCa)}"); lg.append("cs")
    for n in range(RA): reads(n)
    nread = RA
    limit = stage_end[0]
    nxt = 2
    fill = []
    lastwait = None
    for n, (q, ks, t, nt) in enumerate(seq):
        p, th = divmod(q, 3)
        s0 = stage_end[q] - 12 * nt
        r = n - s0
        NS = 12 * nt
        if r == 0:
            gl = []
            if nxt <= q + 2 and nxt < NQ:
                gl = [(nxt, g) for g in loads(nxt)]; nxt += 1
            span = NS - RA
            where = {}
            for j, g in enumerate(gl): where.setdefault(j * span // len(gl), []).append(g)
            if th == 0 and p > 0:
                assert not fill
                fill = gelu_ops(p - 1)
                fill_total = sum(cost(x) for x in fill); fill_done = 0
                pass_len = 36 * nt
        a = acc[p & 1] + 16 * t
        if th == 0 and ks == 0:
            k.I(f"s_waitcnt lgkmcnt({lgwait('cs')})")
            k.I(f"v_mfma_f32_32x32x8_bf16 {v(a,16)}, {v(Ap,2)}, {v(Bp,2)}, 0")
            if t == 0 and nt == 2:
                k.I(f"ds_read_b64 {v(T,2)}, {v(vCa)} offset:512") if False else None
        w = []
        if p == 0 and t == 0: w.append(f"vmcnt({allowed([('b', 12*th+ks)])})")
        w.append(f"lgkmcnt({lgwait(n)})")
        k.I("s_waitcnt " + " ".join(w))
        k.I(f"v_mfma_f32_32x32x16_bf16 {v(a,16)}, {v(Ab[n % R],4)}, {v(Bf[12*th+ks],4)}, {v(a,16)}")
        if th == 0 and ks == 0 and t == 0 and nt == 2:
            k.I(f"ds_read_b64 {v(Ap,2)}, {v(vCa)} offset:512"); lg.append("cs")
        if r == NS - RA + 1 and q < NQ - 1:
            assert nread == limit
            k.I(f"s_waitcnt vmcnt({allowed([q+1])}) lgkmcnt(0)")
            k.I("s_barrier")
            limit = stage_end[q + 1]
            if q == 11:
                k.I(f"v_and_b32 {v(vCa)}, 0x200, {v(vB)}\nv_sub_u32 {v(vWa[0])}, {v(vWa[0])}, {v(vCa)}\nv_sub_u32 {v(vWa[1])}, {v(vWa[1])}, {v(vCa)}")
            if th == 2:
                for x in cs_setup(p + 1): k.I(x)
                k.I(f"ds_read_b64 {v(Ap,2)}, {v(vCa)}"); lg.append("cs")
        gs = where.get(r, [])
        for (tag, g) in gs:
            for x in g[:-1]: k.I(x)
        cnt = 0
        while nread < min(n + RA + 1, limit, N) and cnt < 2:
            reads(nread); nread += 1; cnt += 1
        for (tag, g) in gs:
            k.I(g[-1]); vm.append(tag)
        if fill:
            pos = th * NS + r
            if pos >= 2:
                tgt = fill_total * (pos - 1) / (pass_len - 4)
                while fill and fill_done < tgt:
                    x = fill.pop(0); emit_fill(x); fill_done += cost(x)
    assert not fill
    k.stamp(3); k.cstamp(5)
    for x in gelu_ops(4): emit_fill(x)
    return W3_LDS

def standalone(k, sID, kidx):
    k.stamp(0)
    k.I(f"s_load_dwordx2 s[38:39], s[0:1], {KA_W3}\ns_load_dwordx2 s[40:41], s[0:1], {KA_WS}")
    k.I(f"v_lshrrev_b32 v1, 6, v0\nv_readfirstlane_b32 s{G.sWV}, v1")
    ids_b(k, sID)
    k.I("s_waitcnt lgkmcnt(0)")
    srd(k, G.sWS, 40, WS_SIZE)
    lds = emit_w3f(k)
    k.end(kidx)
    return lds
```

```python
from common import *
from gemm import G, w_dma_offsets
ST = "sc1"
LD = "sc1"

def emit_w4m(k, poll=None, RA=5, ND=4):
    NT, KPS, NST = 5, 4, 18
    SLOT = 20480
    k.v.next = 1
    vL = k.v.alloc(); vB = k.v.alloc(); vT0 = k.v.alloc(); vT1 = k.v.alloc(); vT2 = k.v.alloc()
    vWo = [k.v.alloc() for _ in range(5)]
    vWa = [k.v.alloc() for _ in range(2)]
    acc = k.v.alloc(80, 4)
    R = RA + 1
    Ab = [k.v.alloc(4, 4) for t in range(R)]
    Bf = [[k.v.alloc(4, 4) for ks in range(KPS)] for d in range(ND)]
    sGB = 49
    sC4 = 50
    srd(k, G.sW, 38, D * F * 2)
    k.I(f"""
    v_and_b32 {v(vL)}, 63, v0
    s_lshr_b32 s{G.sSP}, s{G.sCB}, 2
    s_and_b32 s{sC4}, s{G.sCB}, 3
    s_and_b32 s{G.sG}, s{G.sRB}, 7
    s_lshl_b32 s{G.sG}, s{G.sG}, 1
    s_lshl_b32 s{G.sT1}, s{sC4}, 2
    s_add_u32 s{G.sG}, s{G.sG}, s{G.sT1}
    s_cmp_ge_u32 s{G.sG}, 18
    s_cselect_b32 s{G.sT1}, 18, 0
    s_sub_u32 s{G.sG}, s{G.sG}, s{G.sT1}
    s_mov_b32 s{sGB}, s{G.sG}
    s_lshl_b32 s{G.sMT}, s{G.sRB}, 2
    s_add_u32 s{G.sMT}, s{G.sMT}, s{G.sWV}
    s_mul_i32 s{G.sT1}, s{sC4}, 288
    s_mul_i32 s{G.sWB}, s{G.sSP}, {1152*1152}
    s_mul_i32 s{G.sBB}, s{G.sMT}, 288
    s_mul_i32 s{G.sT0}, s{G.sSP}, 72
    s_add_u32 s{G.sBB}, s{G.sBB}, s{G.sT0}
    s_lshl_b32 s{G.sBB}, s{G.sBB}, 10
    s_add_u32 s{G.sBB}, s{G.sBB}, {WS_H}
    v_lshlrev_b32 {v(vB)}, 4, {v(vL)}
    """)
    w_dma_offsets(k, NT, KPS, 1152, 18, vWo, vL, vT0, vT1, vT2, G.sT1)
    tr_lane_addr(k, vWa[0], vL, vT0, vT1, 2 * NT * 256, perm=True)
    k.I(f"v_add_u32 {v(vWa[1])}, {2*SLOT}, {v(vWa[0])}")
    vm = []
    def allowed(tags):
        last = max(i for i, t in enumerate(vm) if t in tags)
        return len(vm) - 1 - last
    def rot(sg): return [f"s_add_u32 s{sg}, s{sg}, 1", f"s_cmp_eq_u32 s{sg}, {NST}", f"s_cselect_b32 s{sg}, 0, s{sg}"]
    def wloads(st):
        g = []
        for i in range(5):
            pre = [f"s_mul_i32 s{G.sOW}, s{G.sG}, {64*1152}", f"s_add_u32 s{G.sOW}, s{G.sOW}, s{G.sWB}"] + rot(G.sG) if i == 0 else []
            g.append(pre + [f"s_add_u32 m0, s{G.sM0}, {(st % ND)*SLOT + i*1024}",
                            f"buffer_load_dwordx4 {v(vWo[i])}, {s(G.sW,4)}, s{G.sOW} offen lds"])
        return g
    def bloads(st):
        g = []
        for ks in range(KPS):
            pre = [f"s_lshl_b32 s{G.sOB}, s{sGB}, 12", f"s_add_u32 s{G.sOB}, s{G.sOB}, s{G.sBB}"] + rot(sGB) if ks == 0 else []
            g.append(pre + [f"buffer_load_dwordx4 {v(Bf[st % ND][ks],4)}, {v(vB)}, {s(G.sWS,4)}, s{G.sOB} offen offset:{1024*ks} {LD}"])
        return g
    NS = KPS * NT
    lg = []
    def reads(n):
        st, r = divmod(n, NS); ks, t = divmod(r, NT)
        sl = st % ND
        for rd in range(2):
            k.I(f"ds_read_b64_tr_b16 {v(Ab[n % R]+2*rd,2)}, {v(vWa[sl // 2])} offset:{(sl % 2)*SLOT + (4*ks+rd)*NT*256 + t*256}")
            lg.append(n)
    if poll: poll(vT0)
    NPW, NPB = 3, 2
    for st in range(NPW):
        for g in wloads(st):
            for x in g: k.I(x)
            vm.append(st)
    if poll: k.I("s_barrier")
    for st in range(NPB):
        for g in bloads(st):
            for x in g: k.I(x)
            vm.append(st)
    k.I(f"s_waitcnt vmcnt({allowed([0])})\ns_barrier")
    k.stamp(4)
    for n in range(RA): reads(n)
    nread = RA
    N = NST * NS
    limit = NS
    nw, nb = NPW, NPB
    done = -1
    for p in range(N):
        st, r = divmod(p, NS); ks, t = divmod(r, NT)
        if r == 0:
            gl = []
            while nb < min(NST, st + ND) or nw < min(NST, st + ND):
                if nb <= nw and nb < min(NST, st + ND) and not (nb == nw):
                    gl += [(nb, g) for g in bloads(nb)]; nb += 1
                elif nw < min(NST, st + ND):
                    gl += [(nw, g) for g in wloads(nw)]; nw += 1
                else:
                    gl += [(nb, g) for g in bloads(nb)]; nb += 1
            span = NS - RA + 1
            where = {}
            for j, g in enumerate(gl): where.setdefault(j * span // len(gl), []).append(g)
        if done < p:
            tgt = min(p + 1, nread - 1)
            last = max(i for i, x in enumerate(lg) if x == tgt)
            k.I(f"s_waitcnt lgkmcnt({min(15, len(lg) - 1 - last)})")
            done = tgt
        c = "0" if p < NT else v(acc + 16 * t, 16)
        k.I(f"v_mfma_f32_32x32x16_bf16 {v(acc+16*t,16)}, {v(Ab[p % R],4)}, {v(Bf[st % ND][ks],4)}, {c}")
        if r == NS - RA + 1 and st < NST - 1:
            assert nread == limit
            k.I(f"s_waitcnt vmcnt({allowed([st+1])}) lgkmcnt(0)")
            k.I("s_barrier")
            done = nread - 1
            limit += NS
        gs = where.get(r, [])
        post = []
        for j, (q, g) in enumerate(gs):
            if j == 0:
                for x in g[:-1]: k.I(x)
                post.append(g[-1])
            else: post += g
            vm.append(q)
        cnt = 0
        while nread < min(p + RA + 1, limit, N) and cnt < 2:
            reads(nread); nread += 1; cnt += 1
        for x in post: k.I(x)
    k.stamp(5)
    k.I(f"""
    s_lshl_b32 s{G.sT0}, s{G.sSP}, 6
    s_add_u32 s{G.sT0}, s{G.sT0}, s{G.sMT}
    s_mul_i32 s{G.sT0}, s{G.sT0}, 36
    s_mul_i32 s{G.sT1}, s{sC4}, 9
    s_add_u32 s{G.sT0}, s{G.sT0}, s{G.sT1}
    s_lshl_b32 s{G.sT0}, s{G.sT0}, 10
    s_add_u32 s{G.sT0}, s{G.sT0}, {WS_PART}
    """)
    pk = Bf[0][0]
    for sidx in range(9):
        for j in range(4):
            r = acc + 8 * sidx + 2 * j
            k.I(f"v_cvt_pk_bf16_f32 {v(pk+4*sidx+j)}, {v(r)}, {v(r+1)}")
        k.I(f"buffer_store_dwordx4 {v(pk+4*sidx,4)}, {v(vB)}, {s(G.sWS,4)}, s{G.sT0} offen {ST}")
        k.I(f"s_add_u32 s{G.sT0}, s{G.sT0}, 1024")
    return SLOT * ND
```

```python
import sys
from common import *
import k1, attn, gemm, w3f, small, mega
STAMP[0] = "nostamp" not in sys.argv
prio = [a for a in sys.argv if a.startswith("prio=")]
prio = prio[0][5:] if prio else "00"
def mixed(name, emit, ng, att_base, natt, kidx, extra=None):
    k = Kern(name, vlimit=256)
    tot = 256 + natt
    k.I(f"s_cmp_ge_u32 s2, {tot}\ns_cbranch_scc1 L_{name}_exit\ns_cmp_ge_u32 s2, 256\ns_cbranch_scc1 L_{name}_att")
    if extra:
        k.I(f"s_cmp_ge_u32 s2, {ng}\ns_cbranch_scc1 L_{name}_x")
    if prio[0] != "0": k.I(f"s_setprio {prio[0]}")
    lds = emit(k, 2, kidx)
    if extra:
        k.L(f"L_{name}_x")
        k.I(f"s_cmp_ge_u32 s2, {ng+extra[1]}\ns_cbranch_scc1 L_{name}_exit\ns_sub_u32 s3, s2, {ng}")
        extra[0](k, 3, kidx)
    k.L(f"L_{name}_att")
    k.I(f"s_sub_u32 s3, s2, {256 - att_base}" if att_base <= 256 else "")
    if prio[1] != "0": k.I(f"s_setprio {prio[1]}")
    attn.emit_attn(k, 3, kidx, pfx=name + "at")
    k.L(f"L_{name}_exit"); k.I("s_endpgm")
    return k, (name, tot, 256, max(lds, attn.ATT_LDS))
mode = sys.argv[2]
if mode == "a":
    ks = [k1.gen_k1(), gemm.gen_k2(1), mixed("w3a_kernel", w3f.standalone, 256, 0, 256, 2),
          mixed("w4a_kernel", gemm.emit_w4, 256, 256, 256, 3), gemm.simple("fin_kernel", gemm.emit_fin, 64, 4)]
elif mode == "s":
    ks = [k1.gen_k1(), attn.gen_attn(1), gemm.gen_k2(2), gemm.simple("w3_kernel", w3f.standalone, 256, 3),
      gemm.simple("w4_kernel", gemm.emit_w4, 256, 4), gemm.simple("fin_kernel", gemm.emit_fin, 64, 5)]
elif mode == "t":
    ks = [k1.gen_k1(), attn.gen_attn(1), gemm.simple("cs_kernel", gemm.emit_cs3, 72, 2), gemm.simple("w2s_kernel", small.w2_standalone, 256, 3),
      gemm.simple("w3_kernel", w3f.standalone, 256, 4),
      gemm.simple("w4_kernel", gemm.emit_w4, 256, 5), gemm.simple("fins_kernel", small.fin_standalone, 256, 6)]
elif mode == "m":
    ks = [mega.gen_init(0), k1.gen_k1(1), mega.gen_mega(2, prio)]
elif mode == "b":
    ks = [k1.gen_k1(), mixed("w2a_kernel", gemm.emit_w2, 64, 0, 256, 1, extra=(gemm.emit_cs3, 72)), mixed("w3a_kernel", w3f.standalone, 256, 256, 256, 2),
          gemm.simple("w4_kernel", gemm.emit_w4, 256, 3), gemm.simple("fin_kernel", gemm.emit_fin, 64, 4)]
hdr = "".join(l for l in open("gated_mix__mha_block__mixer_s_mlp__prompt.s.ref").readlines()[:13])
open(sys.argv[1], "w").write(build([a for a, b in ks], [b for a, b in ks], header=hdr))
for a, b in ks: print(b, "vgprs", a.v.hi)
```

```python
import re

STAMP = [False]
class Regs:
    def __init__(self, prefix, limit, start=0):
        self.p = prefix; self.limit = limit; self.next = start; self.hi = start
    def alloc(self, n=1, align=1):
        if n > 1 and align == 1: align = 2
        b = (self.next + align - 1) // align * align
        assert b + n <= self.limit, f"out of {self.p} regs: need {b+n} > {self.limit}"
        self.next = b + n; self.hi = max(self.hi, self.next)
        return b
    def mark(self): return self.next
    def reset(self, m): self.next = m

def v(b, n=1): return f"v{b}" if n == 1 else f"v[{b}:{b+n-1}]"
def a(b, n=1): return f"a{b}" if n == 1 else f"a[{b}:{b+n-1}]"
def s(b, n=1): return f"s{b}" if n == 1 else f"s[{b}:{b+n-1}]"

_REG = re.compile(r"^(-|abs\(|\|)?([vas])(\d+)\)?\|?$")
_RNG = re.compile(r"^(-)?([vas])\[(\d+):(\d+)\]$")
def regs_of(op):
    op = op.strip()
    if op in ("vcc",): return {"vcc"}
    if op in ("vcc_lo", "vcc_hi"): return {"vcc"}
    if op in ("exec", "exec_lo", "exec_hi"): return {"exec"}
    if op == "m0": return {"m0"}
    m = _RNG.match(op)
    if m: return {f"{m.group(2)}{i}" for i in range(int(m.group(3)), int(m.group(4)) + 1)}
    m = _REG.match(op)
    if m: return {f"{m.group(2)}{m.group(3)}"}
    return set()

TRANS = ("v_exp_", "v_log_", "v_rcp_", "v_rsq_", "v_sqrt_", "v_sin_", "v_cos_")
class Ins:
    def __init__(self, text):
        self.text = text
        t = text.split(";")[0].strip()
        parts = t.split(None, 1)
        self.mn = parts[0]
        rest = parts[1] if len(parts) > 1 else ""
        ops = [o.strip() for o in re.split(r",(?![^\[]*\])", rest)] if rest else []
        self.mods = []
        if ops:
            last = ops[-1].split()
            if last:
                ops[-1] = last[0]; self.mods = last[1:]
        self.ops = ops
        mn = self.mn
        self.is_mfma = mn.startswith("v_mfma")
        self.is_valu = mn.startswith("v_") and not self.is_mfma
        self.is_trans = mn.startswith(TRANS)
        self.is_ds = mn.startswith("ds_")
        self.is_vmem = mn.startswith(("buffer_", "global_", "flat_"))
        self.is_smem = mn.startswith(("s_load", "s_buffer_load", "s_memtime", "s_memrealtime", "s_atomic"))
        self.is_salu = mn.startswith("s_") and not self.is_smem
        self.is_branch = mn.startswith(("s_branch", "s_cbranch"))
        self.is_dot = mn.startswith("v_dot")
        self.lds_dma = self.is_vmem and ("lds" in self.mods or "_lds_" in mn)
        self.dpp = any(m.startswith(("row_", "quad_perm", "wave_", "row_bcast")) for m in self.mods)
        w, r = set(), set()
        R = [regs_of(o) for o in ops]
        if self.is_mfma:
            w |= R[0]; self.srcA = R[1]; self.srcB = R[2]; self.srcC = R[3]; r |= R[1] | R[2] | R[3]
            self.passes = 4 if "16x16" in mn else 8
        elif self.is_valu:
            if mn.startswith("v_nop"): pass
            elif mn.startswith("v_cmpx"):
                w |= R[0] | {"exec"}; [r.update(x) for x in R[1:]]
            elif mn.startswith(("v_add_co", "v_sub_co", "v_subrev_co", "v_addc_co", "v_subb_co", "v_mad_u64", "v_div_scale")):
                w |= R[0] | R[1]; [r.update(x) for x in R[2:]]
            elif mn.startswith(("v_permlane32_swap", "v_permlane16_swap", "v_swap")):
                w |= R[0] | R[1]; r |= R[0] | R[1]
            else:
                w |= R[0]; [r.update(x) for x in R[1:]]
                if mn.startswith(("v_fmac", "v_dot2c", "v_pk_fmac", "v_writelane")) or self.dpp: r |= R[0]
                if any(m.startswith("dst_unused:UNUSED_PRESERVE") for m in self.mods): r |= R[0]
        elif self.is_ds:
            if mn.startswith(("ds_read", "ds_bpermute", "ds_permute", "ds_swizzle")) or "_rtn" in mn:
                w |= R[0]; [r.update(x) for x in R[1:]]
            else:
                [r.update(x) for x in R]
        elif self.is_vmem:
            if self.lds_dma:
                [r.update(x) for x in R]; r.add("m0")
            elif "_load" in mn:
                w |= R[0]; [r.update(x) for x in R[1:]]
            elif "atomic" in mn and "sc0" in self.mods:
                w |= R[0]; [r.update(x) for x in R]
            else:
                [r.update(x) for x in R]
        elif self.is_smem:
            w |= R[0]; [r.update(x) for x in R[1:]]
        elif self.is_salu:
            if mn.startswith(("s_cmp", "s_waitcnt", "s_barrier", "s_nop", "s_setprio", "s_endpgm", "s_sleep", "s_bitcmp")) or self.is_branch:
                [r.update(x) for x in R]
                if "vcc" in mn: r.add("vcc")
                if "exec" in mn: r.add("exec")
            elif "saveexec" in mn:
                w |= R[0] | {"exec"}; [r.update(x) for x in R[1:]]; r.add("exec")
            else:
                w |= R[0]; [r.update(x) for x in R[1:]]
                if mn.startswith(("s_addk", "s_mulk")): r |= R[0]
        self.w, self.r = w, r
        self.states = 1
        if mn == "s_nop": self.states = int(ops[0], 0) + 1
        self.wide_store = (self.is_vmem and "store" in mn and ("x3" in mn or "x4" in mn))
        if self.wide_store:
            self.sdata = R[0] if mn.startswith("buffer_") else R[1]

def required(p, c):
    need = 0
    vw = {x for x in p.w if x[0] in "va" and x != "vcc"}
    sw = {x for x in p.w if x[0] == "s" or x == "vcc"}
    if p.is_mfma:
        big = {4: 8, 8: 12}[p.passes]
        if c.is_mfma:
            if vw & (c.srcA | c.srcB): need = max(need, big)
            if vw & c.srcC:
                if not (c.srcC == p.w and c.passes == p.passes): need = max(need, {4: 6, 8: 10}[p.passes])
            elif vw & c.w: need = max(need, big)
        elif c.is_valu or c.is_vmem or c.is_ds:
            if vw & (c.r | c.w): need = max(need, big)
        if c.is_valu and (p.srcC & c.w): need = max(need, {4: 3, 8: 7}[p.passes])
        if (c.is_ds or c.is_vmem) and (p.srcC & c.w): need = max(need, {4: 3, 8: 7}[p.passes])
    if p.is_valu:
        if c.is_mfma and (vw & c.r): need = max(need, 3 if p.is_dot else 2)
        if c.is_mfma and "exec" in p.w: need = max(need, 4)
        if p.is_trans and c.is_valu and not c.is_trans and (vw & c.r): need = max(need, 1)
        if p.is_trans and (c.is_vmem or c.is_ds) and (vw & c.r): need = max(need, 1)
        if p.is_dot and (c.is_valu or c.is_vmem or c.is_ds) and (vw & (c.r | c.w)):
            same_c = (c.mn == p.mn and not (vw & (regs_of(c.ops[1]) | regs_of(c.ops[2]))))
            if not same_c: need = max(need, 3)
        if c.is_vmem and (sw & c.r): need = max(need, 5)
        if c.is_valu and (sw & c.r):
            need = max(need, 4 if c.mn.startswith(("v_readlane", "v_writelane", "v_div_fmas")) else 2)
        if c.is_salu and (sw & c.r): need = max(need, 2)
        if c.mn.startswith(("v_readlane", "v_readfirstlane")) and (vw & c.r): need = max(need, 1)
        if c.mn.startswith("v_permlane") and (vw & c.r): need = max(need, 2)
        if c.dpp and (vw & c.r): need = max(need, 2)
        if "exec" in p.w and (c.dpp): need = max(need, 5)
        if "exec" in p.w and c.mn.startswith(("v_readlane", "v_readfirstlane", "v_writelane", "v_permlane")): need = max(need, 4)
        if any(m.startswith(("op_sel:", "dst_sel")) for m in p.mods) and not p.mn.startswith("v_pk_") and c.is_valu and (vw & (c.r | c.w)): need = max(need, 1)
    if p.is_salu and "m0" in p.w and (c.lds_dma or "addtid" in c.mn): need = max(need, 1)
    if p.wide_store and (p.sdata & c.w): need = max(need, 2)
    return need

class Kern:
    def __init__(self, name, vlimit=256):
        self.name = name; self.items = []
        self.v = Regs("v", vlimit); self.s = Regs("s", 102); self.a = Regs("a", 256)
        self.uid = 0
    def I(self, text):
        for line in text.split("\n"):
            t = line.strip()
            if not t: continue
            if t.startswith(";"): self.items.append(("c", t)); continue
            if t.endswith(":"): self.items.append(("l", t[:-1])); continue
            if t.startswith("."): self.items.append(("d", t)); continue
            self.items.append(("i", Ins(t)))
    def L(self, label): self.items.append(("l", label))
    def cstamp(self, i):
        if STAMP[0]:
            self.I(f"s_memtime s[{82+2*i}:{83+2*i}]\ns_waitcnt lgkmcnt(0)")
    def stamp(self, i):
        if STAMP[0]:
            self.I(f"s_memrealtime s[{82+2*i}:{83+2*i}]\ns_memtime s[98:99]\ns_waitcnt lgkmcnt(0)\ns_mov_b32 s{83+2*i}, s98")
    def end(self, kidx):
        if STAMP[0]:
            self.I(f"""s_waitcnt vmcnt(0) lgkmcnt(0)
            s_memrealtime s[96:97]
            s_memtime s[98:99]
            s_load_dwordx2 s[100:101], s[0:1], 88
            s_waitcnt lgkmcnt(0)
            s_mov_b32 s97, s98
            v_lshrrev_b32 v0, 6, v0
            v_lshlrev_b32 v0, 5, v0
            s_lshl_b32 s98, s2, 9
            s_add_u32 s98, s98, {0x8000000 + kidx * 0x100000}
            v_add_u32 v0, s98, v0""")
            for i in range(8):
                self.I(f"v_mov_b32 v{2+i}, s{82+2*i}")
            self.I("global_store_dwordx4 v0, v[2:5], s[100:101]")
            self.I("global_store_dwordx4 v0, v[6:9], s[100:101] offset:16")
            for i in range(8):
                self.I(f"v_mov_b32 v{10+i}, s{83+2*i}")
            self.I("global_store_dwordx4 v0, v[10:13], s[100:101] offset:256")
            self.I("global_store_dwordx4 v0, v[14:17], s[100:101] offset:272")
        self.I("s_endpgm")
    def label(self, base):
        self.uid += 1
        return f"L_{self.name}_{base}_{self.uid}"
    def _cfg(self):
        idx = [i for i, it in enumerate(self.items) if it[0] == "i"]
        pos = {i: n for n, i in enumerate(idx)}
        lab = {}
        pending = []
        for i, it in enumerate(self.items):
            if it[0] == "l": pending.append(it[1])
            elif it[0] == "i":
                for l in pending: lab[l] = pos[i]
                pending = []
        ins = [self.items[i][1] for i in idx]
        succ = [[] for _ in ins]
        for n, x in enumerate(ins):
            if x.mn == "s_endpgm": continue
            if x.is_branch:
                succ[n].append(lab[x.ops[0]])
                if x.mn == "s_branch": continue
            if n + 1 < len(ins): succ[n].append(n + 1)
        return idx, ins, succ, lab
    def fix_hazards(self):
        total = 0
        while True:
            idx, ins, succ, lab = self._cfg()
            pred = [[] for _ in ins]
            for n, ss in enumerate(succ):
                for m in ss: pred[m].append(n)
            inserts = []
            n = 0
            last_fixed = -100
            for n, c in enumerate(ins):
                if c.mn in ("s_nop",): continue
                need = 0
                stack = [(p, 0) for p in pred[n]]
                seen = {}
                while stack:
                    p, el = stack.pop()
                    if seen.get(p, 99) <= el: continue
                    seen[p] = el
                    rq = required(ins[p], c)
                    if rq - el > need: need = rq - el
                    el2 = el + ins[p].states
                    if el2 < 13:
                        for q in pred[p]: stack.append((q, el2))
                if need > 0 and n - last_fixed > 14:
                    inserts.append((idx[n], need)); last_fixed = n
            if not inserts: break
            for at, need in reversed(inserts):
                self.items.insert(at, ("i", Ins(f"s_nop {need-1}")))
                total += need
        return total
    def check_waits(self):
        idx, ins, succ, lab = self._cfg()
        targets = set(lab.values())
        seen = set()
        work = [(0, (), ())]
        errs = set()
        while work:
            n, vm, lg = work.pop()
            while True:
                if n in targets:
                    key = (n, vm, lg)
                    if key in seen: break
                    seen.add(key)
                    if len(seen) > 20000: raise RuntimeError("wait check: too many states")
                x = ins[n]
                touched = x.r | x.w
                for e in vm + lg:
                    if "junk" in x.text and not (e[0] & x.r): continue
                    if e[0] & touched:
                        errs.add((n, x.text, tuple(sorted(e[0] & touched))))
                if x.mn == "s_waitcnt":
                    t = x.text.split(";")[0]
                    m = re.search(r"vmcnt\((\d+)\)", t)
                    if m:
                        k = int(m.group(1)); vm = vm[len(vm) - k:] if k < len(vm) else vm
                        if k == 0: vm = ()
                    m = re.search(r"lgkmcnt\((\d+)\)", t)
                    if m:
                        k = int(m.group(1))
                        if k == 0: lg = ()
                        elif not any(e[1] for e in lg) and k < len(lg): lg = lg[len(lg) - k:]
                elif x.is_vmem:
                    vm = (vm + ((frozenset(x.w), False),))[-64:]
                elif x.is_ds:
                    lg = (lg + ((frozenset(x.w), False),))[-40:]
                elif x.is_smem:
                    lg = (lg + ((frozenset(x.w), True),))[-40:]
                ss = succ[n]
                if not ss: break
                for m in ss[:-1]: work.append((m, vm, lg))
                n = ss[-1]
        if errs:
            for e in sorted(errs): print("WAIT ERROR", self.name, e)
            raise RuntimeError("waitcnt check failed")
    def text(self):
        out = [f".globl {self.name}", ".p2align 8", f".type {self.name},@function", f"{self.name}:"]
        for k, x in self.items:
            if k == "i": out.append("    " + x.text)
            elif k == "l": out.append(x + ":")
            else: out.append("    " + x)
        return "\n".join(out) + "\n"
    def desc(self, nv=None, na=None):
        nv = nv or self.v.hi; na = self.a.hi if na is None else na
        acc = (nv + 3) // 4 * 4
        tot = acc + na if na else nv
        return f""".p2align 6
.amdhsa_kernel {self.name}
  .amdhsa_next_free_vgpr {tot}
  .amdhsa_next_free_sgpr 102
  .amdhsa_accum_offset {acc}
  .amdhsa_group_segment_fixed_size 0
  .amdhsa_kernarg_size 96
  .amdhsa_user_sgpr_count 2
  .amdhsa_user_sgpr_kernarg_segment_ptr 1
  .amdhsa_system_sgpr_workgroup_id_x 1
  .amdhsa_float_denorm_mode_32 3
  .amdhsa_float_denorm_mode_16_64 3
.end_amdhsa_kernel
"""

def build(kerns, launches, header=""):
    out = header
    for (n, g, b, lds) in launches:
        out += f"; @launch kernel={n} grid=({g},1,1) block=({b},1,1) lds={lds}\n"
    out += '.amdgcn_target "amdgcn-amd-amdhsa--gfx950"\n.text\n'
    for k in kerns:
        nn = k.fix_hazards()
        k.check_waits()
        out += k.text()
    out += '.section .rodata,"a"\n'
    for k in kerns: out += k.desc()
    return out
```

```python
from common import *
import sync
ST = "sc1"
ATT_LDS = 4 * 4 * 3 * 1024 + 64

def emit_attn(k, sID, kidx, pfx="at", prio=0, finish=None):
    sWS = 4
    sWV, sHD, sQB, sJ, sKO, sXO, sVO, sKB, sXB, sVB, sCNT, sT0, sT1, sRETRY = range(8, 22)
    k.v.next = 1
    vL = k.v.alloc(); vK = k.v.alloc(); vX = k.v.alloc(); vV = k.v.alloc(); vT0 = k.v.alloc(); vT1 = k.v.alloc()
    O = k.v.alloc(64, 4)
    Sb = [k.v.alloc(16, 4) for _ in range(2)]
    P = k.v.alloc(8, 4)
    Qm = [k.v.alloc(4, 4) for _ in range(4)]
    Qx = [k.v.alloc(2, 2) for _ in range(4)]
    Qn = k.v.alloc(20, 4)
    Km = [k.v.alloc(4, 4) for _ in range(4)]
    Vf = [k.v.alloc(8, 4) for _ in range(4)]
    Kx = [k.v.alloc(2, 2) for _ in range(4)]
    k.stamp(0)
    k.I(f"""
    s_load_dwordx2 s[24:25], s[0:1], {KA_WS}
    v_and_b32 {v(vL)}, 63, v0
    v_lshrrev_b32 {v(vT0)}, 6, v0
    s_and_b32 s{sHD}, s{sID}, 7
    v_readfirstlane_b32 s{sWV}, {v(vT0)}
    s_lshl_b32 s{sHD}, s{sHD}, 2
    s_bfe_u32 s{sT0}, s{sID}, 0x20003
    s_add_u32 s{sHD}, s{sHD}, s{sT0}
    s_lshr_b32 s{sQB}, s{sID}, 5
    v_lshlrev_b32 {v(vK)}, 4, {v(vL)}
    v_cmp_gt_u32 vcc, 32, {v(vL)}
    v_lshlrev_b32 {v(vT0)}, 2, {v(vL)}
    v_mov_b32 {v(vT1)}, {hx(OOB)}
    v_cndmask_b32 {v(vX)}, {v(vT1)}, {v(vT0)}, vcc
    v_and_b32 {v(vV)}, 0x13, {v(vL)}
    v_and_b32 {v(vT0)}, 4, {v(vL)}
    v_lshl_or_b32 {v(vV)}, {v(vT0)}, 1, {v(vV)}
    v_bfe_u32 {v(vT0)}, {v(vL)}, 3, 1
    v_lshl_or_b32 {v(vV)}, {v(vT0)}, 2, {v(vV)}
    v_cmp_gt_u32 vcc, 19, {v(vV)}
    v_lshrrev_b32 {v(vT0)}, 5, {v(vL)}
    v_mul_u32_u24 {v(vT0)}, 304, {v(vT0)}
    v_lshl_add_u32 {v(vV)}, {v(vV)}, 4, {v(vT0)}
    v_cndmask_b32 {v(vV)}, {v(vT1)}, {v(vV)}, vcc
    s_lshl_b32 s{sT0}, s{sHD}, 6
    s_lshl_b32 s{sT1}, s{sWV}, 4
    s_add_u32 s{sT1}, s{sT1}, s{sT0}
    s_lshl_b32 s{sKB}, s{sT1}, 10
    s_add_u32 s{sKB}, s{sKB}, {WS_KM}
    s_lshl_b32 s{sXB}, s{sT1}, 7
    s_add_u32 s{sXB}, s{sXB}, {WS_KX}
    s_mul_i32 s{sVB}, s{sT1}, {2*VT_STEP}
    s_add_u32 s{sVB}, s{sVB}, {WS_VT}
    s_mov_b32 s22, 2
    s_waitcnt lgkmcnt(0)
    """)
    srd(k, sWS, 24, WS_SIZE)
    k.I(f"""
    s_lshl_b32 s{sT0}, s{sHD}, 6
    s_lshl_b32 s{sT1}, s{sQB}, 2
    s_add_u32 s{sT0}, s{sT0}, s{sT1}
    s_lshl_b32 s{sT1}, s{sT0}, 7
    s_add_u32 s{sT1}, s{sT1}, {WS_QX}
    s_lshl_b32 s{sT0}, s{sT0}, 10
    s_mov_b32 s{sRETRY}, 0
    """)
    for i in range(4):
        k.I(f"buffer_load_dwordx4 {v(Qm[i],4)}, {v(vK)}, {s(sWS,4)}, s{sT0} offen offset:{1024*i}")
        k.I(f"buffer_load_dword {v(Qx[i])}, {v(vX)}, {s(sWS,4)}, s{sT1} offen offset:{128*i}")
    k.I(f"s_add_u32 s23, s{sT0}, {32*1024}\ns_add_u32 s30, s{sT1}, {32*128}")
    for i in range(4):
        k.I(f"v_mov_b32 {v(Qx[i]+1)}, 0")
        k.I(f"v_mov_b32 {v(Kx[i]+1)}, 0x3f803f80")
    def offs():
        return f"""
        s_lshl_b32 s{sKO}, s{sJ}, 10
        s_add_u32 s{sKO}, s{sKO}, s{sKB}
        s_lshl_b32 s{sXO}, s{sJ}, 7
        s_add_u32 s{sXO}, s{sXO}, s{sXB}
        s_mul_i32 s{sVO}, s{sJ}, {2*VT_STEP}
        s_add_u32 s{sVO}, s{sVO}, s{sVB}
        s_add_u32 s{sJ}, s{sJ}, 1
        s_and_b32 s{sJ}, s{sJ}, 15
        """.strip().split("\n")
    def loads(b):
        return [f"buffer_load_dwordx4 {v(Km[b],4)}, {v(vK)}, {s(sWS,4)}, s{sKO} offen",
                f"buffer_load_dword {v(Kx[b])}, {v(vX)}, {s(sWS,4)}, s{sXO} offen",
                f"buffer_load_dwordx4 {v(Vf[b],4)}, {v(vV)}, {s(sWS,4)}, s{sVO} offen",
                f"buffer_load_dwordx4 {v(Vf[b]+4,4)}, {v(vV)}, {s(sWS,4)}, s{sVO} offen offset:{VT_STEP}"]
    Lmain = f"L_{pfx}_main"; Lloop = f"L_{pfx}_loop"; Lfb = f"L_{pfx}_fb"; Ldone = f"L_{pfx}_done"
    k.L(Lmain)
    k.I(f"s_lshl_b32 s{sJ}, s{sQB}, 1\ns_and_b32 s{sJ}, s{sJ}, 15")
    for b in range(3):
        for x in offs() + loads(b): k.I(x)
    for i in range(4):
        k.I(f"buffer_load_dwordx4 {v(Qn+4*i,4)}, {v(vK)}, {s(sWS,4)}, s23 offen offset:{1024*i}")
        k.I(f"buffer_load_dword {v(Qn+16+i)}, {v(vX)}, {s(sWS,4)}, s30 offen offset:{128*i}")
    k.L(f"L_{pfx}_round")
    for r in range(64): k.I(f"v_mov_b32 {v(O+r)}, 0")
    for r in range(4):
        k.I(f"v_mov_b32 {v(P+4+r)}, 0")
        k.I(f"v_mov_b32 {v(Vf[3]+4+r)}, 0")
    k.I(f"v_mov_b32 {v(vT0)}, {ATT_LDS-64}\nv_mov_b32 {v(vT1)}, 0\nds_write_b32 {v(vT0)}, {v(vT1)}")
    def S1(sb, b, i): return f"v_mfma_f32_32x32x16_bf16 {v(Sb[sb],16)}, {v(Km[b],4)}, {v(Qm[i],4)}, 0"
    def S2(sb, b, i): return f"v_mfma_f32_32x32x8_bf16 {v(Sb[sb],16)}, {v(Kx[b],2)}, {v(Qx[i],2)}, {v(Sb[sb],16)}"
    def PV(half, b, i): return f"v_mfma_f32_32x32x16_bf16 {v(O+16*i,16)}, {v(Vf[b]+4*half,4)}, {v(P+4*half,4)}, {v(O+16*i,16)}"
    def grp(sb, g):
        r = Sb[sb] + 4 * g
        return [f"v_exp_f32 {v(r+j)}, {v(r+j)}" for j in range(4)] + \
               [f"v_cvt_pk_bf16_f32 {v(P+2*g)}, {v(r)}, {v(r+1)}", f"v_cvt_pk_bf16_f32 {v(P+2*g+1)}, {v(r+2)}, {v(r+3)}"]
    k.I(f"s_waitcnt vmcnt(16)\ns_setprio {prio}")
    k.stamp(1)
    k.I(S1(0, 0, 0)); k.I(S2(0, 0, 0))
    k.I(f"s_mov_b32 s{sCNT}, 4")
    k.I("s_nop 7")
    k.I(".p2align 3")
    k.L(Lloop)
    for t in range(4):
        for i in range(4):
            sb = i & 1
            nb, ni = (t, i + 1) if i < 3 else ((t + 1) & 3, 0)
            pb, pi = (t, i - 1) if i > 0 else ((t - 1) & 3, 3)
            extra = [[], [], [], []]
            if i == 0:
                o = offs(); extra[0] = o[:2]; extra[1] = o[2:4]; extra[2] = o[4:6]; extra[3] = o[6:]
            if i == 1:
                ld = loads((t + 3) & 3); extra = [["s_setprio 3"] + ld[:2], ld[2:] + [f"s_setprio {prio}"], [], []]
            if i == 3: k.I("s_waitcnt vmcnt(8)")
            ms = [S1(sb ^ 1, nb, ni), PV(1, pb, pi), S2(sb ^ 1, nb, ni), PV(0, t, i)]
            for g in range(4):
                k.I(ms[g])
                for x in extra[g]: k.I(x)
                if t == 3 and i == 3 and g == 3:
                    k.I(f"s_sub_u32 s{sCNT}, s{sCNT}, 1\ns_cmp_lg_u32 s{sCNT}, 0")
                for x in grp(sb, g): k.I(x)
    k.I(f"s_cbranch_scc1 {Lloop}")
    k.I(PV(1, 3, 3))
    k.I("s_setprio 3")
    k.stamp(2)
    k.I(f"""
    s_mul_i32 s{sT0}, s{sWV}, 3072
    v_add_u32 {v(vT0)}, s{sT0}, {v(vK)}
    s_mul_i32 s{sT0}, s{sWV}, 12288
    v_add_u32 {v(vT1)}, s{sT0}, {v(vK)}
    """)
    for i in range(4):
        for c in range(3):
            k.I(f"ds_write_b128 {v(vT0)}, {v(O+16*i+4*c,4)} offset:{12288*i+1024*c}")
    k.I("s_waitcnt vmcnt(0) lgkmcnt(0)\ns_barrier")
    M = O
    for w in range(4):
        for c in range(3):
            k.I(f"ds_read_b128 {v(M+12*w+4*c,4)}, {v(vT1)} offset:{3072*w+1024*c}")
    k.I(f"""
    s_lshl_b32 s{sT0}, s{sQB}, 2
    s_add_u32 s{sT0}, s{sT0}, s{sWV}
    s_mul_i32 s{sT0}, s{sT0}, 36
    s_lshr_b32 s{sT1}, s{sHD}, 3
    s_add_u32 s{sT1}, s{sT1}, s{sT0}
    s_add_u32 s{sT1}, s{sT1}, 32
    s_lshl_b32 s{sT1}, s{sT1}, 10
    s_bfe_u32 s{sKO}, s{sHD}, 0x10002
    s_lshl_b32 s{sKO}, s{sKO}, 9
    s_add_u32 s{sT1}, s{sT1}, s{sKO}
    s_and_b32 s{sKO}, s{sHD}, 3
    s_lshl_b32 s{sKO}, s{sKO}, 2
    s_add_u32 s{sT1}, s{sT1}, s{sKO}
    s_add_u32 s{sT1}, s{sT1}, {WS_O}
    s_add_u32 s{sT0}, s{sT0}, s{sHD}
    s_lshl_b32 s{sT0}, s{sT0}, 10
    s_add_u32 s{sT0}, s{sT0}, {WS_O}
    v_lshlrev_b32 {v(Sb[1])}, 2, {v(vX)}
    v_cmp_gt_u32 vcc, 32, {v(vL)}
    v_cndmask_b32 {v(Sb[1])}, {v(vX)}, {v(Sb[1])}, vcc
    s_waitcnt lgkmcnt(0)
    """)
    for p in range(11):
        k.I(f"v_add_f32 {v(M+p)}, {v(M+p)}, {v(M+12+p)}")
        k.I(f"v_add_f32 {v(M+24+p)}, {v(M+24+p)}, {v(M+36+p)}")
    for p in range(11):
        k.I(f"v_add_f32 {v(M+p)}, {v(M+p)}, {v(M+24+p)}")
    vLs = Sb[0]; vR = Sb[0] + 2
    k.I(f"""
    v_mov_b32 {v(vLs)}, {v(M+10)}
    v_mov_b32 {v(vLs+1)}, {v(M+10)}
    v_permlane32_swap_b32 {v(vLs)}, {v(vLs+1)}
    v_rcp_f32 {v(vR)}, {v(vLs)}
    s_mov_b32 s{sKO}, {hx(f2u(2.0**-32))}
    s_mov_b32 s{sXO}, {hx(f2u(2.0**64))}
    v_cmp_nle_f32 s[26:27], s{sKO}, {v(vLs)}
    v_cmp_nge_f32 s[28:29], s{sXO}, {v(vLs)}
    s_or_b64 s[26:27], s[26:27], s[28:29]
    s_mov_b32 s{sKO}, 0x207
    """)
    for p in range(10):
        k.I(f"v_mul_f32 {v(M+p)}, {v(M+p)}, {v(vR)}")
    for r in range(10):
        k.I(f"v_cmp_class_f32 s[28:29], {v(M+r)}, s{sKO}")
        k.I(f"s_or_b64 s[26:27], s[26:27], s[28:29]")
    for p in range(5):
        k.I(f"v_cvt_pk_bf16_f32 {v(P+p)}, {v(M+2*p)}, {v(M+2*p+1)}")
    k.I(f"buffer_store_dwordx4 {v(P,4)}, {v(vK)}, {s(sWS,4)}, s{sT0} offen {ST}")
    k.I(f"buffer_store_dword {v(P+4)}, {v(Sb[1])}, {s(sWS,4)}, s{sT1} offen {ST}")
    Lnf = f"L_{pfx}_nf"
    k.I(f"""
    v_mov_b32 {v(vT0)}, {ATT_LDS-64}
    s_cmp_lg_u32 s{sRETRY}, 0
    s_cbranch_scc1 {Lnf}
    s_cmp_eq_u64 s[26:27], 0
    s_cbranch_scc1 {Lnf}
    v_mov_b32 {v(vT1)}, 1
    ds_write_b32 {v(vT0)}, {v(vT1)}
    {Lnf}:
    s_waitcnt lgkmcnt(0)
    s_barrier
    ds_read_b32 {v(vT1)}, {v(vT0)}
    s_waitcnt lgkmcnt(0)
    v_readfirstlane_b32 s{sT0}, {v(vT1)}
    s_cmp_lg_u32 s{sT0}, 0
    s_cbranch_scc1 {Lfb}
    s_sub_u32 s22, s22, 1
    s_cmp_lg_u32 s22, 0
    s_cbranch_scc0 {Ldone}
    s_add_u32 s{sQB}, s{sQB}, 8
    s_mov_b32 s{sRETRY}, 0
    {"s_mov_b64 s[88:89], s[84:85]" if STAMP[0] else ""}
    {"s_mov_b64 s[90:91], s[86:87]" if STAMP[0] else ""}
    """)
    for i in range(4):
        for j in range(4): k.I(f"v_mov_b32 {v(Qm[i]+j)}, {v(Qn+4*i+j)}")
        k.I(f"v_mov_b32 {v(Qx[i])}, {v(Qn+16+i)}\nv_mov_b32 {v(Qx[i]+1)}, 0")
    k.I(f"s_branch L_{pfx}_round")
    k.L(Lfb)
    mx = O
    k.I(f"s_waitcnt vmcnt(0)\ns_mov_b32 s{sRETRY}, 1\ns_mov_b32 s{sJ}, 0\ns_mov_b32 s{sCNT}, 16")
    for i in range(4): k.I(f"v_mov_b32 {v(mx+i)}, 0xff800000")
    Lm = f"L_{pfx}_mx"
    k.L(Lm)
    for x in offs() + loads(0)[:2]: k.I(x)
    k.I("s_waitcnt vmcnt(0)")
    for i in range(4):
        k.I(S1(0, 0, i)); k.I(S2(0, 0, i))
        for j in range(8):
            k.I(f"v_max3_f32 {v(mx+i)}, {v(Sb[0]+2*j)}, {v(Sb[0]+2*j+1)}, {v(mx+i)}")
    k.I(f"s_sub_u32 s{sCNT}, s{sCNT}, 1\ns_cmp_lg_u32 s{sCNT}, 0\ns_cbranch_scc1 {Lm}")
    k.I(f"""
    s_lshl_b32 s{sT0}, s{sWV}, 10
    v_add_u32 {v(vT0)}, s{sT0}, {v(vK)}
    s_barrier
    ds_write_b128 {v(vT0)}, {v(mx,4)}
    v_and_b32 {v(vT0)}, 0x1f0, {v(vK)}
    s_waitcnt lgkmcnt(0)
    s_barrier
    """)
    t = O + 4
    for j in range(8):
        k.I(f"ds_read_b128 {v(t+4*j,4)}, {v(vT0)} offset:{512*j}")
    k.I("s_waitcnt lgkmcnt(0)\ns_barrier")
    k.I(f"v_cmp_gt_u32 vcc, 32, {v(vL)}")
    for i in range(4):
        for j in range(0, 8, 2):
            k.I(f"v_max3_f32 {v(mx+i)}, {v(t+4*j+i)}, {v(t+4*j+4+i)}, {v(mx+i)}")
        a0, a1, a2 = Sb[0], Sb[0] + 1, Sb[0] + 2
        k.I(f"""
        v_sub_f32 {v(mx+i)}, 0, {v(mx+i)}
        v_and_b32 {v(a0)}, 0xffff0000, {v(mx+i)}
        v_sub_f32 {v(mx+i)}, {v(mx+i)}, {v(a0)}
        v_and_b32 {v(a1)}, 0xffff0000, {v(mx+i)}
        v_sub_f32 {v(mx+i)}, {v(mx+i)}, {v(a1)}
        v_lshrrev_b32 {v(a0)}, 16, {v(a0)}
        v_or_b32 {v(a0)}, {v(a0)}, {v(a1)}
        v_lshrrev_b32 {v(a2)}, 16, {v(mx+i)}
        v_cndmask_b32 {v(Qx[i]+1)}, {v(a2)}, {v(a0)}, vcc
        """)
    k.I(f"s_branch {Lmain}")
    k.L(Ldone)
    k.I(f"""
    s_waitcnt vmcnt(0)
    s_barrier
    s_cmp_lg_u32 s{sWV}, 0
    s_cbranch_scc1 L_{pfx}_sg
    s_lshl_b32 s{sT0}, s{sQB}, 7
    s_add_u32 s{sT0}, s{sT0}, {sync.WS_CNT + 128*sync.CA}
    s_sub_u32 s{sT1}, s{sT0}, 1024
    s_mov_b32 s26, 1
    s_mov_b32 s27, 1
    s_atomic_add s26, s[24:25], s{sT0} glc
    s_atomic_add s27, s[24:25], s{sT1} glc
    s_waitcnt lgkmcnt(0)
    L_{pfx}_sg:
    """)
    finish(sWV)

def gen_attn(kidx=1):
    k = Kern("attn_kernel", vlimit=256)
    k.I("s_cmp_ge_u32 s2, 512\ns_cbranch_scc1 L_at_exit")
    emit_attn(k, 2, kidx)
    k.L("L_at_exit")
    k.I("s_endpgm")
    return k, ("attn_kernel", 512, 256, ATT_LDS)
```

```python
from common import *
import sync

NT = 5
WIMG = 4 * NT * 1024
XIMG = 16384
SLOT = WIMG + XIMG
ND = 4
NPRO = 2
ST = "sc1"
WS_C1P = 0x0BD0000

def gen_k1(kidx=0, code_label=None, code_bytes=0, vstore="lds"):
    k = Kern("k1_kernel", vlimit=256)
    sX, sW, sWS, sDB = 4, 8, 12, 44
    sRB, sCB, sWV, sROLE = 16, 17, 18, 19
    sCNT, sOW, sOX, sG, sDMA, sNXT, sLDW, sWSTEP, sT0, sT1 = 20, 21, 22, 23, 24, 25, 26, 27, 28, 29
    sC = 30
    sMT, sM0W, sM0X, sQ = 32, 33, 34, 35
    sAUX = 48
    k.v.next = 1
    vL = k.v.alloc(); vT0 = k.v.alloc(); vT1 = k.v.alloc()
    vWo = k.v.alloc(); vWo4 = k.v.alloc()
    vXo = [k.v.alloc() for _ in range(4)]
    vWa0 = k.v.alloc(); vXa0 = [k.v.alloc() for _ in range(4)]
    vWa = k.v.alloc(); vXa = [k.v.alloc() for _ in range(4)]
    acc = k.v.alloc(80, 4)
    Ab = [[k.v.alloc(4, 4) for t in range(NT)] for b in range(2)]
    Bb = [k.v.alloc(4, 4) for b in range(2)]
    ex = k.v.alloc(40, 4)
    Lend = "L_k1_end"
    k.I(f"""
    s_cmp_ge_u32 s2, 256
    s_cbranch_scc1 {Lend}
    """)
    k.stamp(0)
    k.I(f"""
    s_getpc_b64 s[64:65]
    L_k1_pc0:
    s_lshr_b32 s63, s2, 3
    v_lshlrev_b32 {v(vT0)}, 5, v0
    v_add_u32 {v(vT0)}, s63, {v(vT0)}
    v_lshlrev_b32 {v(vT0)}, 7, {v(vT0)}
    v_min_u32 {v(vT0)}, {Lend}-L_k1_pc0, {v(vT0)}
    s_load_dwordx4 s[36:39], s[0:1], {KA_X}
    s_mov_b64 exec, 0xff
    global_load_dword {v(ex+39)}, {v(vT0)}, s[64:65]
    s_mov_b64 exec, -1
    s_load_dwordx4 s[52:55], s[0:1], {KA_W1}
    s_load_dwordx2 s[58:59], s[0:1], {KA_GATE}
    s_load_dwordx4 s[40:43], s[0:1], {KA_DBG}
    v_and_b32 {v(vL)}, 63, v0
    v_lshrrev_b32 {v(vT0)}, 6, v0
    s_and_b32 s{sROLE}, s2, 3
    v_readfirstlane_b32 s{sWV}, {v(vT0)}
    s_bfe_u32 s{sT0}, s2, 0x10002
    s_bfe_u32 s{sRB}, s2, 0x30003
    s_lshl_b32 s{sT0}, s{sT0}, 3
    s_add_u32 s{sRB}, s{sRB}, s{sT0}
    s_lshr_b32 s{sCB}, s2, 6
    s_lshl_b32 s{sMT}, s{sRB}, 2
    s_add_u32 s{sMT}, s{sMT}, s{sWV}
    s_lshl_b32 s{sT0}, s{sCB}, 1
    s_add_u32 s{sG}, s{sRB}, s{sT0}
    s_add_u32 s{sG}, s{sG}, s{sROLE}
    s_cmp_ge_u32 s{sG}, 18
    s_cselect_b32 s{sT0}, 18, 0
    s_sub_u32 s{sG}, s{sG}, s{sT0}
    s_cmp_ge_u32 s{sG}, 9
    s_cselect_b32 s{sT0}, 9, 0
    s_sub_u32 s{sG}, s{sG}, s{sT0}
    s_cmp_eq_u32 s{sROLE}, 3
    s_mov_b32 s{sLDW}, 3456
    s_cselect_b32 s{sLDW}, 1152, s{sLDW}
    s_mul_i32 s{sT0}, s{sROLE}, 1152
    s_cselect_b32 s{sT0}, 0, s{sT0}
    s_mul_i32 s{sT1}, s{sCB}, 288
    s_add_u32 s{sT1}, s{sT1}, s{sT0}
    s_lshl_b32 s{sWSTEP}, s{sLDW}, 6
    v_lshrrev_b32 {v(vT0)}, 2, v0
    v_mul_lo_u32 {v(vWo)}, {v(vT0)}, s{sLDW}
    v_and_b32 {v(vT1)}, 3, v0
    v_lshl_add_u32 {v(vWo)}, {v(vT1)}, 4, {v(vWo)}
    v_add_u32 {v(vWo)}, s{sT1}, {v(vWo)}
    v_cmp_gt_u32 vcc, 2, {v(vT1)}
    v_mov_b32 {v(vT0)}, {hx(OOB)}
    v_cndmask_b32 {v(vWo4)}, {v(vT0)}, {v(vWo)}, vcc
    v_lshrrev_b32 {v(vT0)}, 3, {v(vL)}
    s_lshl_b32 s{sT0}, s{sMT}, 5
    v_add_u32 {v(vXa[0])}, s{sT0}, {v(vT0)}
    v_mul_u32_u24 {v(vXa[0])}, 1152, {v(vXa[0])}
    v_lshrrev_b32 {v(vT0)}, 4, {v(vL)}
    v_xor_b32 {v(vT0)}, {v(vT0)}, {v(vL)}
    v_and_b32 {v(vT0)}, 7, {v(vT0)}
    v_lshl_add_u32 {v(vXo[0])}, {v(vT0)}, 4, {v(vXa[0])}
    v_xor_b32 {v(vT0)}, 4, {v(vT0)}
    v_lshl_add_u32 {v(vXo[1])}, {v(vT0)}, 4, {v(vXa[0])}
    v_add_u32 {v(vXo[1])}, {8*1152}, {v(vXo[1])}
    v_add_u32 {v(vXo[2])}, {16*1152}, {v(vXo[0])}
    v_add_u32 {v(vXo[3])}, {16*1152}, {v(vXo[1])}
    s_mul_i32 s{sM0W}, s{sWV}, 5120
    s_lshl_b32 s{sM0X}, s{sWV}, 12
    s_add_u32 s{sM0X}, s{sM0X}, {WIMG}
    s_mul_i32 s{sOW}, s{sG}, s{sWSTEP}
    s_lshl_b32 s{sOX}, s{sG}, 7
    s_mov_b32 s{sDMA}, 0
    s_lshl_b32 s{sT0}, s{sROLE}, 2
    s_add_u32 s{sT0}, s{sT0}, s{sCB}
    s_lshl_b32 s{sT0}, s{sT0}, 3
    s_lshl_b32 s{sQ}, s{sRB}, 7
    s_add_u32 s{sQ}, s{sQ}, s{sT0}
    v_lshrrev_b32 {v(vWa)}, 5, v0
    v_add_u32 {v(vWa)}, s{sQ}, {v(vWa)}
    v_mul_u32_u24 {v(vXa[1])}, 1152, {v(vWa)}
    v_and_b32 {v(vT0)}, 31, v0
    v_lshlrev_b32 {v(vXa[2])}, 4, {v(vT0)}
    v_lshlrev_b32 {v(vXa[3])}, 2, {v(vT0)}
    v_add_u32 {v(vXa[0])}, {v(vXa[1])}, {v(vXa[2])}
    v_add_u32 {v(vXa[1])}, {v(vXa[1])}, {v(vXa[3])}
    s_waitcnt lgkmcnt(0)
    """)
    srd(k, sX, 36, S * D * 2)
    srd(k, sAUX, 58, D * 2)
    xs, gs = acc, acc + 12
    k.I(f"""
    buffer_load_dwordx4 {v(xs,4)}, {v(vXa[0])}, {s(sX,4)}, 0 offen
    buffer_load_dwordx4 {v(xs+4,4)}, {v(vXa[0])}, {s(sX,4)}, 0 offen offset:512
    buffer_load_dword {v(xs+8)}, {v(vXa[1])}, {s(sX,4)}, 0 offen offset:1024
    buffer_load_dwordx4 {v(gs,4)}, {v(vXa[2])}, {s(sAUX,4)}, 0 offen
    buffer_load_dwordx4 {v(gs+4,4)}, {v(vXa[2])}, {s(sAUX,4)}, 0 offen offset:512
    buffer_load_dword {v(gs+8)}, {v(vXa[3])}, {s(sAUX,4)}, 0 offen offset:1024
    s_cmp_eq_u32 s{sROLE}, 3
    s_cselect_b32 s{sW}, s52, s38
    s_cselect_b32 s{sW+1}, s53, s39
    s_mov_b32 s{sW+2}, {D*3*D*2}
    s_cselect_b32 s{sW+2}, {D*D*2}, s{sW+2}
    s_and_b32 s{sW+1}, s{sW+1}, 0xffff
    s_mov_b32 s{sW+3}, 0x00020000
    """)

    def dma_list():
        g = []
        for i in range(4):
            g.append((f"s_add_u32 m0, s{sT1}, {i*1024}", f"buffer_load_dwordx4 {v(vXo[i])}, {s(sX,4)}, s{sOX} offen lds"))
        for i in range(5):
            g.append((f"s_add_u32 m0, s{sT0}, {i*1024 - i*64}",
                      f"buffer_load_dwordx4 {v(vWo if i < 4 else vWo4)}, {s(sW,4)}, s{sOW} offen offset:{64*i} lds"))
        return g
    dma_pre = f"s_add_u32 s{sT0}, s{sDMA}, s{sM0W}\ns_add_u32 s{sT1}, s{sDMA}, s{sM0X}"
    dma_post = f"""
    s_add_u32 s{sG}, s{sG}, 1
    s_cmp_eq_u32 s{sG}, 9
    s_cselect_b32 s{sG}, 0, s{sG}
    s_mul_i32 s{sOW}, s{sG}, s{sWSTEP}
    s_lshl_b32 s{sOX}, s{sG}, 7
    s_add_u32 s{sDMA}, s{sDMA}, {SLOT}
    s_cmp_eq_u32 s{sDMA}, {SLOT*ND}
    s_cselect_b32 s{sDMA}, 0, s{sDMA}
    """
    k.I(f"s_mov_b32 s60, s{sG}")
    k.I(dma_pre)
    for m, ld in dma_list():
        k.I(m); k.I("s_nop 0"); k.I(ld)
    k.I(dma_post)
    srd(k, sWS, 42, WS_SIZE)
    srd(k, sDB, 40, 256)
    u = acc + 24; a3 = acc + 28
    k.I(f"v_mov_b32 {v(a3)}, 0\nv_mov_b32 {v(a3+1)}, 0\nv_mov_b32 {v(a3+2)}, 0\n{dma_pre}\ns_waitcnt vmcnt(9)")
    dl = dma_list()
    for j in range(9):
        k.I(dl[j][0])
        k.I(f"v_lshlrev_b32 {v(u)}, 16, {v(xs+j)}")
        k.I(dl[j][1])
        k.I(f"""
        v_and_b32 {v(u+1)}, 0xffff0000, {v(xs+j)}
        v_lshlrev_b32 {v(u+2)}, 16, {v(gs+j)}
        v_and_b32 {v(u+3)}, 0xffff0000, {v(gs+j)}
        v_add_f32 {v(a3)}, {v(a3)}, {v(u)}
        v_fmac_f32 {v(a3+1)}, {v(u)}, {v(u)}
        v_fmac_f32 {v(a3+2)}, {v(u)}, {v(u+2)}
        v_add_f32 {v(a3)}, {v(a3)}, {v(u+1)}
        v_fmac_f32 {v(a3+1)}, {v(u+1)}, {v(u+1)}
        v_fmac_f32 {v(a3+2)}, {v(u+1)}, {v(u+3)}
        """)
    k.I(dma_post)
    for sh in (1, 2, 4, 8):
        for r in range(3):
            k.I(f"v_add_f32_dpp {v(a3+r)}, {v(a3+r)}, {v(a3+r)} row_ror:{sh} row_mask:0xf bank_mask:0xf")
    for r in range(3): k.I(f"v_mov_b32 {v(u+r)}, {v(a3+r)}")
    for r in range(3): k.I(f"v_permlane16_swap_b32 {v(a3+r)}, {v(u+r)}")
    for r in range(3): k.I(f"v_add_f32 {v(a3+r)}, {v(a3+r)}, {v(u+r)}")
    k.I(f"""
    v_mul_f32 {v(a3)}, {hx(f2u(-1.0/576))}, {v(a3)}
    v_mul_f32 {v(a3+1)}, {hx(f2u(1.0/576))}, {v(a3+1)}
    v_mul_f32 {v(a3+2)}, {hx(f2u(-LOG2E))}, {v(a3+2)}
    v_fma_f32 {v(a3+1)}, -{v(a3)}, {v(a3)}, {v(a3+1)}
    v_exp_f32 {v(a3+2)}, {v(a3+2)}
    v_max_f32 {v(a3+1)}, 0, {v(a3+1)}
    v_add_f32 {v(a3+1)}, {hx(f2u(1e-5))}, {v(a3+1)}
    v_add_f32 {v(a3+2)}, 1.0, {v(a3+2)}
    v_rsq_f32 {v(u)}, {v(a3+1)}
    v_rcp_f32 {v(u+2)}, {v(a3+2)}
    v_sub_f32 {v(u+3)}, 0, {v(a3)}
    v_mul_f32 {v(u+1)}, {v(u)}, {v(a3)}
    v_lshlrev_b32 {v(vWa)}, 4, {v(vWa)}
    s_mov_b32 s{sT0}, {WS_ST1}
    s_mov_b32 exec_lo, 1
    s_mov_b32 exec_hi, 1
    buffer_store_dwordx4 {v(u,4)}, {v(vWa)}, {s(sWS,4)}, s{sT0} offen {ST}
    s_mov_b64 exec, -1
    """)
    k.I(f"""
    v_and_b32 {v(vT0)}, 31, {v(vL)}
    v_bfe_u32 {v(vT1)}, {v(vL)}, 1, 3
    v_lshrrev_b32 {v(vWa)}, 5, {v(vL)}
    v_xor_b32 {v(vT1)}, {v(vT1)}, {v(vWa)}
    v_lshlrev_b32 {v(vT1)}, 4, {v(vT1)}
    v_lshlrev_b32 {v(vT0)}, 7, {v(vT0)}
    v_add_u32 {v(vT0)}, s{sM0X}, {v(vT0)}
    """)
    for ks in range(4):
        k.I(f"v_xor_b32 {v(vXa0[ks])}, {32*ks}, {v(vT1)}")
        k.I(f"v_add_u32 {v(vXa0[ks])}, {v(vXa0[ks])}, {v(vT0)}")

    def reads(ks, buf):
        r = [f"ds_read_b128 {v(Bb[buf],4)}, {v(vXa[ks])}"]
        for t in range(NT):
            for rd in range(2):
                r.append(f"ds_read_b64_tr_b16 {v(Ab[buf][t]+2*rd,2)}, {v(vWa)} offset:{ks*5120 + t*1024 + rd*256}")
        return r
    def set_addr():
        r = [f"v_add_u32 {v(vWa)}, s{sNXT}, {v(vWa0)}"]
        for ks in range(4): r.append(f"v_add_u32 {v(vXa[ks])}, s{sNXT}, {v(vXa0[ks])}")
        r.append(f"s_add_u32 s{sNXT}, s{sNXT}, {SLOT}")
        r.append(f"s_cmp_eq_u32 s{sNXT}, {SLOT*ND}")
        r.append(f"s_cselect_b32 s{sNXT}, 0, s{sNXT}")
        return r
    def mfma(role, t, buf, first):
        c = "0" if first else v(acc + 16 * t, 16)
        if role == "v":
            return f"v_mfma_f32_32x32x16_bf16 {v(acc+16*t,16)}, {v(Bb[buf],4)}, {v(Ab[buf][t],4)}, {c}"
        return f"v_mfma_f32_32x32x16_bf16 {v(acc+16*t,16)}, {v(Ab[buf][t],4)}, {v(Bb[buf],4)}, {c}"
    vCs = ex; vOnes = ex + 5
    def stage(role, first, dma, vm, last, cs=False, extra=None, post_barrier=None, pre_barrier=None):
        d = []
        for q in range(dma):
            dl = dma_list()
            dl[0] = ((dma_post + "\n" if q else "") + dma_pre + "\n" + dl[0][0], dl[0][1])
            d += dl
        if extra: d = list(extra)
        every = (0, 2, 4) if len(d) <= 9 else (0, 1, 2, 3, 4)
        for ks in range(4):
            buf = ks & 1
            if ks < 3:
                rd = reads(ks + 1, buf ^ 1)
                split = [3, 3, 3, 2, 0]
                issued = 0
                for t in range(NT):
                    if t in (0, 1, 3):
                        need = t if t == 0 else t + 1
                        k.I(f"s_waitcnt lgkmcnt({min(15, 2*(NT-1-need) + issued)})")
                    k.I(mfma(role, t, buf, first and ks == 0))
                    if d and t in every: k.I(d[0][0])
                    for x in rd[issued:issued + split[t]]: k.I(x)
                    issued += split[t]
                    if d and t in every:
                        k.I(d[0][1]); d.pop(0)
                        if t == 4 and len(every) == 5 and d:
                            k.I(d[0][0]); k.I(d[0][1]); d.pop(0)
            else:
                if dma: k.I(dma_post)
                rd = [] if last else reads(0, buf ^ 1)
                split = [0, 0, 4, 4, 3]
                issued = 0
                for t in range(NT):
                    if t == 0: k.I(f"s_waitcnt lgkmcnt(8)")
                    if t == 1: k.I(f"s_waitcnt lgkmcnt(0)")
                    k.I(mfma(role, t, buf, False))
                    if t == 1 and not last:
                        for x in set_addr(): k.I(x)
                        if pre_barrier: pre_barrier()
                        k.I(f"s_waitcnt vmcnt({vm})")
                        k.I("s_barrier")
                        if post_barrier: post_barrier()
                    if not last:
                        for x in rd[issued:issued + split[t]]: k.I(x)
                        issued += split[t]
            if cs:
                for j in range(4):
                    for t in range(NT):
                        k.I(f"v_dot2_f32_bf16 {v(vCs+t)}, {v(Ab[buf][t]+j)}, {v(vOnes)}, {v(vCs+t)}")
        assert not d
    def start(perm):
        tr_lane_addr(k, vWa0, vL, vT0, vT1, 512, perm=perm)
        k.I(f"s_mov_b32 s{sNXT}, 0")
        for x in set_addr(): k.I(x)
        k.I(f"s_waitcnt vmcnt({9*(NPRO-1)+1})")
        k.I("s_barrier")
        k.stamp(2)
        for x in reads(0, 0): k.I(x)
    def sig_once():
        L = k.label("sg")
        k.I(f"""
        s_lshl_b32 s61, s{sCNT}, 2
        s_add_u32 s61, s61, s{sWV}
        s_cmp_lg_u32 s61, 12
        s_cbranch_scc1 {L}
        v_mov_b32 {v(ex+8)}, 1
        s_mov_b64 exec, 3
        buffer_atomic_add {v(ex+8)}, {v(ex+9)}, {s(sDB,4)}, 0 offen sc1
        s_mov_b64 exec, -1
        {L}:
        """)
    def loop(role):
        k.stamp(1)
        k.I(f"s_mov_b32 s{sCNT}, 5")
        Lp = f"L_k1_loop_{role}"
        k.I(".p2align 3")
        k.L(Lp)
        stage(role, False, 1, 18, False, post_barrier=sig_once)
        k.I(f"s_sub_u32 s{sCNT}, s{sCNT}, 1\ns_cmp_lg_u32 s{sCNT}, 0\ns_cbranch_scc1 {Lp}")
        k.stamp(4)
    def sig_addr(cs_valid):
        k.I(f"""
        s_lshl_b32 s{sT0}, s{sRB}, 4
        s_lshl_b32 s{sT1}, s{sCB}, 6
        s_add_u32 s{sT1}, s{sT1}, 8
        """)
        if cs_valid: k.I(f"s_cmp_lt_u32 s{sRB}, 9\ns_cselect_b32 s{sT1}, s{sT1}, {hx(OOB)}")
        else: k.I(f"s_mov_b32 s{sT1}, {hx(OOB)}")
        k.I(f"""
        v_mov_b32 {v(ex+9)}, s{sT0}
        v_mov_b32 {v(ex+8)}, s{sT1}
        v_cmp_eq_u32 vcc, 1, {v(vL)}
        v_cndmask_b32 {v(ex+9)}, {v(ex+9)}, {v(ex+8)}, vcc
        """)
    def touches():
        g = [(f"""
        s_mov_b32 s{sW}, s54
        s_and_b32 s{sW+1}, s55, 0xffff
        s_mov_b32 s{sW+2}, {D*D*2}
        s_lshr_b32 s63, s2, 3
        v_lshlrev_b32 {v(vXo[0])}, 5, v0
        v_add_u32 {v(vXo[0])}, s63, {v(vXo[0])}
        v_lshlrev_b32 {v(vXo[0])}, 7, {v(vXo[0])}
        """, f"buffer_load_dword {v(ex+36)}, {v(vXo[0])}, {s(sW,4)}, 0 offen")]
        if code_label:
            g.append((f"""
            s_getpc_b64 s[64:65]
            L_k1_pc_{len(k.items)}:
            s_add_u32 s64, s64, {code_label}-L_k1_pc_{len(k.items)}
            s_addc_u32 s65, s65, 0
            v_min_u32 {v(vXo[0])}, {code_bytes}, {v(vXo[0])}
            """, f"global_load_dword {v(ex+37)}, {v(vXo[0])}, s[64:65]"))
        return g
    ntouch = 1 + (1 if code_label else 0)
    def qkv_tail(role):
        stage(role, False, 0, 9 + ntouch, False, extra=touches())
        k.stamp(5)
        stage(role, False, 0, ntouch, False)
        k.stamp(6)
        stage(role, False, 0, None, True)
        k.stamp(3)

    Lw1, Lv, Lqkloop, Lw1tail = "L_k1_w1", "L_k1_v", "L_k1_qkl", "L_k1_w1t"
    k.I(f"s_cmp_eq_u32 s{sROLE}, 3\ns_cbranch_scc1 {Lw1}")
    sig_addr(False)
    k.I(f"s_cmp_eq_u32 s{sROLE}, 2\ns_cbranch_scc1 {Lv}")
    mark = k.v.mark()
    start(False)
    stage("qk", True, ND - NPRO, 19, False)
    k.L(Lqkloop)
    loop("qk")
    k.I(f"s_cmp_eq_u32 s{sROLE}, 3\ns_cbranch_scc1 {Lw1tail}")
    qkv_tail("qk")
    pk = Ab[0][0]
    vO1, vO2, vO3 = vXa[0], vXa[1], vXa[2]
    k.I(f"""
    s_cmp_eq_u32 s{sROLE}, 0
    s_cselect_b32 s{sC}, {hx(f2u(QSCALE))}, 1.0
    v_lshlrev_b32 {v(vO1)}, 4, {v(vL)}
    v_and_b32 {v(vO2)}, 31, {v(vL)}
    v_lshlrev_b32 {v(vO2)}, 2, {v(vO2)}
    v_lshrrev_b32 {v(vT0)}, 5, {v(vL)}
    v_mul_u32_u24 {v(vT1)}, {3*8192}, {v(vT0)}
    v_add_u32 {v(vO3)}, {v(vO2)}, {v(vT1)}
    v_lshl_add_u32 {v(vO2)}, {v(vT0)}, 13, {v(vO2)}
    v_cmp_lt_u32 vcc, 31, {v(vL)}
    s_lshl_b32 s{sT0}, s{sCB}, 9
    s_add_u32 s{sT0}, s{sT0}, s{sMT}
    s_lshl_b32 s{sT1}, s{sT0}, 7
    s_lshl_b32 s{sT0}, s{sT0}, 10
    s_lshl_b32 s{sG}, s{sROLE}, 21
    s_add_u32 s{sT0}, s{sT0}, s{sG}
    s_lshl_b32 s{sG}, s{sROLE}, 18
    s_add_u32 s{sT1}, s{sT1}, s{sG}
    s_add_u32 s{sT1}, s{sT1}, {WS_QX}
    """)
    for g in range(2):
        base = pk + 20 * g
        M = [base, base + 4, base + 8, base + 12]
        tA, tB, tC, tD = base + 16, base + 17, base + 18, base + 19
        dst = {0: M[0], 1: M[0] + 1, 2: M[0] + 2, 3: M[0] + 3, 4: tA, 5: M[1] + 1, 6: M[1] + 2, 7: M[1] + 3,
               8: tB, 9: tC, 10: M[2], 11: M[2] + 1, 12: M[2] + 2, 13: tD, 14: M[3], 15: M[3] + 1, 16: M[3] + 2, 17: M[3] + 3}
        for w in range(18):
            r = acc + 2 * (18 * g + w)
            k.I(f"v_pk_mul_f32 {v(r,2)}, {v(r,2)}, {s(sC,2)} op_sel_hi:[1,0]")
        for w in range(18):
            r = acc + 2 * (18 * g + w)
            k.I(f"v_cvt_pk_bf16_f32 {v(dst[w])}, {v(r)}, {v(r+1)}")
        k.I(f"v_cndmask_b32 {v(M[1])}, {v(tB)}, {v(tA)}, vcc")
        k.I(f"v_cndmask_b32 {v(M[2]+3)}, {v(tD)}, {v(tB)}, vcc")
        k.I(f"v_cndmask_b32 {v(tA)}, {v(tA)}, {v(tD)}, vcc")
        for i in range(4):
            k.I(f"buffer_store_dwordx4 {v(M[i],4)}, {v(vO1)}, {s(sWS,4)}, s{sT0} offen {ST}")
            k.I(f"s_add_u32 s{sT0}, s{sT0}, 65536")
        k.I(f"buffer_store_dword {v(tA)}, {v(vO3)}, {s(sWS,4)}, s{sT1} offen {ST}")
        k.I(f"s_add_u32 s{sT1}, s{sT1}, 8192")
        k.I(f"buffer_store_dword {v(tC)}, {v(vO2)}, {s(sWS,4)}, s{sT1} offen {ST}")
        k.I(f"s_add_u32 s{sT1}, s{sT1}, {3*8192}")
    k.I(f"s_branch L_k1_cs3")
    k.L(Lv)
    start(False)
    stage("v", True, ND - NPRO, 19, False)
    loop("v")
    qkv_tail("v")
    vO = [vXa[0], vXa[1], vXa[2], vXa[3], vWa]
    tq = vXa0
    k.I(f"""
    s_mul_i32 s{sT0}, s{sWV}, 1216
    v_lshrrev_b32 {v(tq[2])}, 5, {v(vL)}
    v_mul_u32_u24 {v(tq[2])}, 304, {v(tq[2])}
    v_add_u32 {v(tq[2])}, s{sT0}, {v(tq[2])}
    """)
    for t in range(NT):
        k.I(f"""
        v_and_b32 {v(vT0)}, 31, {v(vL)}
        v_add_u32 {v(vT0)}, {32*t}, {v(vT0)}
        v_mul_u32_u24 {v(vT1)}, 3641, {v(vT0)}
        v_lshrrev_b32 {v(vT1)}, 16, {v(vT1)}
        v_mul_u32_u24 {v(vO[t])}, 18, {v(vT1)}
        v_sub_u32 {v(vO[t])}, {v(vT0)}, {v(vO[t])}
        """)
        if t == 4:
            k.I(f"""
            v_cmp_lt_u32 vcc, 143, {v(vT0)}
            v_subrev_u32 {v(tq[0])}, 144, {v(vT0)}
            v_cndmask_b32 {v(vT1)}, {v(vT1)}, {v(tq[0])}, vcc
            v_mov_b32 {v(tq[0])}, 18
            v_cndmask_b32 {v(vO[t])}, {v(vO[t])}, {v(tq[0])}, vcc
            v_mov_b32 {v(tq[1])}, 0x3f803f80
            """)
        k.I(f"""
        v_mul_u32_u24 {v(vT1)}, 4864, {v(vT1)}
        v_lshl_add_u32 {v(vO[t])}, {v(vO[t])}, 4, {v(vT1)}
        v_add_u32 {v(vO[t])}, {v(vO[t])}, {v(tq[2])}
        """)
    k.I("s_barrier")
    for t in range(NT):
        for j in range(8):
            k.I(f"v_cvt_pk_bf16_f32 {v(pk+8*t+j)}, {v(acc+16*t+2*j)}, {v(acc+16*t+2*j+1)}")
        if t == 4:
            for j in range(8):
                k.I(f"v_cndmask_b32 {v(pk+8*t+j)}, {v(pk+8*t+j)}, {v(tq[1])}, vcc")
        k.I(f"ds_write_b128 {v(vO[t])}, {v(pk+8*t,4)}")
        k.I(f"ds_write_b128 {v(vO[t])}, {v(pk+8*t+4,4)} offset:{VT_STEP}")
    k.I(f"""
    s_mul_i32 s{sT0}, s{sWV}, {2*4864}
    v_lshlrev_b32 {v(vT0)}, 4, {v(vL)}
    v_add_u32 {v(vT1)}, s{sT0}, {v(vT0)}
    v_mov_b32 {v(tq[0])}, {hx(OOB)}
    v_cmp_gt_u32 vcc, 48, {v(vL)}
    v_cndmask_b32 {v(tq[0])}, {v(tq[0])}, {v(vT0)}, vcc
    s_lshl_b32 s{sT0}, s{sCB}, 3
    s_lshl_b32 s{sT1}, s{sWV}, 1
    s_add_u32 s{sT0}, s{sT0}, s{sT1}
    s_lshl_b32 s{sT0}, s{sT0}, 4
    s_add_u32 s{sT0}, s{sT0}, s{sRB}
    s_mul_i32 s{sT0}, s{sT0}, 4864
    s_add_u32 s{sT0}, s{sT0}, {WS_VT}
    s_waitcnt lgkmcnt(0)
    s_barrier
    """)
    for hh in range(2):
        for i in range(5):
            k.I(f"ds_read_b128 {v(pk+20*hh+4*i,4)}, {v(vT1)} offset:{4864*hh+1024*i}")
    for hh in range(2):
        for i in range(5):
            k.I(f"s_waitcnt lgkmcnt({9-5*hh-i})")
            if i == 4: k.I(f"s_add_u32 s{sT0}, s{sT0}, 4096")
            k.I(f"buffer_store_dwordx4 {v(pk+20*hh+4*i,4)}, {v(vT0 if i < 4 else tq[0])}, {s(sWS,4)}, s{sT0} offen offset:{1024*(i%4)} {ST}")
        k.I(f"s_add_u32 s{sT0}, s{sT0}, {128*VT_STEP - 4096}")
    k.L("L_k1_cs3")
    Lz = k.label("z")
    k.I(f"""
    s_cmp_lg_u32 s2, 254
    s_cbranch_scc1 {Lz}
    v_lshlrev_b32 {v(vT0)}, 7, v0
    v_mov_b32 {v(vT1)}, 0
    s_mov_b32 s{sT0}, {sync.WS_CNT}
    buffer_store_dword {v(vT1)}, {v(vT0)}, {s(sWS,4)}, s{sT0} offen sc1
    {Lz}:
    """)
    k.end(kidx)
    k.L(Lw1)
    sig_addr(True)
    k.I(f"v_mov_b32 {v(vOnes)}, 0x3f803f80")
    for r in range(5): k.I(f"v_mov_b32 {v(vCs+r)}, 0")
    start(True)
    stage("qk", True, ND - NPRO, 19, False, cs=True)
    tmp = ex + 12
    for t in range(NT): k.I(f"v_mov_b32 {v(tmp+t)}, {v(vCs+t)}")
    for t in range(NT): k.I(f"v_permlane32_swap_b32 {v(tmp+t)}, {v(vCs+t)}")
    for t in range(NT): k.I(f"v_add_f32 {v(tmp+t)}, {v(tmp+t)}, {v(vCs+t)}")
    Lp = k.label("np")
    k.I(f"""
    s_cmp_lg_u32 s{sWV}, 0
    s_cbranch_scc1 {Lqkloop}
    s_cmp_ge_u32 s{sRB}, 9
    s_cbranch_scc1 {Lqkloop}
    s_mul_i32 s61, s{sCB}, 9
    s_add_u32 s61, s61, s60
    s_mul_i32 s61, s61, 640
    s_add_u32 s61, s61, {WS_C1P}
    v_and_b32 {v(vCs)}, 31, {v(vL)}
    v_lshlrev_b32 {v(vCs)}, 2, {v(vCs)}
    """)
    for t in range(NT):
        k.I(f"buffer_store_dword {v(tmp+t)}, {v(vCs)}, {s(sWS,4)}, s61 offen offset:{128*t} {ST}")
    k.I(f"s_branch {Lqkloop}")
    k.L(Lw1tail)
    k.I(f"""
    s_lshl_b32 s61, s{sRB}, 4
    s_lshl_b32 s62, s{sCB}, 6
    s_add_u32 s62, s62, 8
    v_mov_b32 {v(ex+9)}, s61
    v_mov_b32 {v(ex+8)}, s62
    v_cmp_eq_u32 vcc, 1, {v(vL)}
    v_cndmask_b32 {v(ex+9)}, {v(ex+9)}, {v(ex+8)}, vcc
    """)
    stage("qk", False, 0, 10, False, extra=[("s_nop 0", "s_nop 0")] * 6 + [("s_nop 0", f"buffer_load_dword {v(ex+8)}, {v(ex+9)}, {s(sDB,4)}, 0 offen sc1")])
    k.stamp(5)
    def w1_check():
        L = k.label("ok"); L2 = k.label("slow")
        k.I(f"""
        s_waitcnt vmcnt(0)
        v_readlane_b32 s62, {v(ex+8)}, 0
        v_readlane_b32 s63, {v(ex+8)}, 1
        s_cmp_lt_u32 s62, 16
        s_cbranch_scc1 {L2}
        s_cmp_ge_u32 s63, 9
        s_cbranch_scc1 {L}
        {L2}:
        """)
        k.I(f"s_lshl_b32 s66, s{sCB}, 6\ns_add_u32 s66, s66, 8")
        sync.poll(k, 40, sWV, [(61, 16), (66, 9)], 62)
        k.L(L)
    st2 = ex; cp = ex + 4
    def w1_loads():
        k.I(f"""
        v_and_b32 {v(vT0)}, 31, {v(vL)}
        v_lshlrev_b32 {v(vT0)}, 4, {v(vT0)}
        s_lshl_b32 s61, s{sMT}, 9
        s_add_u32 s61, s61, {WS_ST1}
        buffer_load_dwordx2 {v(st2,2)}, {v(vT0)}, {s(sWS,4)}, s61 offen sc1
        v_lshlrev_b32 {v(vT1)}, 2, v0
        s_mul_i32 s61, s{sCB}, {9*640}
        s_add_u32 s61, s61, {WS_C1P}
        """)
        for i in range(9):
            if i == 6: k.I(f"s_add_u32 s61, s61, {6*640}")
            k.I(f"buffer_load_dword {v(cp+i)}, {v(vT1)}, {s(sWS,4)}, s61 offen offset:{640*(i%6)} sc1")
    stage("qk", False, 0, 0, False, post_barrier=w1_loads, pre_barrier=w1_check)
    tl = []
    k.stamp(6)
    stage("qk", False, 0, None, True)
    k.stamp(3)
    cs = ex + 16; csall = Ab[0][0]; tmp = Ab[0][0] + 16; pk = Ab[0][0] + 32
    vR = st2; vK1 = ex + 14; vO = vXa[0]; vA = vXa[1]
    CSB = SLOT
    k.I(f"s_waitcnt vmcnt({len(tl)})")
    for a_, b_ in touches(): k.I(a_); k.I(b_)
    for i in range(1, 9): k.I(f"v_add_f32 {v(cp)}, {v(cp)}, {v(cp+i)}")
    k.I(f"""
    ds_write_b32 {v(vT1)}, {v(cp)} offset:{CSB}
    s_lshr_b32 s{sT0}, s{sCB}, 1
    s_add_u32 s{sT0}, s{sT0}, 1
    s_sub_u32 s{sT1}, 0, s{sT0}
    s_bitcmp1_b32 s{sCB}, 0
    s_cselect_b32 s{sT0}, s{sT1}, s{sT0}
    s_lshl_b32 s{sT1}, s{sMT}, 5
    s_add_u32 s{sT0}, s{sT0}, s{sT1}
    v_and_b32 {v(vT0)}, 31, {v(vL)}
    v_add_u32 {v(vT0)}, s{sT0}, {v(vT0)}
    s_mov_b32 s{sT1}, 2048
    v_cmp_gt_u32 vcc, s{sT1}, {v(vT0)}
    v_and_b32 {v(vT0)}, 2047, {v(vT0)}
    v_cndmask_b32 {v(vR)}, 0, {v(vR)}, vcc
    v_cndmask_b32 {v(vR+1)}, 0, {v(vR+1)}, vcc
    v_lshrrev_b32 {v(vT1)}, 5, {v(vT0)}
    v_mul_u32_u24 {v(vT1)}, {36*1024}, {v(vT1)}
    v_and_b32 {v(vT0)}, 31, {v(vT0)}
    v_and_b32 {v(vO)}, 32, {v(vL)}
    v_add_u32 {v(vT0)}, {v(vT0)}, {v(vO)}
    v_lshl_add_u32 {v(vO)}, {v(vT0)}, 4, {v(vT1)}
    s_mul_i32 s{sT0}, s{sCB}, {9*1024}
    s_add_u32 s{sT0}, s{sT0}, {WS_HS}
    v_mov_b32 {v(vK1)}, {hx(f2u(GK1))}
    s_mov_b32 s{sC}, {hx(f2u(GK2))}
    v_lshrrev_b32 {v(vA)}, 5, {v(vL)}
    v_lshlrev_b32 {v(vA)}, 4, {v(vA)}
    s_waitcnt lgkmcnt(0)
    s_barrier
    """)
    for t in range(NT):
        nq = 4 if t < 4 else 2
        if t == 0:
            for q in range(nq):
                k.I(f"ds_read_b128 {v(cs+4*q,4)}, {v(vA)} offset:{CSB+128*t+32*q}")
        if t + 1 < NT:
            for q in range(4 if t + 1 < 4 else 2):
                k.I(f"ds_read_b128 {v(csall+4*q,4)}, {v(vA)} offset:{CSB+128*(t+1)+32*q}")
            k.I(f"s_waitcnt lgkmcnt({4 if t + 1 < 4 else 2})")
        else:
            k.I("s_waitcnt lgkmcnt(0)")
        for p in range(2 * nq):
            k.I(f"v_pk_mul_f32 {v(cs+2*p,2)}, {v(cs+2*p,2)}, {v(vR,2)} op_sel:[0,1] op_sel_hi:[1,1]")
        for p in range(2 * nq):
            r = acc + 16 * t + 2 * p
            k.I(f"v_pk_fma_f32 {v(r,2)}, {v(r,2)}, {v(vR,2)}, {v(cs+2*p,2)} op_sel_hi:[1,0,1]")
        gelu_pairs(k, [(acc + 16 * t + 2 * p, pk + p) for p in range(2 * nq)], vK1, sC, tmp)
        for e in range(nq // 2):
            k.I(f"buffer_store_dwordx4 {v(pk+4*e,4)}, {v(vO)}, {s(sWS,4)}, s{sT0} offen offset:{1024*e} {ST}")
        k.I(f"s_add_u32 s{sT0}, s{sT0}, 2048")
        cs, csall = csall, cs
    k.end(kidx)
    k.L(Lend)
    k.I("s_endpgm")
    return k, ("k1_kernel", 256, 256, SLOT * ND)

if __name__ == "__main__":
    import sys
    STAMP[0] = len(sys.argv) > 1
    kk, l = gen_k1()
    open("k1.s", "w").write(build([kk], [l]))
    print("vgprs", kk.v.hi)
```

```python
from common import *
from gemm import G
ST = "sc1"
LD = "sc1"

class KGemm:
    def __init__(self, k, NT, half_last, NST, ND, wo=False, RA=5):
        self.k, self.NT, self.half, self.NST, self.ND, self.wo, self.RA = k, NT, half_last, NST, ND, wo, RA
        self.SLOT = 4 * NT * 1024
        self.vB = k.v.alloc()
        self.vWo = k.v.alloc(); self.vWx = k.v.alloc() if (half_last or wo) else None
        self.nbase = (ND * self.SLOT + 40959) // 40960
        self.vWa = [k.v.alloc() for _ in range(self.nbase)]
        self.acc = k.v.alloc(16 * NT, 4)
        self.R = RA + 1
        self.Ab = [k.v.alloc(4, 4) for _ in range(self.R)]
        self.Bf = [[k.v.alloc(4, 4) for ks in range(4)] for d in range(ND)]
        self.vm = []
        self.sGB = 49
        self.nw = self.nb = 0
        self.NROT = NST - 1 if wo else NST
    def allowed(self, tags):
        last = max(i for i, t in enumerate(self.vm) if t in tags)
        return len(self.vm) - 1 - last
    def setup(self):
        k = self.k
        vL, t0, t1 = self.acc, self.acc + 1, self.acc + 2
        k.I(f"""
        v_and_b32 {v(vL)}, 63, v0
        v_lshlrev_b32 {v(self.vB)}, 4, {v(vL)}
        v_and_b32 {v(t1)}, 3, v0
        s_mov_b32 s{self.sGB}, s{G.sG}
        s_mul_i32 s{G.sM0}, s{G.sWV}, {self.NT*1024}
        """)
        if not self.wo:
            k.I(f"v_lshrrev_b32 {v(t0)}, 2, v0")
        else:
            k.I(f"v_lshrrev_b32 {v(t0)}, 2, {v(vL)}\ns_mul_i32 s{G.sT0}, s{G.sWV}, 18\nv_add_u32 {v(t0)}, s{G.sT0}, {v(t0)}")
        k.I(f"v_mul_u32_u24 {v(t0)}, 1152, {v(t0)}\nv_lshl_add_u32 {v(self.vWo)}, {v(t1)}, 4, {v(t0)}")
        if self.half:
            k.I(f"v_cmp_gt_u32 vcc, 2, {v(t1)}\nv_mov_b32 {v(t0)}, {hx(OOB)}\nv_cndmask_b32 {v(self.vWx)}, {v(t0)}, {v(self.vWo)}, vcc")
        if self.wo:
            k.I(f"""
            v_lshrrev_b32 {v(t0)}, 2, {v(vL)}
            v_lshrrev_b32 {v(self.vWx)}, 3, {v(vL)}
            v_lshl_add_u32 {v(t0)}, {v(self.vWx)}, 4, {v(t0)}
            s_mul_i32 s{G.sT0}, s{G.sWV}, 144
            s_add_u32 s{G.sT0}, s{G.sT0}, 16
            v_add_u32 {v(t0)}, s{G.sT0}, {v(t0)}
            v_mul_u32_u24 {v(t0)}, 1152, {v(t0)}
            v_lshl_add_u32 {v(self.vWx)}, {v(t1)}, 4, {v(t0)}
            """)
        tr_lane_addr(k, self.vWa[0], vL, t0, t1, 512, perm=True)
        for b in range(1, self.nbase): k.I(f"v_add_u32 {v(self.vWa[b])}, {40960*b}, {v(self.vWa[0])}")
    def rot(self, sg): return [f"s_add_u32 s{sg}, s{sg}, 1", f"s_cmp_eq_u32 s{sg}, {self.NROT}", f"s_cselect_b32 s{sg}, 0, s{sg}"]
    def wloads(self, st):
        g = []
        rem = self.wo and st == self.NST - 1
        for i in range(self.NT):
            pre = []
            if i == 0 and not rem:
                pre = [f"s_mul_i32 s{G.sOW}, s{G.sG}, {(72 if self.wo else 64)*1152}", f"s_add_u32 s{G.sOW}, s{G.sOW}, s{G.sWB}"] + self.rot(G.sG)
            vo = self.vWx if (rem or (self.half and i == self.NT - 1)) else self.vWo
            g.append(pre + [f"s_add_u32 m0, s{G.sM0}, {(st % self.ND)*self.SLOT + i*960}",
                            f"buffer_load_dwordx4 {v(vo)}, {s(G.sW,4)}, s{G.sWB if rem else G.sOW} offen offset:{64*i} lds"])
        return g
    def bloads(self, st):
        g = []
        rem = self.wo and st == self.NST - 1
        for ks in range(4):
            pre = []
            if ks == 0:
                pre = [f"s_add_u32 s{G.sOB}, s{G.sBB}, 32768"] if rem else \
                      [f"s_lshl_b32 s{G.sOB}, s{self.sGB}, 12", f"s_add_u32 s{G.sOB}, s{G.sOB}, s{G.sBB}"] + self.rot(self.sGB)
            g.append(pre + [f"buffer_load_dwordx4 {v(self.Bf[st % self.ND][ks],4)}, {v(self.vB)}, {s(G.sWS,4)}, s{G.sOB} offen offset:{1024*ks} {LD}"])
        return g
    def pre_w(self, n):
        for _ in range(n):
            for g in self.wloads(self.nw):
                for x in g: self.k.I(x)
                self.vm.append(self.nw)
            self.nw += 1
    def pre_b(self, n):
        for _ in range(n):
            for g in self.bloads(self.nb):
                for x in g: self.k.I(x)
                self.vm.append(self.nb)
            self.nb += 1
    def main(self, first=None, extra=None):
        k, NT, NST, ND, RA, R = self.k, self.NT, self.NST, self.ND, self.RA, self.R
        NS = 4 * NT
        lg = []
        def reads(n):
            st, r = divmod(n, NS); ks, t = divmod(r, NT)
            off = (st % ND) * self.SLOT
            b = off // 40960
            for rd in range(2):
                k.I(f"ds_read_b64_tr_b16 {v(self.Ab[n % R]+2*rd,2)}, {v(self.vWa[b])} offset:{off - 40960*b + ks*NT*1024 + t*1024 + rd*256}")
                lg.append(n)
        k.I(f"s_waitcnt vmcnt({self.allowed([0])})\ns_barrier")
        if first: first()
        for n in range(RA): reads(n)
        nread = RA; N = NST * NS; limit = NS; done = -1
        for p in range(N):
            st, r = divmod(p, NS); ks, t = divmod(r, NT)
            if r == 0:
                gl = []
                hi = min(NST, st + ND)
                while self.nb < hi or self.nw < hi:
                    if self.nw <= self.nb and self.nw < hi:
                        gl += [(self.nw, g) for g in self.wloads(self.nw)]; self.nw += 1
                    else:
                        gl += [(self.nb, g) for g in self.bloads(self.nb)]; self.nb += 1
                if extra: gl += [("x", g) for g in extra(st)]
                span = NS - RA + 1
                where = {}
                for j, g in enumerate(gl): where.setdefault(j * span // len(gl), []).append(g)
            if done < p:
                tgt = min(p + 1, nread - 1)
                last = max(i for i, x in enumerate(lg) if x == tgt)
                k.I(f"s_waitcnt lgkmcnt({min(15, len(lg) - 1 - last)})")
                done = tgt
            a = self.acc + 16 * t
            k.I(f"v_mfma_f32_32x32x16_bf16 {v(a,16)}, {v(self.Ab[p % R],4)}, {v(self.Bf[st % ND][ks],4)}, {'0' if p < NT else v(a,16)}")
            if r == NS - RA + 1 and st < NST - 1:
                assert nread == limit
                k.I(f"s_waitcnt vmcnt({self.allowed([st+1])}) lgkmcnt(0)")
                k.I("s_barrier")
                done = nread - 1
                limit += NS
            gs = where.get(r, [])
            post = []
            for j, (q, g) in enumerate(gs):
                if j == 0:
                    for x in g[:-1]: k.I(x)
                    post.append(g[-1])
                else: post += g
                self.vm.append(q)
            cnt = 0
            while nread < min(p + RA + 1, limit, N) and cnt < 2:
                reads(nread); nread += 1; cnt += 1
            for x in post: k.I(x)

def halfsum(k, r, tmp):
    k.I(f"v_mov_b32 {v(tmp)}, {v(r)}\nv_permlane32_swap_b32 {v(r)}, {v(tmp)}\nv_add_f32 {v(r)}, {v(r)}, {v(tmp)}")

sRB2, sCB2 = 50, 51
def tile64_ids(k):
    k.I(f"""
    s_bfe_u32 s{sCB2}, s2, 0x50003
    s_and_b32 s{sRB2}, s2, 7
    s_lshl_b32 s{sRB2}, s{sRB2}, 1
    s_cmp_ge_u32 s{sCB2}, 18
    """)
def tile64_ids2(k, base, nrot):
    k.I(f"""
    s_cmp_ge_u32 s{sCB2}, 9
    s_cselect_b32 s{G.sT0}, 1, 0
    s_cselect_b32 s{G.sT1}, 9, 0
    s_add_u32 s{sRB2}, s{sRB2}, s{G.sT0}
    s_sub_u32 s{sCB2}, s{sCB2}, s{G.sT1}
    s_lshl_b32 s{G.sMT}, s{sRB2}, 2
    s_add_u32 s{G.sMT}, s{G.sMT}, s{G.sWV}
    s_min_u32 s{G.sG}, s{sCB2}, {nrot-1}
    s_lshl_b32 s{G.sWB}, s{sCB2}, 7
    s_mul_i32 s{G.sBB}, s{G.sMT}, {36*1024}
    s_add_u32 s{G.sBB}, s{G.sBB}, {base}
    """)

def emit_w2k(k, after_setup=None):
    k.v.next = 1
    g = KGemm(k, 2, False, 9, 4)
    xr = k.v.alloc(16, 4); vT = k.v.alloc(2, 2); u = k.v.alloc(2, 2); st = k.v.alloc(2, 2)
    srd(k, G.sX, 36, S * D * 2); srd(k, G.sW, 38, D * D * 2)
    tile64_ids2(k, WS_HS, 9)
    g.setup()
    if after_setup: after_setup()
    g.pre_w(1); g.pre_b(1); g.pre_w(1); g.pre_b(1)
    k.I(f"""
    v_and_b32 {v(vT)}, 31, v0
    s_lshl_b32 s{G.sT0}, s{G.sMT}, 5
    v_add_u32 {v(vT)}, s{G.sT0}, {v(vT)}
    v_mul_u32_u24 {v(vT+1)}, 1152, {v(vT)}
    v_bfe_u32 {v(u)}, v0, 5, 1
    v_lshl_add_u32 {v(vT+1)}, {v(u)}, 4, {v(vT+1)}
    """)
    k.stamp(1)
    g.main(extra=lambda s_: [[f"buffer_load_dwordx4 {v(xr+4*b,4)}, {v(vT+1)}, {s(G.sX,4)}, s{G.sWB} offen offset:{32*b}"] for b in range(4)] if s_ == 6 else [])
    k.stamp(2)
    k.I(f"""
    v_mov_b32 {v(st)}, 0
    v_mov_b32 {v(st+1)}, 0
    s_lshl_b32 s{G.sT0}, s{sCB2}, 12
    s_add_u32 s{G.sT0}, s{G.sT0}, s{G.sBB}
    s_add_u32 s{G.sT0}, s{G.sT0}, {WS_X1 - WS_HS}
    v_mul_u32_u24 {v(vT)}, 72, {v(vT)}
    s_lshl_b32 s{G.sT1}, s{sCB2}, 3
    s_add_u32 s{G.sT1}, s{G.sT1}, {WS_ST2}
    s_waitcnt vmcnt(0)
    """)
    for b in range(4):
        for j in range(4):
            d = g.acc + 8 * b + 2 * j
            k.I(f"""
            v_lshlrev_b32 {v(u)}, 16, {v(xr+4*b+j)}
            v_and_b32 {v(u+1)}, 0xffff0000, {v(xr+4*b+j)}
            v_add_f32 {v(d)}, {v(d)}, {v(u)}
            v_add_f32 {v(d+1)}, {v(d+1)}, {v(u+1)}
            v_cvt_pk_bf16_f32 {v(xr+4*b+j)}, {v(d)}, {v(d+1)}
            """)
        k.I(f"buffer_store_dwordx4 {v(xr+4*b,4)}, {v(g.vB)}, {s(G.sWS,4)}, s{G.sT0} offen offset:{1024*b} {ST}")
    for r in range(32):
        k.I(f"v_add_f32 {v(st)}, {v(st)}, {v(g.acc+r)}\nv_fmac_f32 {v(st+1)}, {v(g.acc+r)}, {v(g.acc+r)}")
    halfsum(k, st, u); halfsum(k, st + 1, u + 1)
    k.I(f"""
    s_mov_b32 exec_hi, 0
    buffer_store_dwordx2 {v(st,2)}, {v(vT)}, {s(G.sWS,4)}, s{G.sT1} offen {ST}
    s_mov_b64 exec, -1
    """)

def emit_wok(k, poll):
    k.v.next = 1
    g = KGemm(k, 2, False, 9, 4, wo=True)
    xr = k.v.alloc(16, 4); vT = k.v.alloc(2, 2); u = k.v.alloc(2, 2); g2 = k.v.alloc(2, 2)
    srd(k, G.sW, 38, D * D * 2)
    tile64_ids2(k, WS_O, 8)
    g.setup()
    g.pre_w(3)
    poll()
    k.I("s_barrier")
    k.stamp(5)
    g.pre_b(2)
    k.I(f"""
    v_and_b32 {v(vT)}, 31, v0
    v_lshlrev_b32 {v(vT)}, 4, {v(vT)}
    s_lshl_b32 s52, s{G.sMT}, 9
    s_add_u32 s52, s52, {WS_ST1}
    s_lshl_b32 s53, s{sCB2}, 12
    s_add_u32 s53, s53, s{G.sBB}
    s_add_u32 s54, s53, {WS_PART + 4*64*36*1024 - WS_O}
    s_sub_u32 s53, s53, {WS_O - WS_X1}
    """)
    g.main(extra=lambda s_: [[f"buffer_load_dwordx4 {v(xr+4*b,4)}, {v(g.vB)}, {s(G.sWS,4)}, s53 offen offset:{1024*b} {LD}"] for b in range(4)] if s_ == 6 else
           [[f"buffer_load_dword {v(g2)}, {v(vT)}, {s(G.sWS,4)}, s52 offen offset:8"]] if s_ == 7 else [])
    k.I(f"s_waitcnt vmcnt(0)\nv_sub_f32 {v(g2+1)}, 1.0, {v(g2)}")
    for b in range(4):
        for j in range(4):
            d = g.acc + 8 * b + 2 * j
            k.I(f"""
            v_lshlrev_b32 {v(u)}, 16, {v(xr+4*b+j)}
            v_and_b32 {v(u+1)}, 0xffff0000, {v(xr+4*b+j)}
            v_mul_f32 {v(d)}, {v(d)}, {v(g2)}
            v_mul_f32 {v(d+1)}, {v(d+1)}, {v(g2)}
            v_fmac_f32 {v(d)}, {v(g2+1)}, {v(u)}
            v_fmac_f32 {v(d+1)}, {v(g2+1)}, {v(u+1)}
            v_cvt_pk_bf16_f32 {v(xr+4*b+j)}, {v(d)}, {v(d+1)}
            """)
        k.I(f"buffer_store_dwordx4 {v(xr+4*b,4)}, {v(g.vB)}, {s(G.sWS,4)}, s54 offen offset:{1024*b} {ST}")

def emit_w4k(k, poll, prio):
    k.v.next = 1
    g = KGemm(k, 5, True, 18, 4)
    sC4 = 50
    srd(k, G.sW, 38, D * F * 2)
    k.I(f"""
    s_lshr_b32 s{G.sSP}, s{G.sCB}, 2
    s_and_b32 s{sC4}, s{G.sCB}, 3
    s_and_b32 s{G.sG}, s{G.sRB}, 7
    s_lshl_b32 s{G.sG}, s{G.sG}, 1
    s_lshl_b32 s{G.sT1}, s{sC4}, 2
    s_add_u32 s{G.sG}, s{G.sG}, s{G.sT1}
    s_cmp_ge_u32 s{G.sG}, 18
    s_cselect_b32 s{G.sT1}, 18, 0
    s_sub_u32 s{G.sG}, s{G.sG}, s{G.sT1}
    s_lshl_b32 s{G.sMT}, s{G.sRB}, 2
    s_add_u32 s{G.sMT}, s{G.sMT}, s{G.sWV}
    s_mul_i32 s{G.sT1}, s{sC4}, 288
    s_mul_i32 s{G.sWB}, s{G.sSP}, {1152*1152}
    s_add_u32 s{G.sWB}, s{G.sWB}, s{G.sT1}
    s_mul_i32 s{G.sBB}, s{G.sMT}, 288
    s_mul_i32 s{G.sT0}, s{G.sSP}, 72
    s_add_u32 s{G.sBB}, s{G.sBB}, s{G.sT0}
    s_lshl_b32 s{G.sBB}, s{G.sBB}, 10
    s_add_u32 s{G.sBB}, s{G.sBB}, {WS_H}
    """)
    g.setup()
    g.pre_w(2)
    poll()
    k.I("s_barrier")
    g.pre_b(2)
    def first():
        k.stamp(4)
        k.I(f"s_setprio {prio}")
    g.main(first=first)
    k.stamp(5)
    k.I(f"""
    s_setprio 3
    s_lshl_b32 s{G.sT0}, s{G.sSP}, 6
    s_add_u32 s{G.sT0}, s{G.sT0}, s{G.sMT}
    s_mul_i32 s{G.sT0}, s{G.sT0}, 36
    s_mul_i32 s{G.sT1}, s{sC4}, 9
    s_add_u32 s{G.sT0}, s{G.sT0}, s{G.sT1}
    s_lshl_b32 s{G.sT0}, s{G.sT0}, 10
    s_add_u32 s{G.sT0}, s{G.sT0}, {WS_PART}
    """)
    pk = g.Bf[0][0]
    for sidx in range(9):
        for j in range(4):
            r = g.acc + 8 * sidx + 2 * j
            k.I(f"v_cvt_pk_bf16_f32 {v(pk+4*sidx+j)}, {v(r)}, {v(r+1)}")
        k.I(f"buffer_store_dwordx4 {v(pk+4*sidx,4)}, {v(g.vB)}, {s(G.sWS,4)}, s{G.sT0} offen {ST}")
        k.I(f"s_add_u32 s{G.sT0}, s{G.sT0}, 1024")

def emit_side(k, Ldone):
    k.v.next = 1
    vT0 = k.v.alloc(); vT1 = k.v.alloc(); vA = k.v.alloc()
    d = k.v.alloc(72, 4); ac = k.v.alloc(8, 4); t = k.v.alloc(8, 2)
    Lt = k.label("touch")
    sJ = 52
    k.I(f"""
    s_cmp_ge_u32 s{sCB2}, 27
    s_cbranch_scc1 {Lt}
    s_and_b32 s{sJ}, s2, 3
    s_lshl_b32 s{sJ}, s{sJ}, 1
    s_bfe_u32 s{G.sT0}, s2, 0x10002
    s_add_u32 s{sJ}, s{sJ}, s{G.sT0}
    s_mul_i32 s{sJ}, s{sJ}, 9
    s_add_u32 s{sJ}, s{sJ}, s{sCB2}
    s_sub_u32 s{sJ}, s{sJ}, 18
    s_lshl_b32 s{G.sT0}, s{sJ}, 7
    v_lshrrev_b32 {v(vT0)}, 3, v0
    v_mul_u32_u24 {v(vT0)}, 9216, {v(vT0)}
    v_and_b32 {v(vT1)}, 7, v0
    v_lshl_add_u32 {v(vT0)}, {v(vT1)}, 4, {v(vT0)}
    """)
    srd(k, G.sW, 60, D * F * 2)
    for i in range(18):
        k.I(f"buffer_load_dwordx4 {v(d+4*i,4)}, {v(vT0)}, {s(G.sW,4)}, s{G.sT0} offen")
        k.I(f"s_add_u32 s{G.sT0}, s{G.sT0}, {32*9216}")
    for i in range(18):
        k.I(f"s_waitcnt vmcnt({17-i})")
        for j in range(4):
            dst = ac if i == 0 else t
            k.I(f"v_lshlrev_b32 {v(dst+2*j)}, 16, {v(d+4*i+j)}\nv_and_b32 {v(dst+2*j+1)}, 0xffff0000, {v(d+4*i+j)}")
        if i:
            for j in range(8): k.I(f"v_add_f32 {v(ac+j)}, {v(ac+j)}, {v(t+j)}")
    k.I(f"""
    v_lshlrev_b32 {v(vA)}, 5, v0
    ds_write_b128 {v(vA)}, {v(ac,4)}
    ds_write_b128 {v(vA)}, {v(ac+4,4)} offset:16
    v_lshlrev_b32 {v(vA)}, 2, v0
    s_waitcnt lgkmcnt(0)
    s_barrier
    """)
    for i in range(8): k.I(f"ds_read_b32 {v(d+i)}, {v(vA)} offset:{1024*i}")
    k.I("s_waitcnt lgkmcnt(0)")
    for st_ in (4, 2, 1):
        for i in range(st_): k.I(f"v_add_f32 {v(d+i)}, {v(d+i)}, {v(d+i+st_)}")
    k.I(f"""
    ds_write_b32 {v(vA)}, {v(d)} offset:8192
    v_and_b32 {v(vA)}, 255, {v(vA)}
    s_waitcnt lgkmcnt(0)
    s_barrier
    """)
    for i in range(4): k.I(f"ds_read_b32 {v(d+i)}, {v(vA)} offset:{8192+256*i}")
    k.I(f"""
    s_waitcnt lgkmcnt(0)
    v_add_f32 {v(d)}, {v(d)}, {v(d+1)}
    v_add_f32 {v(d+2)}, {v(d+2)}, {v(d+3)}
    v_add_f32 {v(d)}, {v(d)}, {v(d+2)}
    v_and_b32 {v(t)}, 0xffff0000, {v(d)}
    v_sub_f32 {v(d)}, {v(d)}, {v(t)}
    v_and_b32 {v(t+1)}, 0xffff0000, {v(d)}
    v_sub_f32 {v(d)}, {v(d)}, {v(t+1)}
    v_cvt_pk_bf16_f32 {v(ac)}, {v(t)}, {v(t)}
    v_cvt_pk_bf16_f32 {v(ac+1)}, {v(t+1)}, {v(t+1)}
    v_cvt_pk_bf16_f32 {v(ac+2)}, {v(d)}, {v(t)}
    v_mov_b32 {v(ac+3)}, 0
    v_and_b32 {v(vT0)}, 0x13, v0
    v_and_b32 {v(vT1)}, 4, v0
    v_lshl_or_b32 {v(vT0)}, {v(vT1)}, 1, {v(vT0)}
    v_bfe_u32 {v(vT1)}, v0, 3, 1
    v_lshl_or_b32 {v(vT0)}, {v(vT1)}, 2, {v(vT0)}
    v_lshlrev_b32 {v(vT0)}, 3, {v(vT0)}
    v_bfe_u32 {v(vT1)}, v0, 5, 1
    v_lshl_add_u32 {v(vT0)}, {v(vT1)}, 9, {v(vT0)}
    s_lshl_b32 s{G.sT0}, s{sJ}, 10
    s_add_u32 s{G.sT0}, s{G.sT0}, {WS_CS3}
    s_cmp_lg_u32 s{G.sWV}, 0
    s_cbranch_scc1 {Ldone}
    buffer_store_dwordx2 {v(ac,2)}, {v(vT0)}, {s(G.sWS,4)}, s{G.sT0} offen {ST}
    buffer_store_dwordx2 {v(ac+2,2)}, {v(vT0)}, {s(G.sWS,4)}, s{G.sT0} offen offset:256 {ST}
    s_branch {Ldone}
    {Lt}:
    s_sub_u32 s{sJ}, s{sCB2}, 27
    s_and_b32 s{G.sT0}, s2, 3
    s_lshl_b32 s{G.sT0}, s{G.sT0}, 1
    s_bfe_u32 s{G.sT1}, s2, 0x10002
    s_add_u32 s{G.sT0}, s{G.sT0}, s{G.sT1}
    s_mul_i32 s53, s{G.sT0}, {648*128}
    s_mul_i32 s{G.sT0}, s{G.sT0}, {576*1152}
    v_mul_u32_u24 {v(vT0)}, 5, v0
    v_add_u32 {v(vT0)}, s{sJ}, {v(vT0)}
    v_lshlrev_b32 {v(vT0)}, 7, {v(vT0)}
    """)
    srd(k, G.sW, 62, D * F * 2); srd(k, G.sX, 64, D * D * 2)
    k.I(f"s_add_u32 s{G.sW+2}, s{G.sT0}, {576*1152}\ns_add_u32 s{G.sX+2}, s53, {648*128}")
    for i in range(5):
        k.I(f"buffer_load_dword {v(d+i)}, {v(vT0)}, {s(G.sW,4)}, s{G.sT0} offen\ns_add_u32 s{G.sT0}, s{G.sT0}, {1280*128}")
    k.I(f"buffer_load_dword {v(d+5)}, {v(vT0)}, {s(G.sX,4)}, s53 offen")
```

```python
from common import *
from gemm import G
import attn, sync, small, w3f, kgemm
from kgemm import sRB2, sCB2
from sync import WS_CNT, C1, C2, C3, CA, CW, CS

def gen_mega(kidx, prio="12202", focus=None):
    k = Kern("mega_kernel", vlimit=256)
    k.L("L_mega_codestart")
    k.I("s_cmp_ge_u32 s2, 512\ns_cbranch_scc1 L_mega_exit\ns_cmp_ge_u32 s2, 256\ns_cbranch_scc1 L_mega_b")
    def a_finish(sWVa):
        k.stamp(6)
        if STAMP[0]: k.I("s_mov_b64 s[92:93], s[94:95]")
        kgemm.tile64_ids(k)
        k.I(f"""
        s_cbranch_scc1 L_mega_aend
        s_mov_b32 s{G.sWV}, s{sWVa}
        s_mov_b64 s[40:41], s[24:25]
        s_load_dwordx2 s[38:39], s[0:1], {KA_WO}
        s_setprio {prio[4]}
        """)
        srd(k, G.sWS, 40, WS_SIZE)
        k.I("s_waitcnt lgkmcnt(0)")
        def pl():
            k.I(f"s_lshl_b32 s55, s{sRB2}, 7\ns_add_u32 s56, s55, {WS_CNT + 128*C1}\ns_add_u32 s55, s55, {WS_CNT + 128*CA}")
            sync.poll(k, 40, G.sWV, [(55, 32), (56, 9)], 57)
        kgemm.emit_wok(k, pl)
        k.I(f"s_add_u32 s56, s56, {128*(CW - C1)}\ns_waitcnt vmcnt(0)\ns_barrier")
        sync.signal(k, 40, G.sWV, 56, 57)
        k.L("L_mega_aend")
        k.end(kidx)
    k.I("s_setprio 3")
    attn.emit_attn(k, 2, kidx, pfx="ma", prio=int(prio[0]), finish=a_finish)
    k.L("L_mega_b")
    k.stamp(0)
    sCN = 56
    k.I(f"""
    s_load_dwordx2 s[36:37], s[0:1], {KA_X}
    s_load_dwordx2 s[38:39], s[0:1], {KA_W2}
    s_load_dwordx2 s[40:41], s[0:1], {KA_WS}
    s_load_dwordx4 s[60:63], s[0:1], {KA_W3}
    s_load_dwordx2 s[64:65], s[0:1], {KA_WO}
    s_load_dwordx2 s[66:67], s[0:1], {KA_OUT}
    v_lshrrev_b32 v1, 6, v0
    v_readfirstlane_b32 s{G.sWV}, v1
    """)
    w3f.ids_b(k, 2)
    k.I("s_waitcnt lgkmcnt(0)")
    srd(k, G.sWS, 40, WS_SIZE)
    st0 = STAMP[0]; STAMP[0] = st0 and focus == "w2"
    kgemm.tile64_ids(k)
    k.I("s_cbranch_scc1 L_mega_side")
    kgemm.emit_w2k(k, after_setup=lambda: k.I(f"s_setprio {prio[1]}"))
    k.stamp(3)
    k.I(f"s_lshl_b32 s{sCN}, s{sRB2}, 7\ns_add_u32 s{sCN}, s{sCN}, {WS_CNT + 128*C1}\ns_branch L_mega_sig1")
    k.L("L_mega_side")
    k.I(f"""
    s_setprio {prio[1]}
    s_and_b32 s{sCN}, s2, 3
    s_cmp_ge_u32 s{sCB2}, 27
    s_cselect_b32 s{sCN}, 4, s{sCN}
    s_lshl_b32 s{sCN}, s{sCN}, 7
    s_add_u32 s{sCN}, s{sCN}, {WS_CNT + 128*CS}
    """)
    kgemm.emit_side(k, "L_mega_sig1")
    k.L("L_mega_sig1")
    k.I("s_waitcnt vmcnt(0)\ns_barrier")
    k.stamp(4)
    st = st0 and not focus
    STAMP[0] = st
    sync.signal(k, 40, G.sWV, sCN, 57)
    k.stamp(1)
    k.I(f"s_mov_b32 s38, s60\ns_mov_b32 s39, s61\ns_setprio 3")
    STAMP[0] = False
    def st2():
        STAMP[0] = st; k.stamp(2); STAMP[0] = False
    def poll1():
        k.I(f"""
        s_lshl_b32 s{sCN}, s{G.sRB}, 7
        s_add_u32 s{sCN}, s{sCN}, {WS_CNT + 128*C1}
        s_and_b32 s59, s2, 3
        s_lshl_b32 s59, s59, 7
        s_add_u32 s59, s59, {WS_CNT + 128*CS}
        """)
        sync.poll(k, 40, G.sWV, [(sCN, 9), (59, 18)], 57)
    w3f.emit_w3f(k, poll=poll1, after_sync=st2, prio=prio[2])
    STAMP[0] = st
    k.I(f"""
    s_lshl_b32 s{sCN}, s{G.sRB}, 2
    s_lshr_b32 s{G.sT0}, s{G.sCB}, 2
    s_add_u32 s{sCN}, s{sCN}, s{G.sT0}
    s_lshl_b32 s{sCN}, s{sCN}, 7
    s_add_u32 s{sCN}, s{sCN}, {WS_CNT + 128*C2}
    s_waitcnt vmcnt(0)
    s_barrier
    """)
    sync.signal(k, 40, G.sWV, sCN, 57)
    k.stamp(3)
    k.I(f"s_mov_b32 s38, s62\ns_mov_b32 s39, s63")
    kgemm.emit_w4k(k, lambda: sync.poll(k, 40, G.sWV, [(sCN, 4)], 57), prio[3])
    k.I(f"""
    s_mov_b32 s36, s66
    s_mov_b32 s37, s67
    s_lshl_b32 s{sCN}, s{G.sRB}, 2
    s_and_b32 s{G.sT0}, s{G.sCB}, 3
    s_add_u32 s{sCN}, s{sCN}, s{G.sT0}
    s_lshl_b32 s{sCN}, s{sCN}, 7
    s_add_u32 s{sCN}, s{sCN}, {WS_CNT + 128*C3}
    s_lshl_b32 s59, s{G.sRB}, 7
    s_add_u32 s59, s59, {WS_CNT + 128*CW}
    """)
    def sync_all(vt):
        k.I("s_waitcnt vmcnt(0)\ns_barrier")
        sync.signal(k, 40, G.sWV, sCN, 57)
        sync.poll(k, 40, G.sWV, [(59, 9), (sCN, 4)], 57)
        k.I("s_barrier")
        k.stamp(6)
    small.emit_sum(k, sync_all)
    STAMP[0] = st0
    k.end(kidx)
    k.L("L_mega_exit"); k.I("s_endpgm")
    k.L("L_mega_codeend")
    return k, ("mega_kernel", 512, 256, 81920)
```

```python
from common import *
from gemm import G
ST = "sc1"
LD = "sc1"

class Small:
    def __init__(self, k, wo):
        self.k = k; self.wo = wo
        self.vWo = [k.v.alloc() for _ in range(2)]
        self.vWr = [k.v.alloc() for _ in range(2)] if wo else None
        self.vWa = k.v.alloc(); self.vB = k.v.alloc()
        self.xtra = not wo
        self.acc = k.v.alloc(80, 4)
        self.Ab = [[k.v.alloc(4, 4) for t in range(5)] for b in range(2)]
        self.Bf = [k.v.alloc(4, 4) for _ in range(9)]
        self.vm = []
    def allowed(self, tags):
        last = max(i for i, t in enumerate(self.vm) if t in tags)
        return len(self.vm) - 1 - last
    def setup(self, sCOL):
        k = self.k
        vL, t0, t1, t2, t3 = self.acc, self.acc + 1, self.acc + 2, self.acc + 3, self.acc + 4
        k.I(f"v_and_b32 {v(vL)}, 63, v0\nv_lshlrev_b32 {v(self.vB)}, 4, {v(vL)}")
        k.I(f"""
        v_lshrrev_b32 {v(t1)}, 2, {v(vL)}
        v_and_b32 {v(t0)}, 3, {v(vL)}
        v_cmp_gt_u32 vcc, 2, {v(t0)}
        v_lshlrev_b32 {v(t0)}, 4, {v(t0)}
        v_mul_u32_u24 {v(t2)}, 1152, {v(t1)}
        v_add_u32 {v(self.vWo[0])}, {v(t0)}, {v(t2)}
        v_mov_b32 {v(t3)}, {hx(OOB)}
        v_cndmask_b32 {v(self.vWo[1])}, {v(t3)}, {v(self.vWo[0])}, vcc
        """)
        if self.xtra:
            k.I(f"""
            v_lshlrev_b32 {v(t2)}, 4, {v(t1)}
            v_cmp_eq_u32 vcc, 32, {v(t0)}
            v_cndmask_b32 {v(self.vWo[1])}, {v(t3)}, {v(t2)}, vcc
            s_mul_i32 s49, s{G.sWV}, {144*16}
            s_add_u32 s49, s49, {WS_W2X}
            s_mov_b32 s44, 0x33333333
            s_mov_b32 s45, 0x33333333
            s_not_b64 s[46:47], s[44:45]
            """)
        if self.wo:
            k.I(f"""
            v_lshrrev_b32 {v(t2)}, 1, {v(t1)}
            v_lshl_add_u32 {v(t1)}, {v(t2)}, 4, {v(t1)}
            v_add_u32 {v(t1)}, 16, {v(t1)}
            v_mul_u32_u24 {v(t2)}, 1152, {v(t1)}
            v_add_u32 {v(self.vWr[0])}, {v(t0)}, {v(t2)}
            v_cndmask_b32 {v(self.vWr[1])}, {v(t3)}, {v(self.vWr[0])}, vcc
            """)
        k.I(f"""
        s_mul_i32 s{G.sM0}, s{G.sWV}, 20480
        s_mul_i32 s{G.sWB}, s{G.sWV}, {144*1152}
        s_add_u32 s{G.sWB}, s{G.sWB}, s{sCOL}
        """)
        tr_lane_addr(k, self.vWa, vL, t0, t1, 512, perm=True)
        k.I(f"v_add_u32 {v(self.vWa)}, s{G.sM0}, {v(self.vWa)}")
    def dma(self, c):
        k = self.k
        rem = self.wo and c == 8
        rows = 0 if rem else (18 if self.wo else 16) * c
        k.I(f"s_add_u32 s{G.sOW}, s{G.sWB}, {rows*1152}")
        for i in range(5):
            if self.xtra and i == 4:
                k.I(f"""
                s_add_u32 m0, s{G.sM0}, {(c%4)*5120 + i*960}
                s_mov_b64 exec, s[44:45]
                buffer_load_dwordx4 {v(self.vWo[0])}, {s(G.sW,4)}, s{G.sOW} offen offset:256 lds
                s_add_u32 m0, s{G.sM0}, {(c%4)*5120 + 4096 - 256*c}
                s_mov_b64 exec, s[46:47]
                buffer_load_dwordx4 {v(self.vWo[1])}, {s(G.sWS,4)}, s49 offen offset:{256*c} lds
                s_mov_b64 exec, -1
                """)
                self.vm += [("w", c), ("w", c)]
                continue
            k.I(f"s_add_u32 m0, s{G.sM0}, {(c%4)*5120 + i*960}")
            k.I(f"buffer_load_dwordx4 {v((self.vWr if rem else self.vWo)[i // 4])}, {s(G.sW,4)}, s{G.sOW} offen offset:{64*i} lds")
            self.vm.append(("w", c))
    def prefetch(self):
        for c in range(4): self.dma(c)
    def load_b(self, sBASE):
        k = self.k
        if self.wo:
            k.I(f"s_lshl_b32 s{G.sOB}, s{G.sWV}, 13\ns_add_u32 s{G.sOB}, s{G.sOB}, s{sBASE}")
        else:
            k.I(f"s_mul_i32 s{G.sOB}, s{G.sWV}, 9216\ns_add_u32 s{G.sOB}, s{G.sOB}, s{sBASE}")
        for c in range(9):
            if c == 4: k.I(f"s_add_u32 s{G.sOB}, s{G.sOB}, 4096")
            if c == 8:
                if self.wo: k.I(f"s_lshl_b32 s{G.sOB}, s{G.sWV}, 10\ns_add_u32 s{G.sOB}, s{G.sOB}, s{sBASE}\ns_add_u32 s{G.sOB}, s{G.sOB}, 32768")
                else: k.I(f"s_add_u32 s{G.sOB}, s{G.sOB}, 4096")
            k.I(f"buffer_load_dwordx4 {v(self.Bf[c],4)}, {v(self.vB)}, {s(G.sWS,4)}, s{G.sOB} offen offset:{1024*(c%4)} {LD}")
            self.vm.append(("b", c))
    def reads(self, c):
        for t in range(5):
            for rd in range(2):
                self.k.I(f"ds_read_b64_tr_b16 {v(self.Ab[c&1][t]+2*rd,2)}, {v(self.vWa)} offset:{(c%4)*5120 + rd*256 + t*1024}")
    def main(self, after_last_dma=None):
        k = self.k
        k.I(f"s_waitcnt vmcnt({self.allowed([('w',0)])})")
        self.reads(0)
        for c in range(9):
            if c + 1 < 9:
                k.I(f"s_waitcnt vmcnt({self.allowed([('w',c+1), ('b',c)])})")
                self.reads(c + 1)
                k.I("s_waitcnt lgkmcnt(10)")
            else:
                k.I(f"s_waitcnt vmcnt({self.allowed([('b',c)])}) lgkmcnt(0)")
            for t in range(5):
                a = self.acc + 16 * t
                k.I(f"v_mfma_f32_32x32x16_bf16 {v(a,16)}, {v(self.Ab[c&1][t],4)}, {v(self.Bf[c],4)}, {'0' if c == 0 else v(a,16)}")
                if t == 0 and c + 4 < 9: self.dma(c + 4)
                if t == 0 and c == 5 and after_last_dma: after_last_dma()
    def reduce_write(self):
        k = self.k
        t = self.vWa
        k.I(f"s_mul_i32 s{G.sT0}, s{G.sWV}, 18432\nv_add_u32 {v(t)}, s{G.sT0}, {v(self.vB)}\ns_barrier")
        for b in range(9):
            for h in range(2):
                k.I(f"ds_write_b128 {v(t)}, {v(self.acc+8*b+4*h,4)} offset:{2048*b+1024*h}")
        if self.xtra:
            k.I(f"""
            v_add_f32 {v(self.acc+72)}, {v(self.acc+72)}, {v(self.acc+73)}
            v_lshlrev_b32 {v(t)}, 2, v0
            v_add_u32 {v(t)}, {80*1024 - 1024}, {v(t)}
            ds_write_b32 {v(t)}, {v(self.acc+72)}
            """)
        k.I("s_waitcnt lgkmcnt(0)\ns_barrier")
    def map_rows(self, vAF, vRM, vT):
        k = self.k
        k.I(f"""
        v_and_b32 {v(vT)}, 7, v0
        s_lshl_b32 s{G.sT0}, s{G.sWV}, 3
        v_add_u32 {v(vT)}, s{G.sT0}, {v(vT)}
        v_mul_u32_u24 {v(vRM)}, 1152, {v(vT)}
        v_lshlrev_b32 {v(vAF)}, 4, {v(vT)}
        v_bfe_u32 {v(vT)}, v0, 3, 3
        v_lshl_add_u32 {v(vRM)}, {v(vT)}, 4, {v(vRM)}
        v_lshl_add_u32 {v(vAF)}, {v(vT)}, 9, {v(vAF)}
        """)
    def reduce_read(self, vAF, dst, vT):
        k = self.k
        k.I(f"v_and_b32 {v(vT)}, 0xc00, {v(vAF)}\nv_add_u32 {v(vT)}, {v(vT)}, {v(vAF)}")
        sc = self.acc
        for sl in range(3):
            for w in range(4):
                for h in range(2):
                    d = dst + 8 * sl + 4 * h if w == 0 else sc + 24 * sl + 8 * (w - 1) + 4 * h
                    k.I(f"ds_read_b128 {v(d,4)}, {v(vT)} offset:{min(18432*w + 8192*sl + 1024*h, 65535) if 18432*w + 8192*sl + 1024*h < 65536 else 0}"
                        if 18432 * w + 8192 * sl + 1024 * h < 65536 else
                        f"ds_read_b128 {v(d,4)}, {v(vT+1)} offset:{18432*w + 8192*sl + 1024*h - 32768}")
            if sl == 0:
                k.I(f"v_add_u32 {v(vT+1)}, 32768, {v(vT)}")
        for sl in range(3):
            k.I(f"s_waitcnt lgkmcnt({min(15, 8*(2-sl))})")
            for j in range(8):
                k.I(f"v_add_f32 {v(dst+8*sl+j)}, {v(dst+8*sl+j)}, {v(sc+24*sl+j)}")
                k.I(f"v_add_f32 {v(sc+24*sl+8+j)}, {v(sc+24*sl+8+j)}, {v(sc+24*sl+16+j)}")
            for j in range(8):
                k.I(f"v_add_f32 {v(dst+8*sl+j)}, {v(dst+8*sl+j)}, {v(sc+24*sl+8+j)}")

def xsum8(k, r, tmp):
    k.I(f"v_add_f32_dpp {v(r)}, {v(r)}, {v(r)} row_ror:8 row_mask:0xf bank_mask:0xf")
    k.I(f"v_mov_b32 {v(tmp)}, {v(r)}\nv_permlane16_swap_b32 {v(r)}, {v(tmp)}\nv_add_f32 {v(r)}, {v(r)}, {v(tmp)}")
    k.I(f"v_mov_b32 {v(tmp)}, {v(r)}\nv_permlane32_swap_b32 {v(r)}, {v(tmp)}\nv_add_f32 {v(r)}, {v(r)}, {v(tmp)}")

def tile_ids(k, sCOL, base):
    k.I(f"""
    s_lshl_b32 s{G.sMT}, s{G.sRB}, 2
    s_lshr_b32 s{G.sT0}, s{G.sCB}, 2
    s_add_u32 s{G.sMT}, s{G.sMT}, s{G.sT0}
    s_and_b32 s{G.sSP}, s{G.sCB}, 3
    s_mul_i32 s{sCOL}, s{G.sSP}, 288
    s_mul_i32 s{G.sBB}, s{G.sMT}, {36*1024}
    s_add_u32 s{G.sBB}, s{G.sBB}, {base}
    """)
def row_addr(k, vD, shift, sD, base):
    k.I(f"""
    v_and_b32 {v(vD)}, 7, v0
    v_lshlrev_b32 {v(vD)}, {shift}, {v(vD)}
    s_lshl_b32 s{sD}, s{G.sMT}, 2
    s_add_u32 s{sD}, s{sD}, s{G.sWV}
    s_lshl_b32 s{sD}, s{sD}, {3+shift}
    s_add_u32 s{sD}, s{sD}, {base}
    """)
def af_off(k, sD):
    k.I(f"""
    s_mul_i32 s{sD}, s{G.sMT}, 36
    s_mul_i32 s{G.sT1}, s{G.sSP}, 9
    s_add_u32 s{sD}, s{sD}, s{G.sT1}
    s_lshl_b32 s{sD}, s{sD}, 10
    """)

def emit_w2s(k, touch=None, after_setup=None):
    k.v.next = 1
    sm = Small(k, False)
    vAF = k.v.alloc(); vRM = k.v.alloc(); vT = k.v.alloc(2, 2)
    xr = k.v.alloc(12, 4); dst = k.v.alloc(24, 4); mp = k.v.alloc(4, 4); u = k.v.alloc(4, 2); vM = k.v.alloc(); vS = k.v.alloc(); vJ = k.v.alloc(2, 2)
    sCOL = 48
    srd(k, G.sX, 36, S * D * 2); srd(k, G.sW, 38, D * D * 2)
    tile_ids(k, sCOL, WS_HS)
    sm.setup(sCOL)
    if after_setup: after_setup()
    sm.load_b(G.sBB)
    sm.prefetch()
    sm.map_rows(vAF, vRM, vT)
    k.I(f"s_mul_i32 s{G.sT0}, s{G.sMT}, {32*1152}\ns_add_u32 s{G.sT0}, s{G.sT0}, s{sCOL}")
    for sl in range(3):
        if sl == 2: k.I("s_mov_b64 exec, 0xffff")
        k.I(f"buffer_load_dwordx4 {v(xr+4*sl,4)}, {v(vRM)}, {s(G.sX,4)}, s{G.sT0} offen offset:{128*sl}")
        sm.vm += ["x"]
    k.I("s_mov_b64 exec, -1")
    row_addr(k, vT, 4, G.sT0, WS_ST1)
    k.I(f"buffer_load_dword {v(vM)}, {v(vT)}, {s(G.sWS,4)}, s{G.sT0} offen offset:12")
    sm.vm += ["x"]
    k.stamp(1)
    def tch():
        if touch:
            for g in touch(vJ):
                for x in g: k.I(x)
                sm.vm.append("t")
    sm.main(after_last_dma=tch)
    k.stamp(2)
    sm.reduce_write()
    k.I(f"""
    v_and_b32 {v(u)}, 7, v0
    s_lshl_b32 s{G.sT0}, s{G.sWV}, 5
    s_add_u32 s{G.sT0}, s{G.sT0}, {80*1024 - 1024}
    v_lshl_add_u32 {v(u)}, {v(u)}, 2, s{G.sT0}
    """)
    for w in range(4): k.I(f"ds_read_b32 {v(mp+w)}, {v(u)} offset:{256*w}")
    sm.reduce_read(vAF, dst, vT)
    k.I(f"""
    v_add_f32 {v(mp)}, {v(mp)}, {v(mp+1)}
    v_add_f32 {v(mp+2)}, {v(mp+2)}, {v(mp+3)}
    v_add_f32 {v(vM)}, {v(vM)}, {v(mp)}
    v_add_f32 {v(vM)}, {v(vM)}, {v(mp+2)}
    v_mov_b32 {v(vS)}, 0
    """)
    af_off(k, G.sT0)
    k.I(f"s_add_u32 s{G.sT0}, s{G.sT0}, {WS_X1}")
    for sl in range(3):
        if sl == 2: k.I("s_mov_b64 exec, 0xffff")
        for j in range(4):
            d = dst + 8 * sl + 2 * j
            k.I(f"""
            v_lshlrev_b32 {v(u)}, 16, {v(xr+4*sl+j)}
            v_and_b32 {v(u+1)}, 0xffff0000, {v(xr+4*sl+j)}
            v_sub_f32 {v(d)}, {v(d)}, {v(vM)}
            v_sub_f32 {v(d+1)}, {v(d+1)}, {v(vM)}
            v_add_f32 {v(d)}, {v(d)}, {v(u)}
            v_add_f32 {v(d+1)}, {v(d+1)}, {v(u+1)}
            v_cvt_pk_bf16_f32 {v(xr+4*sl+j)}, {v(d)}, {v(d+1)}
            v_fmac_f32 {v(vS)}, {v(d)}, {v(d)}
            v_fmac_f32 {v(vS)}, {v(d+1)}, {v(d+1)}
            """)
        k.I(f"buffer_store_dwordx4 {v(xr+4*sl,4)}, {v(vAF)}, {s(G.sWS,4)}, s{G.sT0} offen {ST}")
        k.I(f"s_add_u32 s{G.sT0}, s{G.sT0}, 4096")
    k.I("s_mov_b64 exec, -1")
    xsum8(k, vS, u)
    row_addr(k, vT, 4, G.sT0, WS_ST2)
    row_addr(k, vT + 1, 2, 50, WS_ST3)
    k.I(f"""
    s_lshl_b32 s{G.sT1}, s{G.sSP}, 2
    s_add_u32 s{G.sT0}, s{G.sT0}, s{G.sT1}
    s_mov_b64 exec, 0xff
    buffer_store_dword {v(vS)}, {v(vT)}, {s(G.sWS,4)}, s{G.sT0} offen {ST}
    buffer_store_dword {v(vM)}, {v(vT+1)}, {s(G.sWS,4)}, s50 offen {ST}
    s_mov_b64 exec, -1
    """)
    return 81920

def emit_wo(k, poll):
    k.v.next = 1
    sm = Small(k, True)
    vAF = k.v.alloc(); vRM = k.v.alloc(); vT = k.v.alloc(2, 2)
    xr = k.v.alloc(12, 4); dst = k.v.alloc(24, 4); g4 = k.v.alloc(4, 4); u = k.v.alloc(4, 2)
    sCOL = 48
    srd(k, G.sW, 38, D * D * 2)
    tile_ids(k, sCOL, WS_O)
    sm.setup(sCOL)
    poll(vT)
    sm.prefetch()
    k.I("s_barrier")
    k.stamp(5)
    sm.load_b(G.sBB)
    sm.map_rows(vAF, vRM, vT)
    af_off(k, 50)
    k.I(f"s_add_u32 s{G.sT0}, s50, {WS_X1}")
    for sl in range(3):
        if sl == 2: k.I("s_mov_b64 exec, 0xffff")
        k.I(f"buffer_load_dwordx4 {v(xr+4*sl,4)}, {v(vAF)}, {s(G.sWS,4)}, s{G.sT0} offen {LD}")
        k.I(f"s_add_u32 s{G.sT0}, s{G.sT0}, 4096")
        sm.vm += ["x"]
    k.I("s_mov_b64 exec, -1")
    row_addr(k, vT, 4, G.sT0, WS_ST1)
    k.I(f"buffer_load_dword {v(g4)}, {v(vT)}, {s(G.sWS,4)}, s{G.sT0} offen offset:8 sc1")
    row_addr(k, vT, 2, G.sT0, WS_ST3)
    k.I(f"buffer_load_dword {v(g4+2)}, {v(vT)}, {s(G.sWS,4)}, s{G.sT0} offen {LD}")
    sm.vm += ["x", "x"]
    sm.main()
    sm.reduce_write()
    sm.reduce_read(vAF, dst, vT)
    k.I(f"""
    v_sub_f32 {v(g4+1)}, 1.0, {v(g4)}
    v_mul_f32 {v(g4+2)}, {v(g4+1)}, {v(g4+2)}
    s_add_u32 s50, s50, {WS_PART + 4*64*36*1024}
    """)
    for sl in range(3):
        if sl == 2: k.I("s_mov_b64 exec, 0xffff")
        for j in range(4):
            d = dst + 8 * sl + 2 * j
            k.I(f"""
            v_lshlrev_b32 {v(u)}, 16, {v(xr+4*sl+j)}
            v_and_b32 {v(u+1)}, 0xffff0000, {v(xr+4*sl+j)}
            v_fma_f32 {v(d)}, {v(d)}, {v(g4)}, {v(g4+2)}
            v_fma_f32 {v(d+1)}, {v(d+1)}, {v(g4)}, {v(g4+2)}
            v_fmac_f32 {v(d)}, {v(g4+1)}, {v(u)}
            v_fmac_f32 {v(d+1)}, {v(g4+1)}, {v(u+1)}
            v_cvt_pk_bf16_f32 {v(xr+4*sl+j)}, {v(d)}, {v(d+1)}
            """)
        k.I(f"buffer_store_dwordx4 {v(xr+4*sl,4)}, {v(vAF)}, {s(G.sWS,4)}, s50 offen {ST}")
        k.I(f"s_add_u32 s50, s50, 4096")
    k.I("s_mov_b64 exec, -1")

def emit_sum(k, sync_all):
    k.v.next = 1
    vAF = k.v.alloc(); vRM = k.v.alloc(); vT = k.v.alloc(2, 2); g4 = k.v.alloc(2, 2); u = k.v.alloc(4, 2)
    k.v.next = 16
    ld = k.v.alloc(60, 4)
    sCOL = 48
    srd(k, G.sX, 36, S * D * 2)
    tile_ids(k, sCOL, 0)
    Small.map_rows(type("X", (), {"k": k})(), vAF, vRM, vT)
    row_addr(k, vT, 4, G.sT0, WS_ST1)
    k.I(f"buffer_load_dword {v(g4)}, {v(vT)}, {s(G.sWS,4)}, s{G.sT0} offen offset:8 sc1")
    af_off(k, 50)
    k.I(f"""
    s_add_u32 s50, s50, {WS_PART}
    s_add_u32 s51, s50, {64*36*1024}
    s_add_u32 s52, s51, {64*36*1024}
    s_add_u32 s53, s52, {64*36*1024}
    s_add_u32 s54, s53, {64*36*1024}
    """)
    sync_all(vT)
    for sl in range(3):
        if sl == 2: k.I("s_mov_b64 exec, 0xffff")
        for a_ in range(5):
            k.I(f"buffer_load_dwordx4 {v(ld+20*sl+4*a_,4)}, {v(vAF)}, {s(G.sWS,4)}, s{50+a_} offen {LD}")
            if sl < 2: k.I(f"s_add_u32 s{50+a_}, s{50+a_}, 4096")
    k.I("s_mov_b64 exec, -1")
    k.I(f"v_sub_f32 {v(g4+1)}, 1.0, {v(g4)}")
    k.I(f"s_mul_i32 s{G.sT0}, s{G.sMT}, {32*1152}\ns_add_u32 s{G.sT0}, s{G.sT0}, s{sCOL}")
    for sl in range(3):
        k.I(f"s_waitcnt vmcnt({5*(2-sl) + sl})")
        if sl == 2: k.I("s_mov_b64 exec, 0xffff")
        for j in range(4):
            k.I(f"v_lshlrev_b32 {v(u)}, 16, {v(ld+20*sl+j)}\nv_and_b32 {v(u+1)}, 0xffff0000, {v(ld+20*sl+j)}")
            for a_ in range(1, 5):
                x = ld + 20 * sl + 4 * a_ + j
                k.I(f"v_lshlrev_b32 {v(u+2)}, 16, {v(x)}\nv_and_b32 {v(u+3)}, 0xffff0000, {v(x)}")
                if a_ < 4:
                    k.I(f"v_pk_add_f32 {v(u,2)}, {v(u,2)}, {v(u+2,2)}")
                else:
                    k.I(f"v_pk_fma_f32 {v(u,2)}, {v(u,2)}, {v(g4,2)}, {v(u+2,2)} op_sel:[0,1,0] op_sel_hi:[1,1,1]")
            k.I(f"v_cvt_pk_bf16_f32 {v(ld+20*sl+j)}, {v(u)}, {v(u+1)}")
        k.I(f"buffer_store_dwordx4 {v(ld+20*sl,4)}, {v(vRM)}, {s(G.sX,4)}, s{G.sT0} offen offset:{128*sl}")
    k.I("s_mov_b64 exec, -1")
```

```python
from common import *
WS_CNT = 0x0BC0000
C1, C2, C3, CA, CW, CS = 0, 16, 80, 144, 160, 176
NCNT = 184
SPIN = 1 << 18

def signal(k, sP, sWV, sOFF, st):
    L = k.label("sig")
    k.I(f"""
    s_cmp_lg_u32 s{sWV}, 0
    s_cbranch_scc1 {L}
    s_mov_b32 s{st}, 1
    s_atomic_add s{st}, s[{sP}:{sP+1}], s{sOFF} glc
    s_waitcnt lgkmcnt(0)
    {L}:
    """)

def poll(k, sP, sWV, checks, st):
    L = k.label("pw")
    k.I(f"s_cmp_lg_u32 s{sWV}, 0\ns_cbranch_scc1 {L}\ns_mov_b32 s{st}, {SPIN}")
    for sOFF, target in checks:
        Lp = k.label("pp"); Ld = k.label("pd")
        k.I(f"""
        {Lp}:
        s_mov_b32 s{st+1}, 0
        s_atomic_add s{st+1}, s[{sP}:{sP+1}], s{sOFF} glc
        s_waitcnt lgkmcnt(0)
        s_cmp_ge_u32 s{st+1}, {target}
        s_cbranch_scc1 {Ld}
        s_sleep 2
        s_sub_u32 s{st}, s{st}, 1
        s_cmp_gt_i32 s{st}, 0
        s_cbranch_scc1 {Lp}
        {Ld}:
        """)
    k.L(L)
```

```python
from common import *
from gemm import G, common_ids, load_stats
ST = "sc1"
LD = "sc1"
W3_SLOT = 24576
W3_CS = 3 * W3_SLOT
W3_LDS = W3_CS
WS_CSA = WS_CS3

def ids_b(k, sID):
    k.I(f"""
    s_bfe_u32 s{G.sT0}, s{sID}, 0x10002
    s_bfe_u32 s{G.sRB}, s{sID}, 0x30003
    s_lshl_b32 s{G.sT0}, s{G.sT0}, 3
    s_add_u32 s{G.sRB}, s{G.sRB}, s{G.sT0}
    s_and_b32 s{G.sCB}, s{sID}, 3
    s_lshl_b32 s{G.sCB}, s{G.sCB}, 2
    s_bfe_u32 s{G.sT0}, s{sID}, 0x20006
    s_add_u32 s{G.sCB}, s{G.sCB}, s{G.sT0}
    """)

def emit_w3f(k, poll=None, after_sync=None, RA=5, prio=None):
    sPR, sK3, sPC, sSO, sHO = 50, 51, 52, 53, 54
    sOD, sS1, sCS = 48, 49, 55
    k.v.next = 1
    R = RA + 1
    vB = k.v.alloc(); vWo = k.v.alloc(); vWo1 = k.v.alloc(); vWa = [k.v.alloc(), k.v.alloc()]
    c1 = k.v.alloc(); c2 = k.v.alloc(); ri = k.v.alloc()
    T = k.v.alloc(4, 2); Bp = k.v.alloc(2, 2); Ap = k.v.alloc(4, 2); vC = k.v.alloc()
    acc = [k.v.alloc(32, 4), k.v.alloc(32, 4)]
    Ab = [k.v.alloc(4, 4) for _ in range(R)]
    Bf = [k.v.alloc(4, 4) for _ in range(36)]
    vL, vT0, vT1 = T, T + 1, T + 2
    srd(k, G.sW, 38, D * F * 2)
    k.I(f"""
    v_and_b32 {v(vL)}, 63, v0
    s_lshl_b32 s{G.sMT}, s{G.sRB}, 2
    s_add_u32 s{G.sMT}, s{G.sMT}, s{G.sWV}
    v_lshlrev_b32 {v(vB)}, 4, {v(vL)}
    s_and_b32 s{sPR}, s{G.sRB}, 3
    s_bfe_u32 s{sK3}, s{G.sRB}, 0x10002
    v_bfe_u32 {v(vT0)}, {v(vL)}, 2, 2
    v_lshrrev_b32 {v(vT1)}, 5, {v(vL)}
    v_lshl_add_u32 {v(vT0)}, {v(vT1)}, 2, {v(vT0)}
    s_mul_i32 s{G.sT0}, s{G.sWV}, 48
    v_add_u32 {v(vT0)}, s{G.sT0}, {v(vT0)}
    v_mul_u32_u24 {v(vWo)}, 9216, {v(vT0)}
    v_bfe_u32 {v(vT0)}, {v(vL)}, 4, 1
    v_lshl_add_u32 {v(vWo)}, {v(vT0)}, 6, {v(vWo)}
    v_and_b32 {v(vT1)}, 3, {v(vL)}
    v_lshl_add_u32 {v(vWo)}, {v(vT1)}, 4, {v(vWo)}
    v_lshrrev_b32 {v(vT0)}, 2, {v(vL)}
    v_add_u32 {v(vT0)}, s{G.sT0}, {v(vT0)}
    v_mul_u32_u24 {v(vWo1)}, 9216, {v(vT0)}
    v_lshl_add_u32 {v(vWo1)}, {v(vT1)}, 4, {v(vWo1)}
    s_mul_i32 s{G.sWB}, s{G.sCB}, 576
    s_and_b32 s{sOD}, s{G.sCB}, 1
    s_cselect_b32 s{sS1}, 0, 8
    s_mul_i32 s{G.sM0}, s{G.sWV}, 6144
    s_mul_i32 s{G.sM0D}, s{G.sWV}, 3072
    """)
    NQ = 15
    def tile0(d, p):
        return [f"s_add_u32 s{d}, s{sPR}, {p}", f"s_and_b32 s{d}, s{d}, 3", f"s_lshl_b32 s{d}, s{d}, 1", f"s_add_u32 s{d}, s{d}, s{sOD}"]
    def stage_setup(q):
        p, th = divmod(q, 3)
        r = []
        if th == 0:
            if p < 4:
                r += tile0(sPC, p) + [f"s_lshl_b32 s{sPC}, s{sPC}, 6", f"s_add_u32 s{sPC}, s{sPC}, s{G.sWB}"]
            else:
                r += [f"s_lshl_b32 s{sPC}, s{sS1}, 6", f"s_add_u32 s{sPC}, s{sPC}, s{G.sWB}"]
        r += [f"s_add_u32 s{sSO}, s{sK3}, {th}"]
        if th == 2: r += [f"s_cmp_eq_u32 s{sSO}, 3", f"s_cselect_b32 s{sSO}, 0, s{sSO}"]
        r += [f"s_mul_i32 s{sSO}, s{sSO}, {192*9216}", f"s_add_u32 s{sSO}, s{sSO}, s{sPC}"]
        return r
    def loads(q):
        p, th = divmod(q, 3)
        g = []
        n = 6 if p < 4 else 3
        for i in range(n):
            pre = stage_setup(q) if i == 0 else [f"s_add_u32 s{sSO}, s{sSO}, {(8 if p < 4 else 16)*9216}"]
            pre = pre + [f"s_add_u32 m0, s{G.sM0 if p < 4 else G.sM0D}, {th*W3_SLOT + i*1024}"]
            g.append(pre + [f"buffer_load_dwordx4 {v(vWo if p < 4 else vWo1)}, {s(G.sW,4)}, s{sSO} offen lds"])
        return g
    vm = []
    def emit_group(g, tag):
        for x in g: k.I(x)
        vm.append(tag)
    def allowed(tags):
        last = max(i for i, t in enumerate(vm) if t in tags)
        return len(vm) - 1 - last
    tr_lane_addr(k, vWa[0], vL, vT0, vT1, 2 * 2 * 256, perm=True)
    k.I(f"v_add_u32 {v(vWa[1])}, {2*W3_SLOT}, {v(vWa[0])}")
    for q in range(2):
        for g in loads(q): emit_group(g, q)
    if poll:
        poll()
        k.I("s_barrier")
    if after_sync: after_sync()
    st16 = acc[1]
    k.I(f"""
    v_and_b32 {v(vT0)}, 31, v0
    v_mul_u32_u24 {v(vT0)}, 72, {v(vT0)}
    s_mul_i32 s{G.sT0}, s{G.sMT}, {32*72}
    s_add_u32 s{G.sT0}, s{G.sT0}, {WS_ST2}
    v_lshrrev_b32 {v(vC)}, 1, {v(vB)}
    s_mul_i32 s{sCS}, s{G.sCB}, 4608
    s_add_u32 s{sCS}, s{sCS}, {WS_CS3}
    """)
    for c in range(5):
        n = 4 if c < 4 else 2
        k.I(f"buffer_load_dwordx{n} {v(st16+4*c,n)}, {v(vT0)}, {s(G.sWS,4)}, s{G.sT0} offen offset:{16*c} {LD}")
        vm.append("st")
    def cs_loads(p):
        pre = tile0(G.sT0, p) if p < 4 else [f"s_mov_b32 s{G.sT0}, s{sS1}"]
        pre += [f"s_lshl_b32 s{G.sT0}, s{G.sT0}, 9", f"s_add_u32 s{G.sT0}, s{G.sT0}, s{sCS}"]
        g = [pre + [f"buffer_load_dwordx2 {v(Ap,2)}, {v(vC)}, {s(G.sWS,4)}, s{G.sT0} offen {LD}"]]
        if p < 4: g.append([f"buffer_load_dwordx2 {v(Ap+2,2)}, {v(vC)}, {s(G.sWS,4)}, s{G.sT0} offen offset:512 {LD}"])
        return g
    k.I(f"s_mul_i32 s{G.sBB}, s{G.sMT}, {36*1024}\ns_add_u32 s{G.sBB}, s{G.sBB}, {WS_X1}")
    for th in range(3):
        k.I(f"s_add_u32 s{G.sOB}, s{sK3}, {th}")
        if th == 2: k.I(f"s_cmp_eq_u32 s{G.sOB}, 3\ns_cselect_b32 s{G.sOB}, 0, s{G.sOB}")
        k.I(f"s_mul_i32 s{G.sOB}, s{G.sOB}, {12*1024}\ns_add_u32 s{G.sOB}, s{G.sOB}, s{G.sBB}")
        for i in range(12):
            if i and i % 4 == 0: k.I(f"s_add_u32 s{G.sOB}, s{G.sOB}, 4096")
            k.I(f"buffer_load_dwordx4 {v(Bf[12*th+i],4)}, {v(vB)}, {s(G.sWS,4)}, s{G.sOB} offen offset:{1024*(i%4)} {LD}")
            vm.append(("b", 12 * th + i))
        if th == 0:
            k.stamp(1)
            k.I(f"s_waitcnt vmcnt({allowed(['st'])})")
            for c in range(1, 9):
                k.I(f"v_add_f32 {v(st16)}, {v(st16)}, {v(st16+2*c)}\nv_add_f32 {v(st16+1)}, {v(st16+1)}, {v(st16+2*c+1)}")
            m, q2, r = st16, st16 + 1, st16 + 2
            k.I(f"""
            v_mul_f32 {v(m)}, {hx(f2u(-1.0/576))}, {v(m)}
            v_mul_f32 {v(q2)}, {hx(f2u(1.0/576))}, {v(q2)}
            v_fma_f32 {v(q2)}, -{v(m)}, {v(m)}, {v(q2)}
            v_max_f32 {v(q2)}, 0, {v(q2)}
            v_add_f32 {v(q2)}, {hx(f2u(1e-5))}, {v(q2)}
            v_rsq_f32 {v(r)}, {v(q2)}
            v_sqrt_f32 {v(ri)}, {v(q2)}
            v_and_b32 {v(st16+4)}, 0xffff0000, {v(m)}
            v_sub_f32 {v(m)}, {v(m)}, {v(st16+4)}
            v_and_b32 {v(st16+5)}, 0xffff0000, {v(m)}
            v_sub_f32 {v(m)}, {v(m)}, {v(st16+5)}
            v_mul_f32 {v(c1)}, {hx(f2u(GK1))}, {v(r)}
            v_mul_f32 {v(c2)}, {v(r)}, {v(r)}
            v_mul_f32 {v(c2)}, {v(c2)}, {v(r)}
            v_mul_f32 {v(c2)}, {hx(f2u(GK2))}, {v(c2)}
            v_cvt_pk_bf16_f32 {v(st16+5)}, {v(st16+4)}, {v(st16+5)}
            v_cvt_pk_bf16_f32 {v(st16+6)}, {v(st16+4)}, {v(m)}
            v_cmp_gt_u32 vcc, 0x200, {v(vB)}
            v_cndmask_b32 {v(Bp)}, {v(st16+6)}, {v(st16+5)}, vcc
            v_cndmask_b32 {v(Bp+1)}, 0, {v(st16+5)}, vcc
            """)
    k.I(f"s_mul_i32 s{sHO}, s{G.sMT}, 288\ns_mul_i32 s{G.sT0}, s{G.sCB}, 18\ns_add_u32 s{sHO}, s{sHO}, s{G.sT0}")
    k.I(f"s_lshl_b32 s{sHO}, s{sHO}, 10\ns_add_u32 s{sHO}, s{sHO}, {WS_H}")
    k.I(f"s_waitcnt vmcnt({allowed([0])})\ns_barrier")
    if prio is not None: k.I(f"s_setprio {prio}")
    seq = []
    for q in range(NQ):
        nt = 2 if q < 12 else 1
        for ks in range(12):
            for t in range(nt): seq.append((q, ks, t, nt))
    N = len(seq)
    stage_end = {}
    for n, (q, ks, t, nt) in enumerate(seq): stage_end[q] = n + 1
    lg = []
    def reads(n):
        q, ks, t, nt = seq[n]; th = q % 3
        base = vWa[1] if th == 2 else vWa[0]
        off0 = (th % 2) * W3_SLOT if th < 2 else 0
        for rd in range(2):
            k.I(f"ds_read_b64_tr_b16 {v(Ab[n % R]+2*rd,2)}, {v(base)} offset:{off0 + (4*ks+rd)*nt*256 + t*256}")
            lg.append(n)
    def lgwait(tag):
        last = max(i for i, t in enumerate(lg) if t == tag)
        return min(15, len(lg) - 1 - last)
    def gelu_ops(p):
        a0 = acc[p & 1]; nt = 2 if p < 4 else 1
        ops = []
        if p < 4:
            ops += tile0(G.sT1, p) + [f"s_lshl_b32 s{G.sT1}, s{G.sT1}, 11", f"s_add_u32 s{G.sT1}, s{G.sT1}, s{sHO}"]
        else:
            ops += [f"s_lshl_b32 s{G.sT1}, s{sS1}, 11", f"s_add_u32 s{G.sT1}, s{G.sT1}, s{sHO}"]
        for g in range(4 * nt):
            a = a0 + 4 * g
            ops += [f"v_mul_f32 {v(T+j)}, {v(a+j)}, {v(a+j)}" for j in range(4)]
            ops += [f"v_fma_f32 {v(T+j)}, {v(T+j)}, {v(c2)}, {v(c1)}" for j in range(4)]
            ops += [f"v_mul_f32 {v(T+j)}, {v(T+j)}, {v(a+j)}" for j in range(4)]
            ops += [f"v_exp_f32 {v(T+j)}, {v(T+j)}" for j in range(4)]
            ops += [f"v_fma_f32 {v(T+j)}, {v(T+j)}, {v(ri)}, {v(ri)}" for j in range(4)]
            ops += [f"v_rcp_f32 {v(T+j)}, {v(T+j)}" for j in range(4)]
            ops += [f"v_mul_f32 {v(T+j)}, {v(T+j)}, {v(a+j)}" for j in range(4)]
            d = a0 + 8 * (g // 2) + 2 * (g % 2)
            ops += [f"v_cvt_pk_bf16_f32 {v(d)}, {v(T)}, {v(T+1)}", f"v_cvt_pk_bf16_f32 {v(d+1)}, {v(T+2)}, {v(T+3)}"]
            if g % 2:
                ops += [f"buffer_store_dwordx4 {v(a0+8*(g//2),4)}, {v(vB)}, {s(G.sWS,4)}, s{G.sT1} offen offset:{1024*(g//2)} {ST}"]
        return ops
    def cost(x):
        return 8 if x.startswith(("v_exp", "v_rcp")) else 4
    def emit_fill(x):
        k.I(x)
        if x.startswith("buffer_"): vm.append("store")
    for n in range(RA): reads(n)
    nread = RA
    limit = stage_end[0]
    nxt = 2
    fill = []
    done = -1
    for n, (q, ks, t, nt) in enumerate(seq):
        p, th = divmod(q, 3)
        s0 = stage_end[q] - 12 * nt
        r = n - s0
        NS = 12 * nt
        if r == 0:
            gl = []
            if nxt <= q + 2 and nxt < NQ:
                gl = [(nxt, g) for g in loads(nxt)]; nxt += 1
            if th == 0: gl += [(("cs", p), g) for g in cs_loads(p)]
            span = NS - RA
            where = {}
            for j, g in enumerate(gl): where.setdefault(j * span // len(gl), []).append(g)
            assert all(len(x) == 1 for x in where.values())
            if th == 0 and p > 0:
                assert not fill
                fill = gelu_ops(p - 1)
                fill_total = sum(cost(x) for x in fill); fill_done = 0
                pass_len = 36 * nt
        a = acc[p & 1] + 16 * t
        w = []
        if p == 0 and t == 0: w.append(f"vmcnt({allowed([('b', 12*th+ks)])})")
        if done < n:
            tgt = min(n + 1, nread - 1)
            w.append(f"lgkmcnt({lgwait(tgt)})"); done = tgt
        if w: k.I("s_waitcnt " + " ".join(w))
        k.I(f"v_mfma_f32_32x32x16_bf16 {v(a,16)}, {v(Ab[n % R],4)}, {v(Bf[12*th+ks],4)}, {'0' if th == 0 and ks == 0 else v(a,16)}")
        if th == 2 and ks == 2:
            if t == 0: k.I(f"s_waitcnt vmcnt({allowed([('cs', p)])})")
            k.I(f"v_mfma_f32_32x32x8_bf16 {v(a,16)}, {v(Ap+2*t,2)}, {v(Bp,2)}, {v(a,16)}")
        if r == NS - RA + 1 and q < NQ - 1:
            assert nread == limit
            k.I(f"s_waitcnt vmcnt({allowed([q+1])}) lgkmcnt(0)")
            k.I("s_barrier")
            limit = stage_end[q + 1]
            done = nread - 1
            if q == 11:
                k.I(f"v_and_b32 {v(vWo)}, 0x200, {v(vB)}\nv_sub_u32 {v(vWa[0])}, {v(vWa[0])}, {v(vWo)}\nv_sub_u32 {v(vWa[1])}, {v(vWa[1])}, {v(vWo)}")
        gs = where.get(r, [])
        for (tag, g) in gs:
            for x in g[:-1]: k.I(x)
        cnt = 0
        while nread < min(n + RA + 1, limit, N) and cnt < 2:
            reads(nread); nread += 1; cnt += 1
        for (tag, g) in gs:
            k.I(g[-1]); vm.append(tag)
        if fill:
            pos = th * NS + r
            if pos >= 2:
                tgt = fill_total * (pos - 1) / (pass_len - 4)
                while fill and fill_done < tgt:
                    x = fill.pop(0); emit_fill(x); fill_done += cost(x)
    assert not fill
    k.I("s_setprio 3")
    for x in gelu_ops(4): emit_fill(x)
    return W3_LDS

def standalone(k, sID, kidx):
    k.stamp(0)
    k.I(f"s_load_dwordx2 s[38:39], s[0:1], {KA_W3}\ns_load_dwordx2 s[40:41], s[0:1], {KA_WS}")
    k.I(f"v_lshrrev_b32 v1, 6, v0\nv_readfirstlane_b32 s{G.sWV}, v1")
    ids_b(k, sID)
    k.I("s_waitcnt lgkmcnt(0)")
    srd(k, G.sWS, 40, WS_SIZE)
    lds = emit_w3f(k)
    k.end(kidx)
    return lds
```

```python
import sys
from common import *
import k1, mega
STAMP[0] = "nostamp" not in sys.argv
opt = dict(a.split("=") for a in sys.argv if "=" in a)
ks = [k1.gen_k1(0, code_label="L_mega_codestart", code_bytes="L_mega_codeend-L_mega_codestart-4"), mega.gen_mega(1, opt.get("prio", "12202"), opt.get("focus"))]
hdr = "".join(l for l in open("gated_mix__mha_block__mixer_s_mlp__prompt.s.ref").readlines()[:13])
open(sys.argv[1], "w").write(build([a for a, b in ks], [b for a, b in ks], header=hdr))
for a, b in ks: print(b, "vgprs", a.v.hi)
```

```python
import re

STAMP = [False]
class Regs:
    def __init__(self, prefix, limit, start=0):
        self.p = prefix; self.limit = limit; self.next = start; self.hi = start
    def alloc(self, n=1, align=1):
        if n > 1 and align == 1: align = 2
        b = (self.next + align - 1) // align * align
        assert b + n <= self.limit, f"out of {self.p} regs: need {b+n} > {self.limit}"
        self.next = b + n; self.hi = max(self.hi, self.next)
        return b
    def mark(self): return self.next
    def reset(self, m): self.next = m

def v(b, n=1): return f"v{b}" if n == 1 else f"v[{b}:{b+n-1}]"
def a(b, n=1): return f"a{b}" if n == 1 else f"a[{b}:{b+n-1}]"
def s(b, n=1): return f"s{b}" if n == 1 else f"s[{b}:{b+n-1}]"

_REG = re.compile(r"^(-|abs\(|\|)?([vas])(\d+)\)?\|?$")
_RNG = re.compile(r"^(-)?([vas])\[(\d+):(\d+)\]$")
def regs_of(op):
    op = op.strip()
    if op in ("vcc",): return {"vcc"}
    if op in ("vcc_lo", "vcc_hi"): return {"vcc"}
    if op in ("exec", "exec_lo", "exec_hi"): return {"exec"}
    if op == "m0": return {"m0"}
    m = _RNG.match(op)
    if m: return {f"{m.group(2)}{i}" for i in range(int(m.group(3)), int(m.group(4)) + 1)}
    m = _REG.match(op)
    if m: return {f"{m.group(2)}{m.group(3)}"}
    return set()

TRANS = ("v_exp_", "v_log_", "v_rcp_", "v_rsq_", "v_sqrt_", "v_sin_", "v_cos_")
class Ins:
    def __init__(self, text):
        self.text = text
        t = text.split(";")[0].strip()
        parts = t.split(None, 1)
        self.mn = parts[0]
        rest = parts[1] if len(parts) > 1 else ""
        ops = [o.strip() for o in re.split(r",(?![^\[]*\])", rest)] if rest else []
        self.mods = []
        if ops:
            last = ops[-1].split()
            if last:
                ops[-1] = last[0]; self.mods = last[1:]
        self.ops = ops
        mn = self.mn
        self.is_mfma = mn.startswith("v_mfma")
        self.is_valu = mn.startswith("v_") and not self.is_mfma
        self.is_trans = mn.startswith(TRANS)
        self.is_ds = mn.startswith("ds_")
        self.is_vmem = mn.startswith(("buffer_", "global_", "flat_"))
        self.is_smem = mn.startswith(("s_load", "s_buffer_load", "s_memtime", "s_memrealtime", "s_atomic"))
        self.is_salu = mn.startswith("s_") and not self.is_smem
        self.is_branch = mn.startswith(("s_branch", "s_cbranch"))
        self.is_dot = mn.startswith("v_dot")
        self.lds_dma = self.is_vmem and ("lds" in self.mods or "_lds_" in mn)
        self.dpp = any(m.startswith(("row_", "quad_perm", "wave_", "row_bcast")) for m in self.mods)
        w, r = set(), set()
        R = [regs_of(o) for o in ops]
        if self.is_mfma:
            w |= R[0]; self.srcA = R[1]; self.srcB = R[2]; self.srcC = R[3]; r |= R[1] | R[2] | R[3]
            self.passes = 4 if "16x16" in mn else 8
        elif self.is_valu:
            if mn.startswith("v_nop"): pass
            elif mn.startswith("v_cmpx"):
                w |= R[0] | {"exec"}; [r.update(x) for x in R[1:]]
            elif mn.startswith(("v_add_co", "v_sub_co", "v_subrev_co", "v_addc_co", "v_subb_co", "v_mad_u64", "v_div_scale")):
                w |= R[0] | R[1]; [r.update(x) for x in R[2:]]
            elif mn.startswith(("v_permlane32_swap", "v_permlane16_swap", "v_swap")):
                w |= R[0] | R[1]; r |= R[0] | R[1]
            else:
                w |= R[0]; [r.update(x) for x in R[1:]]
                if mn.startswith(("v_fmac", "v_dot2c", "v_pk_fmac", "v_writelane")) or self.dpp: r |= R[0]
                if any(m.startswith("dst_unused:UNUSED_PRESERVE") for m in self.mods): r |= R[0]
        elif self.is_ds:
            if mn.startswith(("ds_read", "ds_bpermute", "ds_permute", "ds_swizzle")) or "_rtn" in mn:
                w |= R[0]; [r.update(x) for x in R[1:]]
            else:
                [r.update(x) for x in R]
        elif self.is_vmem:
            if self.lds_dma:
                [r.update(x) for x in R]; r.add("m0")
            elif "_load" in mn:
                w |= R[0]; [r.update(x) for x in R[1:]]
            elif "atomic" in mn and "sc0" in self.mods:
                w |= R[0]; [r.update(x) for x in R]
            else:
                [r.update(x) for x in R]
        elif self.is_smem:
            w |= R[0]; [r.update(x) for x in R[1:]]
            if mn.startswith("s_atomic"): r |= R[0]
        elif self.is_salu:
            if mn.startswith(("s_cmp", "s_waitcnt", "s_barrier", "s_nop", "s_setprio", "s_endpgm", "s_sleep", "s_bitcmp")) or self.is_branch:
                [r.update(x) for x in R]
                if "vcc" in mn: r.add("vcc")
                if "exec" in mn: r.add("exec")
            elif "saveexec" in mn:
                w |= R[0] | {"exec"}; [r.update(x) for x in R[1:]]; r.add("exec")
            else:
                w |= R[0]; [r.update(x) for x in R[1:]]
                if mn.startswith(("s_addk", "s_mulk")): r |= R[0]
        self.w, self.r = w, r
        self.states = 1
        if mn == "s_nop": self.states = int(ops[0], 0) + 1
        self.wide_store = (self.is_vmem and "store" in mn and ("x3" in mn or "x4" in mn))
        if self.wide_store:
            self.sdata = R[0] if mn.startswith("buffer_") else R[1]

def required(p, c):
    need = 0
    vw = {x for x in p.w if x[0] in "va" and x != "vcc"}
    sw = {x for x in p.w if x[0] == "s" or x == "vcc"}
    if p.is_mfma:
        big = {4: 8, 8: 12}[p.passes]
        if c.is_mfma:
            if vw & (c.srcA | c.srcB): need = max(need, big)
            if vw & c.srcC:
                if not (c.srcC == p.w and c.passes == p.passes): need = max(need, {4: 6, 8: 10}[p.passes])
            elif vw & c.w: need = max(need, big)
        elif c.is_valu or c.is_vmem or c.is_ds:
            if vw & (c.r | c.w): need = max(need, big)
        if c.is_valu and (p.srcC & c.w): need = max(need, {4: 3, 8: 7}[p.passes])
        if (c.is_ds or c.is_vmem) and (p.srcC & c.w): need = max(need, {4: 3, 8: 7}[p.passes])
    if p.is_valu:
        if c.is_mfma and (vw & c.r): need = max(need, 3 if p.is_dot else 2)
        if c.is_mfma and "exec" in p.w: need = max(need, 4)
        if p.is_trans and c.is_valu and not c.is_trans and (vw & c.r): need = max(need, 1)
        if p.is_trans and (c.is_vmem or c.is_ds) and (vw & c.r): need = max(need, 1)
        if p.is_dot and (c.is_valu or c.is_vmem or c.is_ds) and (vw & (c.r | c.w)):
            same_c = (c.mn == p.mn and not (vw & (regs_of(c.ops[1]) | regs_of(c.ops[2]))))
            if not same_c: need = max(need, 3)
        if c.is_vmem and (sw & c.r): need = max(need, 5)
        if c.is_valu and (sw & c.r):
            need = max(need, 4 if c.mn.startswith(("v_readlane", "v_writelane", "v_div_fmas")) else 2)
        if c.is_salu and (sw & c.r): need = max(need, 2)
        if c.mn.startswith(("v_readlane", "v_readfirstlane")) and (vw & c.r): need = max(need, 1)
        if c.mn.startswith("v_permlane") and (vw & c.r): need = max(need, 2)
        if c.dpp and (vw & c.r): need = max(need, 2)
        if "exec" in p.w and (c.dpp): need = max(need, 5)
        if "exec" in p.w and c.mn.startswith(("v_readlane", "v_readfirstlane", "v_writelane", "v_permlane")): need = max(need, 4)
        if any(m.startswith(("op_sel:", "dst_sel")) for m in p.mods) and not p.mn.startswith("v_pk_") and c.is_valu and (vw & (c.r | c.w)): need = max(need, 1)
    if p.is_salu and "m0" in p.w and (c.lds_dma or "addtid" in c.mn): need = max(need, 1)
    if p.wide_store and (p.sdata & c.w): need = max(need, 2)
    return need

class Kern:
    def __init__(self, name, vlimit=256):
        self.name = name; self.items = []
        self.v = Regs("v", vlimit); self.s = Regs("s", 102); self.a = Regs("a", 256)
        self.uid = 0
    def I(self, text):
        for line in text.split("\n"):
            t = line.strip()
            if not t: continue
            if t.startswith(";"): self.items.append(("c", t)); continue
            if t.endswith(":"): self.items.append(("l", t[:-1])); continue
            if t.startswith("."): self.items.append(("d", t)); continue
            self.items.append(("i", Ins(t)))
    def L(self, label): self.items.append(("l", label))
    def cstamp(self, i):
        if STAMP[0]:
            self.I(f"s_memtime s[{82+2*i}:{83+2*i}]\ns_waitcnt lgkmcnt(0)")
    def stamp(self, i):
        if STAMP[0]:
            self.I(f"s_memrealtime s[{82+2*i}:{83+2*i}]\ns_memtime s[98:99]\ns_waitcnt lgkmcnt(0)\ns_mov_b32 s{83+2*i}, s98")
    def end(self, kidx):
        if STAMP[0]:
            self.I(f"""s_waitcnt vmcnt(0) lgkmcnt(0)
            s_memrealtime s[96:97]
            s_memtime s[98:99]
            s_load_dwordx2 s[100:101], s[0:1], 88
            s_waitcnt lgkmcnt(0)
            s_mov_b32 s97, s98
            v_lshrrev_b32 v0, 6, v0
            v_lshlrev_b32 v0, 5, v0
            s_lshl_b32 s98, s2, 9
            s_add_u32 s98, s98, {0x8000000 + kidx * 0x100000}
            v_add_u32 v0, s98, v0""")
            for i in range(8):
                self.I(f"v_mov_b32 v{2+i}, s{82+2*i}")
            self.I("global_store_dwordx4 v0, v[2:5], s[100:101]")
            self.I("global_store_dwordx4 v0, v[6:9], s[100:101] offset:16")
            for i in range(8):
                self.I(f"v_mov_b32 v{10+i}, s{83+2*i}")
            self.I("global_store_dwordx4 v0, v[10:13], s[100:101] offset:256")
            self.I("global_store_dwordx4 v0, v[14:17], s[100:101] offset:272")
        self.I("s_endpgm")
    def label(self, base):
        self.uid += 1
        return f"L_{getattr(self, 'name_short', self.name)}_{base}_{self.uid}"
    def _cfg(self):
        idx = [i for i, it in enumerate(self.items) if it[0] == "i"]
        pos = {i: n for n, i in enumerate(idx)}
        lab = {}
        pending = []
        for i, it in enumerate(self.items):
            if it[0] == "l": pending.append(it[1])
            elif it[0] == "i":
                for l in pending: lab[l] = pos[i]
                pending = []
        ins = [self.items[i][1] for i in idx]
        succ = [[] for _ in ins]
        for n, x in enumerate(ins):
            if x.mn == "s_endpgm": continue
            if x.is_branch:
                succ[n].append(lab[x.ops[0]])
                if x.mn == "s_branch": continue
            if n + 1 < len(ins): succ[n].append(n + 1)
        return idx, ins, succ, lab
    def fix_hazards(self):
        total = 0
        while True:
            idx, ins, succ, lab = self._cfg()
            pred = [[] for _ in ins]
            for n, ss in enumerate(succ):
                for m in ss: pred[m].append(n)
            inserts = []
            n = 0
            last_fixed = -100
            for n, c in enumerate(ins):
                if c.mn in ("s_nop",): continue
                need = 0
                stack = [(p, 0) for p in pred[n]]
                seen = {}
                while stack:
                    p, el = stack.pop()
                    if seen.get(p, 99) <= el: continue
                    seen[p] = el
                    rq = required(ins[p], c)
                    if rq - el > need: need = rq - el
                    el2 = el + ins[p].states
                    if el2 < 13:
                        for q in pred[p]: stack.append((q, el2))
                if need > 0 and n - last_fixed > 14:
                    inserts.append((idx[n], need)); last_fixed = n
            if not inserts: break
            for at, need in reversed(inserts):
                self.items.insert(at, ("i", Ins(f"s_nop {need-1}")))
                total += need
        return total
    def check_waits(self):
        idx, ins, succ, lab = self._cfg()
        targets = set(lab.values())
        seen = set()
        work = [(0, (), ())]
        errs = set()
        while work:
            n, vm, lg = work.pop()
            while True:
                if n in targets:
                    key = (n, vm, lg)
                    if key in seen: break
                    seen.add(key)
                    if len(seen) > 20000: raise RuntimeError("wait check: too many states")
                x = ins[n]
                touched = x.r | x.w
                for e in vm + lg:
                    if "junk" in x.text and not (e[0] & x.r): continue
                    if e[0] & touched:
                        errs.add((n, x.text, tuple(sorted(e[0] & touched))))
                if x.mn == "s_waitcnt":
                    t = x.text.split(";")[0]
                    m = re.search(r"vmcnt\((\d+)\)", t)
                    if m:
                        k = int(m.group(1)); vm = vm[len(vm) - k:] if k < len(vm) else vm
                        if k == 0: vm = ()
                    m = re.search(r"lgkmcnt\((\d+)\)", t)
                    if m:
                        k = int(m.group(1))
                        if k == 0: lg = ()
                        else:
                            ds = [e for e in lg if not e[1]]
                            lg = tuple(e for e in lg if e[1]) + tuple(ds[len(ds) - k:] if k < len(ds) else ds)
                elif x.is_vmem:
                    vm = (vm + ((frozenset(x.w), False),))[-64:]
                elif x.is_ds:
                    lg = (lg + ((frozenset(x.w), False),))[-40:]
                elif x.is_smem:
                    lg = (lg + ((frozenset(x.w), True),))[-40:]
                ss = succ[n]
                if not ss: break
                for m in ss[:-1]: work.append((m, vm, lg))
                n = ss[-1]
        if errs:
            for e in sorted(errs): print("WAIT ERROR", self.name, e)
            raise RuntimeError("waitcnt check failed")
    def text(self):
        out = [f".globl {self.name}", ".p2align 8", f".type {self.name},@function", f"{self.name}:"]
        for k, x in self.items:
            if k == "i": out.append("    " + x.text)
            elif k == "l": out.append(x + ":")
            else: out.append("    " + x)
        return "\n".join(out) + "\n"
    def desc(self, nv=None, na=None):
        nv = nv or self.v.hi; na = self.a.hi if na is None else na
        acc = (nv + 3) // 4 * 4
        tot = acc + na if na else nv
        return f""".p2align 6
.amdhsa_kernel {self.name}
  .amdhsa_next_free_vgpr {tot}
  .amdhsa_next_free_sgpr 102
  .amdhsa_accum_offset {acc}
  .amdhsa_group_segment_fixed_size 0
  .amdhsa_kernarg_size 96
  .amdhsa_user_sgpr_count 2
  .amdhsa_user_sgpr_kernarg_segment_ptr 1
  .amdhsa_system_sgpr_workgroup_id_x 1
  .amdhsa_float_denorm_mode_32 3
  .amdhsa_float_denorm_mode_16_64 3
.end_amdhsa_kernel
"""

def build(kerns, launches, header="", single=False):
    out = header
    for (n, g, b, lds) in launches:
        out += f"; @launch {'' if single else 'kernel=' + n + ' '}grid=({g},1,1) block=({b},1,1) lds={lds}\n"
    out += '.amdgcn_target "amdgcn-amd-amdhsa--gfx950"\n.text\n'
    for k in kerns:
        nn = k.fix_hazards()
        k.check_waits()
        out += k.text()
    out += '.section .rodata,"a"\n'
    for k in kerns: out += k.desc()
    return out
```

```python
from common import *
import sync
ST = "sc1"
NOATT = False
SLOT = 20480
ND = 3
FLAG = ND * SLOT
P_WO, P_W4 = 64, 74

def emit_attn(k, sID, kidx, pfx="at", prio=0, finish=None, poll=None):
    sWS = 4
    sWV, sHD, sQB, sG, sCNT, sT0, sT1, sRETRY, sDS, sRS, sM0 = range(8, 19)
    sB = [19, 20, 21, 22, 23]; sS = [26, 27, 28, 29, 30]
    sO = 31
    sPW, sPO = 44, 52
    k.v.next = 1
    vL = k.v.alloc(); vK = k.v.alloc(); vX = k.v.alloc(); vT0 = k.v.alloc(); vT1 = k.v.alloc()
    aK0 = vK; aX0 = k.v.alloc(); aV0 = k.v.alloc(); aK = k.v.alloc(); aX = k.v.alloc(); aV = k.v.alloc(); vP = k.v.alloc(); vJ = k.v.alloc()
    O = k.v.alloc(32, 4)
    Sb = [k.v.alloc(16, 4) for _ in range(2)]
    P = k.v.alloc(8, 4)
    Qm = [k.v.alloc(4, 4) for _ in range(2)]
    Qx = [k.v.alloc(2, 2) for _ in range(2)]
    Km = [k.v.alloc(4, 4) for _ in range(2)]
    Vf = [k.v.alloc(8, 4) for _ in range(2)]
    Kx = [k.v.alloc(2, 2) for _ in range(2)]
    k.I(f"""
    s_mov_b64 s[24:25], s[40:41]
    v_and_b32 {v(vL)}, 63, v0
    v_lshrrev_b32 {v(vT0)}, 6, v0
    s_and_b32 s{sHD}, s{sID}, 7
    v_readfirstlane_b32 s{sWV}, {v(vT0)}
    s_lshl_b32 s{sHD}, s{sHD}, 2
    s_bfe_u32 s{sT0}, s{sID}, 0x20003
    s_add_u32 s{sHD}, s{sHD}, s{sT0}
    s_lshr_b32 s{sQB}, s{sID}, 5
    v_lshlrev_b32 {v(vK)}, 4, {v(vL)}
    v_cmp_gt_u32 vcc, 32, {v(vL)}
    v_lshlrev_b32 {v(vT0)}, 2, {v(vL)}
    v_mov_b32 {v(vT1)}, {hx(OOB)}
    v_cndmask_b32 {v(vX)}, {v(vT1)}, {v(vT0)}, vcc
    v_and_b32 {v(aX0)}, 0x7c, {v(vT0)}
    v_add_u32 {v(aX0)}, {18*1024}, {v(aX0)}
    v_and_b32 {v(aV0)}, 0x13, {v(vL)}
    v_and_b32 {v(vT0)}, 4, {v(vL)}
    v_lshl_or_b32 {v(aV0)}, {v(vT0)}, 1, {v(aV0)}
    v_bfe_u32 {v(vT0)}, {v(vL)}, 3, 1
    v_lshl_or_b32 {v(aV0)}, {v(vT0)}, 2, {v(aV0)}
    v_min_u32 {v(aV0)}, 19, {v(aV0)}
    v_lshrrev_b32 {v(vT0)}, 5, {v(vL)}
    v_mul_u32_u24 {v(vT0)}, 320, {v(vT0)}
    v_lshl_add_u32 {v(aV0)}, {v(aV0)}, 4, {v(vT0)}
    v_add_u32 {v(aV0)}, 8192, {v(aV0)}
    v_lshrrev_b32 {v(vT0)}, 5, {v(vL)}
    v_lshl_add_u32 {v(aX0)}, {v(vT0)}, 10, {v(aX0)}
    s_mul_i32 s{sM0}, s{sWV}, 5120
    """)
    k.I(f"""
    s_lshl_b32 s32, s{sHD}, 16
    s_add_u32 s32, s32, {WS_KM}
    s_mul_i32 s33, s{sHD}, {128*VT_STEP}
    s_add_u32 s33, s33, {WS_VT - 8192}
    s_lshl_b32 s34, s{sHD}, 13
    s_add_u32 s34, s34, {WS_KX}
    """)
    for i in range(5):
        k.I(f"""
        s_add_u32 s{sT0}, s{sM0}, {1024*i}
        s_cmp_lt_u32 s{sT0}, 8192
        s_cselect_b32 s{sB[i]}, s32, s33
        s_movk_i32 s{sS[i]}, {16*VT_STEP}
        s_cselect_b32 s{sS[i]}, 8192, s{sS[i]}
        s_add_u32 s{sB[i]}, s{sB[i]}, s{sT0}
        """)
        if i == 3:
            k.I(f"s_cmp_eq_u32 s{sWV}, 3\ns_cselect_b32 s{sB[i]}, s34, s{sB[i]}\ns_cselect_b32 s{sS[i]}, 1024, s{sS[i]}")
        if i == 4:
            k.I(f"s_cmp_eq_u32 s{sWV}, 3\ns_cselect_b32 s{sB[i]}, 0x4000000, s{sB[i]}\ns_cselect_b32 s{sS[i]}, 0, s{sS[i]}")
    srd(k, sWS, 24, WS_SIZE)
    k.I(f"""
    s_lshr_b32 s32, s{sID}, 3
    s_lshl_b32 s32, s32, 2
    s_add_u32 s32, s32, s{sWV}
    s_and_b32 s33, s{sID}, 3
    s_lshl_b32 s33, s33, 1
    s_bfe_u32 s34, s{sID}, 0x10002
    s_add_u32 s33, s33, s34
    s_mul_i32 s36, s33, 5184
    s_mul_i32 s34, s32, 41
    s_add_u32 s36, s36, s34
    s_lshl_b32 s36, s36, 7
    s_add_u32 s37, s36, {41*128}
    s_min_u32 s37, s37, {D*F*2}
    s_mul_i32 s38, s33, 648
    s_mul_i32 s34, s32, 6
    s_add_u32 s38, s38, s34
    s_lshl_b32 s38, s38, 7
    s_add_u32 s39, s38, {6*128}
    s_min_u32 s39, s39, {D*D*2}
    s_bfe_u32 s35, s{sID}, 0x10005
    s_add_u32 s35, s35, 5
    v_lshlrev_b32 {v(vP)}, 7, {v(vL)}
    """)
    k.I(f"""
    s_lshl_b32 s{sT0}, s{sHD}, 6
    s_lshl_b32 s{sT1}, s{sQB}, 3
    s_add_u32 s{sT0}, s{sT0}, s{sT1}
    s_lshl_b32 s{sT1}, s{sWV}, 1
    s_add_u32 s{sT0}, s{sT0}, s{sT1}
    s_lshl_b32 s33, s{sT0}, 7
    s_add_u32 s33, s33, {WS_QX}
    s_lshl_b32 s32, s{sT0}, 10
    s_mov_b32 s{sRETRY}, 0
    """)
    for i in range(2):
        k.I(f"v_mov_b32 {v(Qx[i]+1)}, 0\nv_mov_b32 {v(Kx[i]+1)}, 0x3f803f80")
    poll(sWV)
    srd(k, sPW, P_W4, 0); srd(k, sPO, P_WO, 0)
    for i in range(2):
        k.I(f"buffer_load_dwordx4 {v(Qm[i],4)}, {v(vK)}, {s(sWS,4)}, s32 offen offset:{1024*i} sc1")
        k.I(f"buffer_load_dword {v(Qx[i])}, {v(vX)}, {s(sWS,4)}, s33 offen offset:{128*i} sc1")
    def dma():
        g = []
        for i in range(5):
            g.append([f"s_mul_i32 s{sO}, s{sG}, s{sS[i]}", f"s_add_u32 m0, s{sDS}, {1024*i}", f"s_add_u32 s{sO}, s{sO}, s{sB[i]}",
                      f"buffer_load_dwordx4 {v(vK)}, {s(sWS,4)}, s{sO} offen sc1 lds"])
        adv = [f"s_add_u32 s{sG}, s{sG}, 1", f"s_and_b32 s{sG}, s{sG}, 7", f"s_add_u32 s{sDS}, s{sDS}, {SLOT}",
               f"s_cmp_ge_u32 s{sDS}, {ND*SLOT}", f"s_cselect_b32 s{sDS}, s{sM0}, s{sDS}"]
        return g, adv
    def next_addr():
        return [f"v_add_u32 {v(aK)}, s{sRS}, {v(aK0)}", f"v_add_u32 {v(aX)}, s{sRS}, {v(aX0)}"]
    def next_addr_v():
        return [f"v_add_u32 {v(aV)}, s{sRS}, {v(aV0)}", f"s_add_u32 s{sRS}, s{sRS}, {SLOT}", f"s_cmp_eq_u32 s{sRS}, {ND*SLOT}", f"s_cselect_b32 s{sRS}, 0, s{sRS}"]
    def rdK(t): return [f"ds_read_b128 {v(Km[t&1],4)}, {v(aK)} offset:{1024*(t%8)}", f"ds_read_b32 {v(Kx[t&1])}, {v(aX)} offset:{128*(t%8)}"]
    def rdV(t): return [f"ds_read_b128 {v(Vf[t&1]+4*e,4)}, {v(aV)} offset:{(2*(t%8)+e)*VT_STEP}" for e in range(2)]
    Lmain = f"L_{pfx}_main"; Lloop = f"L_{pfx}_loop"; Lfb = f"L_{pfx}_fb"; Ldone = f"L_{pfx}_done"
    k.L(Lmain)
    k.I(f"s_mov_b32 s{sG}, s{sQB}\ns_mov_b32 s{sDS}, s{sM0}\ns_mov_b32 s{sRS}, 0")
    for st in range(2):
        g, adv = dma()
        for x in sum(g, []) + adv: k.I(x)
    k.I(f"""
    s_cmp_lg_u32 s{sWV}, 3
    s_cbranch_scc1 L_{pfx}_nf2
    s_lshl_b32 s{sT0}, s{sID}, 7
    s_add_u32 s{sT0}, s{sT0}, {sync.WS_CNT + 128*sync.CP}
    s_mov_b32 s{sT1}, 2
    s_atomic_add s{sT1}, s[24:25], s{sT0} glc
    s_waitcnt lgkmcnt(0)
    L_{pfx}_nf2:
    """)
    if NOATT: k.I(f"s_branch {Ldone}")
    for r in range(32): k.I(f"v_mov_b32 {v(O+r)}, 0")
    for r in range(4):
        k.I(f"v_mov_b32 {v(P+4+r)}, 0\nv_mov_b32 {v(Vf[1]+4+r)}, 0")
    k.I(f"v_mov_b32 {v(vT0)}, {FLAG}\nv_mov_b32 {v(vT1)}, 0\nds_write_b32 {v(vT0)}, {v(vT1)}")
    for x in next_addr() + next_addr_v(): k.I(x)
    def S1(sb, b, i): return f"v_mfma_f32_32x32x16_bf16 {v(Sb[sb],16)}, {v(Km[b],4)}, {v(Qm[i],4)}, 0"
    def S2(sb, b, i): return f"v_mfma_f32_32x32x8_bf16 {v(Sb[sb],16)}, {v(Kx[b],2)}, {v(Qx[i],2)}, {v(Sb[sb],16)}"
    def PV(half, b, i): return f"v_mfma_f32_32x32x16_bf16 {v(O+16*i,16)}, {v(Vf[b]+4*half,4)}, {v(P+4*half,4)}, {v(O+16*i,16)}"
    def grp(sb, g):
        r = Sb[sb] + 4 * g
        return [f"v_exp_f32 {v(r+j)}, {v(r+j)}" for j in range(4)] + \
               [f"v_cvt_pk_bf16_f32 {v(P+2*g)}, {v(r)}, {v(r+1)}", f"v_cvt_pk_bf16_f32 {v(P+2*g+1)}, {v(r+2)}, {v(r+3)}"]
    k.I("s_waitcnt vmcnt(5) lgkmcnt(0)\ns_barrier")
    k.stamp(1)
    for x in rdK(0) + rdV(0): k.I(x)
    k.I(f"s_mov_b32 s{sCNT}, 8\ns_waitcnt lgkmcnt(2)")
    k.I(S1(0, 0, 0)); k.I(S2(0, 0, 0))
    k.I(f"s_setprio {prio}\ns_nop 7")
    k.I(".p2align 3")
    k.L(Lloop)
    g, adv = dma()
    touch = [[f"s_cmp_eq_u32 s{sCNT}, s35", f"s_cselect_b32 s{sPW+2}, s37, 0", f"s_cselect_b32 s{sPO+2}, s39, 0",
              f"buffer_load_dword {v(vJ)}, {v(vP)}, {s(sPW,4)}, s36 offen ; junk"],
             [f"buffer_load_dword {v(vJ)}, {v(vP)}, {s(sPO,4)}, s38 offen ; junk"]]
    pend = g + touch
    for t in range(8):
        for i in range(2):
            sb = i
            nb, ni = (t & 1, 1) if i == 0 else ((t + 1) & 1, 0)
            pb, pi = (t & 1, 0) if i == 1 else ((t - 1) & 1, 1)
            extra = [[], [], [], []]
            if i == 0:
                if t == 7:
                    extra[0] = next_addr() + ["s_waitcnt vmcnt(7) lgkmcnt(0)", "s_barrier"]
                extra[0] = extra[0] + rdK(t + 1)
                if pend and t < 7: extra[1] = ["s_setprio 3"] + pend.pop(0) + [f"s_setprio {prio}"]
            else:
                k.I("s_waitcnt lgkmcnt(0)")
                if t == 7: extra[0] = next_addr_v()
                extra[0] = extra[0] + rdV(t + 1)
                if t == 5: extra[2] = adv
                if t == 7: extra[3] = [f"s_sub_u32 s{sCNT}, s{sCNT}, 1", f"s_cmp_lg_u32 s{sCNT}, 0"]
            ms = [S1(sb ^ 1, nb, ni), PV(1, pb, pi), S2(sb ^ 1, nb, ni), PV(0, t & 1, i)]
            for gi in range(4):
                if i == 0 and gi == 3 and t != 7: k.I("s_waitcnt lgkmcnt(2)")
                k.I(ms[gi])
                for x in extra[gi]: k.I(x)
                for x in grp(sb, gi): k.I(x)
    assert not pend
    k.I(f"s_cbranch_scc1 {Lloop}")
    k.I(PV(1, 1, 1))
    k.I("s_setprio 3")
    k.stamp(2)
    k.I(f"""
    s_lshl_b32 s{sT0}, s{sQB}, 3
    s_lshl_b32 s{sT1}, s{sWV}, 1
    s_add_u32 s{sT0}, s{sT0}, s{sT1}
    s_mul_i32 s{sT0}, s{sT0}, 36
    s_add_u32 s{sT1}, s{sT0}, 32
    s_lshl_b32 s{sT1}, s{sT1}, 10
    s_lshl_b32 s{sO}, s{sHD}, 7
    s_add_u32 s{sT1}, s{sT1}, s{sO}
    s_add_u32 s{sT1}, s{sT1}, {WS_O}
    s_add_u32 s{sT0}, s{sT0}, s{sHD}
    s_lshl_b32 s{sT0}, s{sT0}, 10
    s_add_u32 s{sT0}, s{sT0}, {WS_O}
    s_mov_b64 s[48:49], 0
    s_mov_b32 s32, {hx(f2u(2.0**-32))}
    s_mov_b32 s33, {hx(f2u(2.0**64))}
    s_mov_b32 s34, 0x207
    s_waitcnt lgkmcnt(0)
    """)
    for i in range(2):
        M = O + 16 * i; vLs = Sb[1] + 4 * i; vR = vLs + 2; pk = Vf[i]
        k.I(f"""
        v_mov_b32 {v(vLs)}, {v(M+10)}
        v_mov_b32 {v(vLs+1)}, {v(M+10)}
        v_permlane32_swap_b32 {v(vLs)}, {v(vLs+1)}
        v_rcp_f32 {v(vR)}, {v(vLs)}
        v_cmp_nle_f32 vcc, s32, {v(vLs)}
        s_or_b64 s[48:49], s[48:49], vcc
        v_cmp_nge_f32 vcc, s33, {v(vLs)}
        s_or_b64 s[48:49], s[48:49], vcc
        """)
        for p in range(10): k.I(f"v_mul_f32 {v(M+p)}, {v(M+p)}, {v(vR)}")
        for p in range(5): k.I(f"v_cvt_pk_bf16_f32 {v(pk+p)}, {v(M+2*p)}, {v(M+2*p+1)}")
        k.I(f"buffer_store_dwordx4 {v(pk,4)}, {v(vK)}, {s(sWS,4)}, s{sT0} offen {ST}")
        k.I(f"buffer_store_dword {v(pk+4)}, {v(vX)}, {s(sWS,4)}, s{sT1} offen {ST}")
        if i == 0: k.I(f"s_add_u32 s{sT0}, s{sT0}, {36*1024}\ns_add_u32 s{sT1}, s{sT1}, {36*1024}")
    t_ = Sb[1] + 8
    k.I(f"v_sub_f32 {v(t_)}, {v(O)}, {v(O)}")
    for r in list(range(1, 10)) + list(range(16, 26)):
        k.I(f"v_fma_f32 {v(t_)}, {v(O+r)}, 0, {v(t_)}")
    Lnf = f"L_{pfx}_nf"
    k.I(f"""
    v_cmp_class_f32 vcc, {v(t_)}, s34
    s_or_b64 s[48:49], s[48:49], vcc
    v_mov_b32 {v(vT0)}, {FLAG}
    s_cmp_lg_u32 s{sRETRY}, 0
    s_cbranch_scc1 {Lnf}
    s_cmp_eq_u64 s[48:49], 0
    s_cbranch_scc1 {Lnf}
    v_mov_b32 {v(vT1)}, 1
    ds_write_b32 {v(vT0)}, {v(vT1)}
    {Lnf}:
    s_waitcnt vmcnt(0) lgkmcnt(0)
    s_barrier
    ds_read_b32 {v(vT1)}, {v(vT0)}
    s_waitcnt lgkmcnt(0)
    v_readfirstlane_b32 s{sT0}, {v(vT1)}
    s_cmp_eq_u32 s{sT0}, 0
    s_cbranch_scc1 {Ldone}
    """)
    mx = O
    k.I(f"""
    s_mov_b32 s{sRETRY}, 1
    s_mov_b32 s{sCNT}, 64
    s_lshl_b32 s32, s{sHD}, 16
    s_add_u32 s32, s32, {WS_KM}
    s_lshl_b32 s33, s{sHD}, 13
    s_add_u32 s33, s33, {WS_KX}
    v_mov_b32 {v(mx)}, 0xff800000
    v_mov_b32 {v(mx+1)}, 0xff800000
    s_barrier
    """)
    Lm = f"L_{pfx}_mx"
    k.L(Lm)
    k.I(f"""
    buffer_load_dwordx4 {v(Km[0],4)}, {v(vK)}, {s(sWS,4)}, s32 offen sc1
    buffer_load_dword {v(Kx[0])}, {v(vX)}, {s(sWS,4)}, s33 offen sc1
    s_add_u32 s32, s32, 1024
    s_add_u32 s33, s33, 128
    s_waitcnt vmcnt(0)
    """)
    for i in range(2):
        k.I(S1(0, 0, i)); k.I(S2(0, 0, i))
        for j in range(8):
            k.I(f"v_max3_f32 {v(mx+i)}, {v(Sb[0]+2*j)}, {v(Sb[0]+2*j+1)}, {v(mx+i)}")
    k.I(f"s_sub_u32 s{sCNT}, s{sCNT}, 1\ns_cmp_lg_u32 s{sCNT}, 0\ns_cbranch_scc1 {Lm}")
    k.I(f"v_cmp_gt_u32 vcc, 32, {v(vL)}")
    for i in range(2):
        a0, a1, a2 = Sb[0], Sb[0] + 1, Sb[0] + 2
        k.I(f"""
        v_mov_b32 {v(a0)}, {v(mx+i)}
        v_permlane32_swap_b32 {v(a0)}, {v(mx+i)}
        v_max_f32 {v(mx+i)}, {v(mx+i)}, {v(a0)}
        v_sub_f32 {v(mx+i)}, 0, {v(mx+i)}
        v_and_b32 {v(a0)}, 0xffff0000, {v(mx+i)}
        v_sub_f32 {v(mx+i)}, {v(mx+i)}, {v(a0)}
        v_and_b32 {v(a1)}, 0xffff0000, {v(mx+i)}
        v_sub_f32 {v(mx+i)}, {v(mx+i)}, {v(a1)}
        v_lshrrev_b32 {v(a0)}, 16, {v(a0)}
        v_or_b32 {v(a0)}, {v(a0)}, {v(a1)}
        v_lshrrev_b32 {v(a2)}, 16, {v(mx+i)}
        v_cndmask_b32 {v(Qx[i]+1)}, {v(a2)}, {v(a0)}, vcc
        """)
    k.I(f"s_branch {Lmain}")
    k.L(Ldone)
    if NOATT: k.I("s_waitcnt vmcnt(0)\ns_barrier")
    k.I(f"""
    s_cmp_lg_u32 s{sWV}, 0
    s_cbranch_scc1 L_{pfx}_sg
    s_lshl_b32 s{sT0}, s{sQB}, 8
    s_add_u32 s{sT0}, s{sT0}, {sync.WS_CNT + 128*sync.CA}
    s_add_u32 s{sT1}, s{sT0}, 128
    s_mov_b32 s26, 1
    s_mov_b32 s27, 1
    s_atomic_add s26, s[24:25], s{sT0} glc
    s_atomic_add s27, s[24:25], s{sT1} glc
    s_waitcnt lgkmcnt(0)
    L_{pfx}_sg:
    s_barrier
    """)
    finish(sWV)
```

```python
from common import *
from gemm import G
ST = "sc1"
LD = "sc1"

class KGemm:
    def __init__(self, k, NT, half_last, NST, ND, wo=False, RA=5, ld=1152, xsrc=False, swap=False, perm=True, NDB=None, hs=False, low=None):
        self.k, self.NT, self.half, self.NST, self.ND, self.wo, self.RA = k, NT, half_last, NST, ND, wo, RA
        self.SLOT = 4 * NT * 1024
        self.NDB = NDB or ND
        self.ld, self.xsrc, self.swap, self.perm = ld, xsrc, swap, perm
        self.vB = k.v.alloc()
        self.hs = hs
        self.vH = [k.v.alloc() for _ in range(4)] if hs else None
        self.vR = k.v.alloc() if wo else None
        self.vWo = k.v.alloc(); self.vWx = k.v.alloc() if (half_last or wo) else None
        self.nbase = (ND * self.SLOT + 40959) // 40960
        self.vWa = [k.v.alloc() for _ in range(self.nbase)]
        self.tmp = k.v.alloc(4, 4) if low else None
        if low: k.v.next = low
        self.acc = k.v.alloc(16 * NT, 4)
        if low: k.v.next = self.tmp + 4
        else: self.tmp = self.acc
        self.R = RA + 1
        self.Ab = [k.v.alloc(4, 4) for _ in range(self.R)]
        self.Bf = [[k.v.alloc(4, 4) for ks in range(4)] for d in range(self.NDB)]
        self.vm = []
        self.sGB = 35 if low else 49
        self.nw = self.nb = 0
        self.NROT = NST - 1 if wo else NST
    def allowed(self, tags):
        last = max(i for i, t in enumerate(self.vm) if t in tags)
        return len(self.vm) - 1 - last
    def setup(self):
        k = self.k
        vL, t0, t1 = self.tmp, self.tmp + 1, self.tmp + 2
        k.I(f"""
        v_and_b32 {v(vL)}, 63, v0
        v_and_b32 {v(t1)}, 3, v0
        s_mov_b32 s{self.sGB}, s{G.sG}
        s_mul_i32 s{G.sM0}, s{G.sWV}, {self.NT*1024}
        """)
        if self.xsrc:
            k.I(f"""
            v_and_b32 {v(t0)}, 31, v0
            s_lshl_b32 s{G.sT0}, s{G.sMT}, 5
            v_add_u32 {v(t0)}, s{G.sT0}, {v(t0)}
            v_mul_u32_u24 {v(self.vB)}, 1152, {v(t0)}
            v_lshrrev_b32 {v(t0)}, 5, {v(vL)}
            v_lshl_add_u32 {v(self.vB)}, {v(t0)}, 4, {v(self.vB)}
            """)
        else:
            k.I(f"v_lshlrev_b32 {v(self.vB)}, 4, {v(vL)}")
        if self.hs:
            t2 = self.tmp + 3
            k.I(f"s_lshl_b32 s{G.sT0}, s{G.sMT}, 5\nv_and_b32 {v(t0)}, 31, v0\nv_add_u32 {v(t0)}, s{G.sT0}, {v(t0)}\ns_movk_i32 s{G.sT1}, 2048")
            for ks, sh in enumerate((1, -1, 2, -2)):
                d = self.vH[ks]
                k.I(f"""
                v_add_u32 {v(d)}, {-sh}, {v(t0)}
                v_cmp_gt_u32 vcc, s{G.sT1}, {v(d)}
                v_lshrrev_b32 {v(t2)}, 5, {v(d)}
                v_mul_u32_u24 {v(t2)}, {36*1024}, {v(t2)}
                v_and_b32 {v(d)}, 31, {v(d)}
                v_lshl_add_u32 {v(d)}, {v(d)}, 4, {v(t2)}
                v_and_b32 {v(t2)}, 0x200, {v(self.vB)}
                v_add3_u32 {v(d)}, {v(d)}, {v(t2)}, s{G.sC+ks if False else 0}
                """.replace(f"v_add3_u32 {v(d)}, {v(d)}, {v(t2)}, s0", f"v_add_u32 {v(d)}, {v(d)}, {v(t2)}\nv_add_u32 {v(d)}, {9*1024*ks}, {v(d)}\nv_mov_b32 {v(t2)}, {hx(OOB)}\nv_cndmask_b32 {v(d)}, {v(t2)}, {v(d)}, vcc"))
            k.I(f"v_lshrrev_b32 {v(t0)}, 2, {v(vL)}\ns_mul_i32 s{G.sT0}, s{G.sWV}, 144\nv_add_u32 {v(t0)}, s{G.sT0}, {v(t0)}")
        elif not self.wo:
            k.I(f"v_lshrrev_b32 {v(t0)}, 2, v0")
        else:
            k.I(f"v_lshrrev_b32 {v(t0)}, 2, {v(vL)}\ns_mul_i32 s{G.sT0}, s{G.sWV}, 18\nv_add_u32 {v(t0)}, s{G.sT0}, {v(t0)}")
        k.I(f"v_mul_u32_u24 {v(t0)}, {self.ld}, {v(t0)}\nv_lshl_add_u32 {v(self.vWo)}, {v(t1)}, 4, {v(t0)}")
        if self.half:
            k.I(f"v_cmp_gt_u32 vcc, 2, {v(t1)}\nv_mov_b32 {v(t0)}, {hx(OOB)}\nv_cndmask_b32 {v(self.vWx)}, {v(t0)}, {v(self.vWo)}, vcc")
        if self.wo:
            k.I(f"""
            v_lshrrev_b32 {v(t0)}, 2, {v(vL)}
            v_lshrrev_b32 {v(self.vWx)}, 3, {v(vL)}
            v_lshl_add_u32 {v(t0)}, {v(self.vWx)}, 4, {v(t0)}
            s_mul_i32 s{G.sT0}, s{G.sWV}, 144
            s_add_u32 s{G.sT0}, s{G.sT0}, 16
            v_add_u32 {v(t0)}, s{G.sT0}, {v(t0)}
            v_mul_u32_u24 {v(t0)}, 1152, {v(t0)}
            v_lshl_add_u32 {v(self.vWx)}, {v(t1)}, 4, {v(t0)}
            v_and_b32 {v(t0)}, 31, v0
            v_and_b32 {v(self.vR)}, 0x200, {v(self.vB)}
            v_lshl_add_u32 {v(self.vR)}, {v(t0)}, 2, {v(self.vR)}
            """)
    def setup2(self):
        k = self.k
        vL, t0, t1 = self.tmp, self.tmp + 1, self.tmp + 2
        tr_lane_addr(k, self.vWa[0], vL, t0, t1, 512, perm=self.perm)
        for b in range(1, self.nbase): k.I(f"v_add_u32 {v(self.vWa[b])}, {40960*b}, {v(self.vWa[0])}")
    def rot(self, sg): return [f"s_add_u32 s{sg}, s{sg}, 1", f"s_cmp_eq_u32 s{sg}, {self.NROT}", f"s_cselect_b32 s{sg}, 0, s{sg}"]
    def wloads(self, st):
        g = []
        rem = self.wo and st == self.NST - 1
        for i in range(self.NT):
            pre = []
            if i == 0 and not rem:
                pre = [f"s_mul_i32 s{G.sOW}, s{G.sG}, {(72 if self.wo else 16 if self.hs else 64)*self.ld}", f"s_add_u32 s{G.sOW}, s{G.sOW}, s{G.sWB}"] + self.rot(G.sG)
            vo = self.vWx if (rem or (self.half and i == self.NT - 1)) else self.vWo
            g.append(pre + [f"s_add_u32 m0, s{G.sM0}, {(st % self.ND)*self.SLOT + i*960}",
                            f"buffer_load_dwordx4 {v(vo)}, {s(G.sW,4)}, s{G.sWB if rem else G.sOW} offen offset:{64*i} lds"])
        return g
    def bloads(self, st):
        g = []
        rem = self.wo and st == self.NST - 1
        for ks in range(4):
            pre = []
            if self.xsrc:
                if ks == 0: pre = [f"s_lshl_b32 s{G.sOB}, s{self.sGB}, 7"] + self.rot(self.sGB)
                g.append(pre + [f"buffer_load_dwordx4 {v(self.Bf[st % self.NDB][ks],4)}, {v(self.vB)}, {s(G.sX,4)}, s{G.sOB} offen offset:{32*ks}"])
                continue
            if self.hs:
                if ks == 0: pre = [f"s_lshl_b32 s{G.sOB}, s{self.sGB}, 10", f"s_add_u32 s{G.sOB}, s{G.sOB}, {WS_HS}"] + self.rot(self.sGB)
                g.append(pre + [f"buffer_load_dwordx4 {v(self.Bf[st % self.NDB][ks],4)}, {v(self.vH[ks])}, {s(G.sWS,4)}, s{G.sOB} offen {LD}"])
                continue
            if rem:
                for jj in range(4):
                    pre = [f"s_add_u32 s{G.sOB}, s{G.sBB}, 32768"] if ks == 0 and jj == 0 else []
                    g.append(pre + [f"buffer_load_dword {v(self.Bf[st % self.NDB][ks]+jj)}, {v(self.vR)}, {s(G.sWS,4)}, s{G.sOB} offen offset:{1024*ks+128*jj} {LD}"])
                continue
            if ks == 0:
                pre = [f"s_add_u32 s{G.sOB}, s{G.sBB}, 32768"] if rem else \
                      [f"s_lshl_b32 s{G.sOB}, s{self.sGB}, 12", f"s_add_u32 s{G.sOB}, s{G.sOB}, s{G.sBB}"] + self.rot(self.sGB)
            g.append(pre + [f"buffer_load_dwordx4 {v(self.Bf[st % self.NDB][ks],4)}, {v(self.vB)}, {s(G.sWS,4)}, s{G.sOB} offen offset:{1024*ks} {LD}"])
        return g
    def pre_w(self, n):
        for _ in range(n):
            for g in self.wloads(self.nw):
                for x in g: self.k.I(x)
                self.vm.append(self.nw)
            self.nw += 1
    def pre_b(self, n):
        for _ in range(n):
            for g in self.bloads(self.nb):
                for x in g: self.k.I(x)
                self.vm.append(self.nb)
            self.nb += 1
    def main(self, first=None, extra=None, pre_barrier=None, post_barrier=None, early=None):
        k, NT, NST, ND, RA, R = self.k, self.NT, self.NST, self.ND, self.RA, self.R
        NS = 4 * NT
        lg = []
        def reads(n):
            st, r = divmod(n, NS); ks, t = divmod(r, NT)
            off = (st % ND) * self.SLOT
            b = off // 40960
            for rd in range(2):
                k.I(f"ds_read_b64_tr_b16 {v(self.Ab[n % R]+2*rd,2)}, {v(self.vWa[b])} offset:{off - 40960*b + ks*NT*1024 + t*1024 + rd*256}")
                lg.append(n)
        if early:
            k.I("s_barrier")
            early()
            for n in range(RA): reads(n)
            k.I(f"s_waitcnt vmcnt({self.allowed([0])})")
            if first: first()
        else:
            k.I(f"s_waitcnt vmcnt({self.allowed([0])})\ns_barrier")
            if first: first()
            for n in range(RA): reads(n)
        nread = RA; N = NST * NS; limit = NS; done = -1
        resident = ND >= NST
        if resident:
            assert self.nw == NST
            limit = N
        for p in range(N):
            st, r = divmod(p, NS); ks, t = divmod(r, NT)
            if r == 0:
                gl = []
                hi = min(NST, st + ND); hib = min(NST, st + self.NDB)
                while self.nb < hib or self.nw < hi:
                    if (self.nw <= self.nb or self.nb >= hib) and self.nw < hi:
                        gl += [(self.nw, g) for g in self.wloads(self.nw)]; self.nw += 1
                    else:
                        gl += [(self.nb, g) for g in self.bloads(self.nb)]; self.nb += 1
                if extra: gl += [("x", g) for g in extra(st)]
                span = NS if resident else NS - RA + 1
                where = {}
                for j, g in enumerate(gl): where.setdefault(j * span // len(gl), []).append(g)
                if resident and st: k.I(f"s_waitcnt vmcnt({self.allowed([st])})")
            if done < p:
                tgt = min(p + 1, nread - 1)
                last = max(i for i, x in enumerate(lg) if x == tgt)
                k.I(f"s_waitcnt lgkmcnt({min(15, len(lg) - 1 - last)})")
                done = tgt
            a = self.acc + 16 * t
            opa, opb = v(self.Ab[p % R], 4), v(self.Bf[st % self.NDB][ks], 4)
            if self.swap: opa, opb = opb, opa
            k.I(f"v_mfma_f32_32x32x16_bf16 {v(a,16)}, {opa}, {opb}, {'0' if p < NT else v(a,16)}")
            if r == NS - RA + 1 and st < NST - 1 and not resident:
                assert nread == limit
                k.I(f"s_waitcnt vmcnt({self.allowed([st+1])}) lgkmcnt(0)")
                if pre_barrier: pre_barrier(st)
                k.I("s_barrier")
                if post_barrier: post_barrier(st)
                done = nread - 1
                limit += NS
            gs = where.get(r, [])
            post = []
            for j, (q, g) in enumerate(gs):
                if j == 0 and not g[-1].startswith("s_"):
                    for x in g[:-1]: k.I(x)
                    post.append(g[-1])
                else: post += g
                self.vm.append(q)
            cnt = 0
            while nread < min(p + RA + 1, limit, N) and cnt < 2:
                reads(nread); nread += 1; cnt += 1
            for x in post: k.I(x)

def halfsum(k, r, tmp):
    k.I(f"v_mov_b32 {v(tmp)}, {v(r)}\nv_permlane32_swap_b32 {v(r)}, {v(tmp)}\nv_add_f32 {v(r)}, {v(r)}, {v(tmp)}")

sRB2, sCB2 = 50, 51
def tile64_ids(k):
    k.I(f"""
    s_bfe_u32 s{sCB2}, s2, 0x50003
    s_and_b32 s{sRB2}, s2, 7
    s_lshl_b32 s{sRB2}, s{sRB2}, 1
    s_cmp_ge_u32 s{sCB2}, 18
    """)
def tile64w2_ids(k):
    k.I(f"""
    s_bfe_u32 s{G.sT1}, s2, 0x50003
    s_bfe_u32 s{G.sT0}, s2, 0x10002
    s_and_b32 s{sRB2}, s2, 3
    s_mul_i32 s52, s{G.sT0}, 3
    s_add_u32 s52, s52, s{sRB2}
    s_lshl_b32 s53, s{G.sT0}, 5
    s_add_u32 s53, s53, 48
    s_lshl_b32 s54, s52, 3
    s_sub_u32 s54, s54, 24
    s_cmp_eq_u32 s{sRB2}, 3
    s_cselect_b32 s53, s53, s54
    s_cselect_b32 s54, 0, 24
    s_add_u32 s53, s53, s{G.sT1}
    s_mul_i32 s52, s52, 24
    s_add_u32 s52, s52, s{G.sT1}
    s_mul_i32 s{sRB2}, s52, 7282
    s_lshr_b32 s{sRB2}, s{sRB2}, 16
    s_mul_i32 s{sCB2}, s{sRB2}, 9
    s_sub_u32 s{sCB2}, s52, s{sCB2}
    s_cmp_ge_u32 s{G.sT1}, s54
    s_cselect_b32 s{sCB2}, s53, s{sCB2}
    """)
def tile64_ids2(k, base, nrot):
    k.I(f"""
    s_cmp_ge_u32 s{sCB2}, 9
    s_cselect_b32 s{G.sT0}, 1, 0
    s_cselect_b32 s{G.sT1}, 9, 0
    s_add_u32 s{sRB2}, s{sRB2}, s{G.sT0}
    s_sub_u32 s{sCB2}, s{sCB2}, s{G.sT1}
    s_lshl_b32 s{G.sMT}, s{sRB2}, 2
    s_add_u32 s{G.sMT}, s{G.sMT}, s{G.sWV}
    s_min_u32 s{G.sG}, s{sCB2}, {nrot-1}
    s_lshl_b32 s{G.sWB}, s{sCB2}, 7
    s_mul_i32 s{G.sBB}, s{G.sMT}, {36*1024}
    s_add_u32 s{G.sBB}, s{G.sBB}, {base}
    """)

def emit_w2k(k, poll):
    k.v.next = 1
    g = KGemm(k, 2, False, 9, 9, NDB=5, hs=True)
    xr = k.v.alloc(16, 4); vT = k.v.alloc(2, 2); u = k.v.alloc(2, 2); st = k.v.alloc(2, 2)
    srd(k, G.sX, 36, S * D * 2); srd(k, G.sW, 38, D * D * 2)
    tile64_ids2(k, WS_HS, 9)
    g.setup()
    g.pre_w(9)
    g.setup2()
    k.I(f"""
    v_and_b32 {v(vT)}, 31, v0
    s_lshl_b32 s{G.sT0}, s{G.sMT}, 5
    v_add_u32 {v(vT)}, s{G.sT0}, {v(vT)}
    v_mul_u32_u24 {v(vT+1)}, 1152, {v(vT)}
    v_bfe_u32 {v(u)}, v0, 5, 1
    v_lshl_add_u32 {v(vT+1)}, {v(u)}, 4, {v(vT+1)}
    """)
    for b in range(4):
        k.I(f"buffer_load_dwordx4 {v(xr+4*b,4)}, {v(vT+1)}, {s(G.sX,4)}, s{G.sWB} offen offset:{32*b}")
        g.vm.append("x")
    poll()
    k.I("s_barrier")
    g.pre_b(2)
    g.main()
    k.I(f"""
    v_mov_b32 {v(st)}, 0
    v_mov_b32 {v(st+1)}, 0
    s_lshl_b32 s{G.sT0}, s{sCB2}, 12
    s_add_u32 s{G.sT0}, s{G.sT0}, s{G.sBB}
    s_add_u32 s{G.sT0}, s{G.sT0}, {WS_X1 - WS_HS}
    v_lshlrev_b32 {v(vT)}, 3, {v(vT)}
    s_lshl_b32 s{G.sT1}, s{sCB2}, 14
    s_add_u32 s{G.sT1}, s{G.sT1}, {WS_ST2}
    s_waitcnt vmcnt(0)
    """)
    for b in range(4):
        for j in range(4):
            d = g.acc + 8 * b + 2 * j
            k.I(f"""
            v_lshlrev_b32 {v(u)}, 16, {v(xr+4*b+j)}
            v_and_b32 {v(u+1)}, 0xffff0000, {v(xr+4*b+j)}
            v_add_f32 {v(d)}, {v(d)}, {v(u)}
            v_add_f32 {v(d+1)}, {v(d+1)}, {v(u+1)}
            v_cvt_pk_bf16_f32 {v(xr+4*b+j)}, {v(d)}, {v(d+1)}
            """)
        k.I(f"buffer_store_dwordx4 {v(xr+4*b,4)}, {v(g.vB)}, {s(G.sWS,4)}, s{G.sT0} offen offset:{1024*b} {ST}")
    for r in range(32):
        k.I(f"v_add_f32 {v(st)}, {v(st)}, {v(g.acc+r)}\nv_fmac_f32 {v(st+1)}, {v(g.acc+r)}, {v(g.acc+r)}")
    halfsum(k, st, u); halfsum(k, st + 1, u + 1)
    k.I(f"""
    s_mov_b32 exec_hi, 0
    buffer_store_dwordx2 {v(st,2)}, {v(vT)}, {s(G.sWS,4)}, s{G.sT1} offen {ST}
    s_mov_b64 exec, -1
    """)

def emit_wok(k, poll):
    k.v.next = 1
    g = KGemm(k, 2, False, 9, 9, wo=True, NDB=5)
    xr = k.v.alloc(16, 4); vT = k.v.alloc(2, 2); u = k.v.alloc(2, 2); g2 = k.v.alloc(2, 2)
    srd(k, G.sW, 38, D * D * 2)
    tile64_ids2(k, WS_O, 8)
    g.setup()
    g.pre_w(9)
    g.setup2()
    poll()
    k.I("s_barrier")
    k.stamp(5)
    g.pre_b(3)
    k.I(f"""
    v_and_b32 {v(vT)}, 31, v0
    v_lshlrev_b32 {v(vT)}, 4, {v(vT)}
    s_lshl_b32 s52, s{G.sMT}, 9
    s_add_u32 s52, s52, {WS_ST1}
    s_lshl_b32 s53, s{sCB2}, 12
    s_add_u32 s53, s53, s{G.sBB}
    s_add_u32 s54, s53, {WS_PART + 4*64*36*1024 - WS_O}
    s_sub_u32 s53, s53, {WS_O - WS_X1}
    """)
    g.main(extra=lambda s_: [[f"buffer_load_dwordx4 {v(xr+4*b,4)}, {v(g.vB)}, {s(G.sWS,4)}, s53 offen offset:{1024*b} {LD}"] for b in range(4)] if s_ == 5 else
           [[f"buffer_load_dword {v(g2)}, {v(vT)}, {s(G.sWS,4)}, s52 offen offset:8 sc1"]] if s_ == 6 else [])
    k.I(f"s_waitcnt vmcnt(0)\nv_sub_f32 {v(g2+1)}, 1.0, {v(g2)}")
    for b in range(4):
        for j in range(4):
            d = g.acc + 8 * b + 2 * j
            k.I(f"""
            v_lshlrev_b32 {v(u)}, 16, {v(xr+4*b+j)}
            v_and_b32 {v(u+1)}, 0xffff0000, {v(xr+4*b+j)}
            v_mul_f32 {v(d)}, {v(d)}, {v(g2)}
            v_mul_f32 {v(d+1)}, {v(d+1)}, {v(g2)}
            v_fmac_f32 {v(d)}, {v(g2+1)}, {v(u)}
            v_fmac_f32 {v(d+1)}, {v(g2+1)}, {v(u+1)}
            v_cvt_pk_bf16_f32 {v(xr+4*b+j)}, {v(d)}, {v(d+1)}
            """)
        k.I(f"buffer_store_dwordx4 {v(xr+4*b,4)}, {v(g.vB)}, {s(G.sWS,4)}, s54 offen offset:{1024*b} {ST}")

class W4:
    def __init__(self, k, base):
        self.k = k
        k.v.next = base
        self.g = KGemm(k, 5, True, 18, 4, NDB=3, low=16)
    def early(self, pW4):
        k, g = self.k, self.g
        n0 = len(k.items)
        srd(k, G.sW, pW4, D * F * 2)
        k.I(f"""
        s_lshr_b32 s{G.sSP}, s{G.sCB}, 2
        s_and_b32 s50, s{G.sCB}, 3
        s_mul_i32 s{G.sG}, s50, 9
        s_add_u32 s{G.sG}, s{G.sG}, 1
        s_lshr_b32 s{G.sG}, s{G.sG}, 1
        s_mul_i32 s{G.sT0}, s50, 288
        s_mul_i32 s{G.sWB}, s{G.sSP}, {1152*1152}
        s_add_u32 s{G.sWB}, s{G.sWB}, s{G.sT0}
        s_mul_i32 s{G.sBB}, s{G.sMT}, 288
        s_mul_i32 s{G.sT0}, s{G.sSP}, 72
        s_add_u32 s{G.sBB}, s{G.sBB}, s{G.sT0}
        s_lshl_b32 s{G.sBB}, s{G.sBB}, 10
        s_add_u32 s{G.sBB}, s{G.sBB}, {WS_H}
        """)
        g.setup(); g.setup2()
        pre = [it[1].text for it in k.items[n0:] if it[0] == "i"]
        del k.items[n0:]
        gl = g.wloads(0) + g.wloads(1); g.nw = 2
        g.vm += [0] * 5 + [1] * 5
        return pre, gl
def emit_w4k(k, w4, sync_hooks, prio):
    g = w4.g
    sC4 = 50
    g.pre_b(2)
    def first():
        k.stamp(4)
        k.I(f"s_setprio {prio}")
    g.main(first=first, pre_barrier=sync_hooks, early=lambda: sync_hooks(-1))
    k.stamp(5)
    k.I(f"""
    s_setprio 3
    s_lshl_b32 s{G.sT0}, s{G.sSP}, 6
    s_add_u32 s{G.sT0}, s{G.sT0}, s{G.sMT}
    s_mul_i32 s{G.sT0}, s{G.sT0}, 36
    s_mul_i32 s{G.sT1}, s{sC4}, 9
    s_add_u32 s{G.sT0}, s{G.sT0}, s{G.sT1}
    s_lshl_b32 s{G.sT0}, s{G.sT0}, 10
    s_add_u32 s{G.sT0}, s{G.sT0}, {WS_PART}
    """)
    pk = g.Bf[0][0]
    for sidx in range(9):
        for j in range(4):
            r = g.acc + 8 * sidx + 2 * j
            k.I(f"v_cvt_pk_bf16_f32 {v(pk+4*sidx+j)}, {v(r)}, {v(r+1)}")
        k.I(f"buffer_store_dwordx4 {v(pk+4*sidx,4)}, {v(g.vB)}, {s(G.sWS,4)}, s{G.sT0} offen {ST}")
        k.I(f"s_add_u32 s{G.sT0}, s{G.sT0}, 1024")
```

```python
from common import *
from gemm import G

class P1Gemm:
    WS_ = 12288
    XB = 4 * 12288
    def __init__(self, k, ld, swap, perm, RA=5):
        self.k, self.ld, self.swap, self.perm, self.RA = k, ld, swap, perm, RA
        self.vWo = [k.v.alloc() for _ in range(3)]
        self.vXo = [k.v.alloc() for _ in range(2)]
        self.vWa = k.v.alloc(); self.vXa = [k.v.alloc() for _ in range(4)]
        self.acc = k.v.alloc(80, 4)
        self.R = RA + 1
        self.Ab = [k.v.alloc(4, 4) for _ in range(self.R)]
        self.Bf = [[k.v.alloc(4, 4) for ks in range(4)] for d in range(2)]
        self.scr = k.v.alloc(32, 4)
        self.vm = []
        self.sGX = 49; self.sM0X = 48
        self.nw = self.nx = 0
    def allowed(self, tags):
        last = max(i for i, t in enumerate(self.vm) if t in tags)
        return len(self.vm) - 1 - last
    def setup(self):
        k = self.k
        vL, t0, t1 = self.acc, self.acc + 1, self.acc + 2
        k.I(f"""
        v_and_b32 {v(vL)}, 63, v0
        v_lshrrev_b32 {v(t0)}, 3, {v(vL)}
        s_lshl_b32 s{G.sT0}, s{G.sMT}, 5
        v_add_u32 {v(t1)}, s{G.sT0}, {v(t0)}
        v_mul_u32_u24 {v(t1)}, 1152, {v(t1)}
        v_lshrrev_b32 {v(t0)}, 4, {v(vL)}
        v_xor_b32 {v(t0)}, {v(t0)}, {v(vL)}
        v_and_b32 {v(t0)}, 7, {v(t0)}
        v_lshl_add_u32 {v(self.vXo[0])}, {v(t0)}, 4, {v(t1)}
        v_xor_b32 {v(t0)}, 4, {v(t0)}
        v_lshl_add_u32 {v(self.vXo[1])}, {v(t0)}, 4, {v(t1)}
        v_add_u32 {v(self.vXo[1])}, {8*1152}, {v(self.vXo[1])}
        s_lshl_b32 s{self.sM0X}, s{G.sWV}, 12
        s_add_u32 s{self.sM0X}, s{self.sM0X}, {self.XB}
        s_mov_b32 s{self.sGX}, s{G.sG}
        s_lshl_b32 s{G.sG}, s{G.sG}, 1
        s_lshr_b32 s{G.sT0}, s{G.sWV}, 1
        s_and_b32 s{G.sT1}, s{G.sWV}, 1
        s_mul_i32 s{G.sM0}, s{G.sWV}, 3072
        s_lshl_b32 s{G.sT0}, s{G.sT0}, 4
        v_lshrrev_b32 {v(t0)}, 2, {v(vL)}
        v_add_u32 {v(t0)}, s{G.sT0}, {v(t0)}
        v_mul_u32_u24 {v(t0)}, {self.ld}, {v(t0)}
        v_and_b32 {v(t1)}, 3, {v(vL)}
        s_mul_i32 s{G.sT0}, s{G.sT1}, 12
        v_add_u32 {v(t1)}, s{G.sT0}, {v(t1)}
        v_lshl_add_u32 {v(self.vWo[0])}, {v(t1)}, 4, {v(t0)}
        v_mov_b32 {v(t0)}, {hx(OOB)}
        v_cmp_gt_u32 vcc, 14, {v(t1)}
        v_cndmask_b32 {v(self.vWo[1])}, {v(t0)}, {v(self.vWo[0])}, vcc
        v_cmp_gt_u32 vcc, 10, {v(t1)}
        v_cndmask_b32 {v(self.vWo[2])}, {v(t0)}, {v(self.vWo[0])}, vcc
        """)
    def setup2(self):
        k = self.k
        vL, t0, t1, t2 = self.acc, self.acc + 1, self.acc + 2, self.acc + 3
        tr_lane_addr(k, self.vWa, vL, t0, t1, 512, perm=self.perm)
        k.I(f"""
        v_and_b32 {v(t0)}, 31, {v(vL)}
        v_bfe_u32 {v(t1)}, {v(vL)}, 1, 3
        v_lshrrev_b32 {v(t2)}, 5, {v(vL)}
        v_xor_b32 {v(t1)}, {v(t1)}, {v(t2)}
        v_lshlrev_b32 {v(t1)}, 4, {v(t1)}
        v_lshlrev_b32 {v(t0)}, 7, {v(t0)}
        v_add_u32 {v(t0)}, s{self.sM0X}, {v(t0)}
        """)
        for ks in range(4):
            k.I(f"v_xor_b32 {v(self.vXa[ks])}, {32*ks}, {v(t1)}\nv_add_u32 {v(self.vXa[ks])}, {v(self.vXa[ks])}, {v(t0)}")
    def wloads(self, hs):
        g = []
        for i in range(3):
            pre = []
            if i == 0:
                pre = [f"s_mul_i32 s{G.sOW}, s{G.sG}, {32*self.ld}", f"s_add_u32 s{G.sOW}, s{G.sOW}, s{G.sWB}", f"s_add_u32 s{G.sG}, s{G.sG}, 1"]
                if hs & 1: pre += [f"s_cmp_eq_u32 s{G.sG}, 18", f"s_cselect_b32 s{G.sG}, 0, s{G.sG}"]
            g.append(pre + [f"s_add_u32 m0, s{G.sM0}, {(hs % 4)*self.WS_ + i*960}",
                            f"buffer_load_dwordx4 {v(self.vWo[i])}, {s(G.sW,4)}, s{G.sOW} offen offset:{64*i} lds"])
        return g
    def xloads(self, st):
        g = []
        for i in range(4):
            pre = []
            if i == 0:
                pre = [f"s_lshl_b32 s{G.sOB}, s{self.sGX}, 7", f"s_add_u32 s{self.sGX}, s{self.sGX}, 1", f"s_cmp_eq_u32 s{self.sGX}, 9",
                       f"s_cselect_b32 s{self.sGX}, 0, s{self.sGX}"]
            if i == 2: pre = [f"s_add_u32 s{G.sOB}, s{G.sOB}, {16*1152}"]
            g.append(pre + [f"s_add_u32 m0, s{self.sM0X}, {(st % 2)*16384 + i*1024}",
                            f"buffer_load_dwordx4 {v(self.vXo[i % 2])}, {s(G.sX,4)}, s{G.sOB} offen lds"])
        return g
    def pre(self, what):
        for c in what:
            gl = self.wloads(self.nw) if c == "w" else self.xloads(self.nx)
            tag = ("w", self.nw) if c == "w" else ("x", self.nx)
            for g in gl:
                for x in g: self.k.I(x)
                self.vm.append(tag)
            if c == "w": self.nw += 1
            else: self.nx += 1
    def main(self, first=None, extra=None, pre_barrier=None):
        k, RA, R = self.k, self.RA, self.R
        NS, NH = 10, 18
        lg = []
        def reads(n):
            hs, r = divmod(n, NS); ks, t = divmod(r, 5)
            for rd in range(2):
                k.I(f"ds_read_b64_tr_b16 {v(self.Ab[n % R]+2*rd,2)}, {v(self.vWa)} offset:{(hs % 4)*self.WS_ + ks*6144 + t*1024 + rd*256}")
                lg.append(n)
        def breads(st):
            for ks in range(4):
                k.I(f"ds_read_b128 {v(self.Bf[st % 2][ks],4)}, {v(self.vXa[ks])} offset:{(st % 2)*16384}")
                lg.append("b")
        k.I(f"s_waitcnt vmcnt({self.allowed([('w',0), ('x',0)])})\ns_barrier")
        if first: first()
        breads(0)
        for n in range(RA): reads(n)
        nread = RA; N = NH * NS; limit = NS; done = -1
        for p in range(N):
            hs, r = divmod(p, NS); ks, t = divmod(r, 5)
            st = hs // 2
            if r == 0:
                gl = []
                while self.nw < min(NH, hs + 4):
                    gl += [(("w", self.nw), g) for g in self.wloads(self.nw)]; self.nw += 1
                while self.nx < min(9, st + 3):
                    gl += [(("x", self.nx), g) for g in self.xloads(self.nx)]; self.nx += 1
                if extra: gl += [("e", g) for g in extra(hs)]
                span = NS - RA + 1
                where = {}
                for j, g in enumerate(gl): where.setdefault(j * span // len(gl), []).append(g)
            if done < p:
                tgt = min(p + 1, nread - 1)
                last = max(i for i, x in enumerate(lg) if x == tgt)
                k.I(f"s_waitcnt lgkmcnt({min(15, len(lg) - 1 - last)})")
                done = tgt
            a = self.acc + 16 * t
            opa, opb = v(self.Ab[p % R], 4), v(self.Bf[st % 2][2 * (hs & 1) + ks], 4)
            if self.swap: opa, opb = opb, opa
            k.I(f"v_mfma_f32_32x32x16_bf16 {v(a,16)}, {opa}, {opb}, {'0' if p < 5 else v(a,16)}")
            if r == NS - RA + 1 and hs < NH - 1:
                assert nread == limit
                need = [("w", hs + 1)] + ([("x", st + 1)] if hs & 1 else [])
                k.I(f"s_waitcnt vmcnt({self.allowed(need)}) lgkmcnt(0)")
                if pre_barrier: pre_barrier(hs)
                k.I("s_barrier")
                done = nread - 1
                limit += NS
                if hs & 1: breads(st + 1)
            gs = where.get(r, [])
            post = []
            for j, (q, g) in enumerate(gs):
                if j == 0 and not g[-1].startswith("s_"):
                    for x in g[:-1]: k.I(x)
                    post.append(g[-1])
                else: post += g
                self.vm.append(q)
            cnt = 0
            while nread < min(p + RA + 1, limit, N) and cnt < 2:
                reads(nread); nread += 1; cnt += 1
            for x in post: k.I(x)
```

```python
from common import *
from gemm import G
from p1gemm import P1Gemm
import sync
from sync import WS_CNT
ST = "sc1"
WS_C1P = 0x0BD0000
P_X, P_WQKV, P_WO, P_W1, P_W2, P_W3, P_W4, P_GATE, P_OUT, P_DBG, P_WS = 60, 62, 64, 68, 70, 72, 74, 76, 78, 80, 40
sROLE, sRB1, sCB1 = 42, 43, 44
FLAG_AT = 13

def ids1(k):
    k.I(f"""
    s_and_b32 s{sROLE}, s2, 3
    s_bfe_u32 s{G.sT0}, s2, 0x10002
    s_bfe_u32 s{sRB1}, s2, 0x30003
    s_lshl_b32 s{G.sT0}, s{G.sT0}, 3
    s_add_u32 s{sRB1}, s{sRB1}, s{G.sT0}
    s_bfe_u32 s{sCB1}, s2, 0x20006
    """)

def gemm_open(k, w1, swap):
    k.v.next = 1
    g = P1Gemm(k, 1152 if w1 else 3456, swap, w1)
    k.I(f"""
    s_lshl_b32 s{G.sMT}, s{sRB1}, 2
    s_add_u32 s{G.sMT}, s{G.sMT}, s{G.sWV}
    s_lshl_b32 s{G.sT0}, s{sCB1}, 1
    s_add_u32 s{G.sG}, s{sRB1}, s{G.sT0}
    s_add_u32 s{G.sG}, s{G.sG}, s{sROLE}
    s_cmp_ge_u32 s{G.sG}, 18
    s_cselect_b32 s{G.sT0}, 18, 0
    s_sub_u32 s{G.sG}, s{G.sG}, s{G.sT0}
    s_cmp_ge_u32 s{G.sG}, 9
    s_cselect_b32 s{G.sT0}, 9, 0
    s_sub_u32 s{G.sG}, s{G.sG}, s{G.sT0}
    s_mul_i32 s{G.sWB}, s{sCB1}, 288
    """)
    if not w1: k.I(f"s_mul_i32 s{G.sT0}, s{sROLE}, 1152\ns_add_u32 s{G.sWB}, s{G.sWB}, s{G.sT0}")
    g.setup()
    k.I("s_waitcnt lgkmcnt(0)")
    srd(k, G.sX, P_X, S * D * 2)
    srd(k, G.sW, P_W1 if w1 else P_WQKV, D * D * 2 if w1 else D * 3 * D * 2)
    g.pre("xww")
    srd(k, G.sWS, P_WS, WS_SIZE)
    g.setup2()
    g.pre("xw")
    g.vRd = k.v.alloc(2, 2)
    return g

def ready_hooks(k, g, extra, pre_barrier=None):
    def ex(st):
        r = extra(st)
        if st == 3: r = r + [[f"v_mov_b32 {v(g.vRd+1)}, 0", f"global_load_dword {v(g.vRd)}, {v(g.vRd+1)}, s[{P_DBG}:{P_DBG+1}] sc1"]]
        return r
    def pb(st):
        if st == 8:
            L = k.label("rk")
            k.I(f"v_readfirstlane_b32 s57, {v(g.vRd)}\ns_cmp_ge_u32 s57, 16\ns_cbranch_scc1 {L}")
            sync.wait_ready(k, P_DBG, G.sWV, 57, g.vRd)
            k.L(L)
        if pre_barrier: pre_barrier(st)
    return dict(extra=ex, pre_barrier=pb)

def emit_qk(k):
    g = gemm_open(k, False, False)
    vj = k.v.alloc(2, 2); vO1 = k.v.alloc(); vO2 = k.v.alloc(); vO3 = k.v.alloc(); vL = k.v.alloc()
    g.main(first=lambda: k.stamp(1), **ready_hooks(k, g, lambda st: []))
    k.stamp(2)
    acc = g.acc; pk = g.Ab[0]; vT0, vT1 = vj, vj + 1
    sC, sT0, sT1 = G.sC, G.sT0, G.sT1
    k.I(f"""
    v_and_b32 {v(vL)}, 63, v0
    s_cmp_eq_u32 s{sROLE}, 0
    s_cselect_b32 s{sC}, {hx(f2u(QSCALE))}, 1.0
    v_lshlrev_b32 {v(vO1)}, 4, {v(vL)}
    v_and_b32 {v(vO2)}, 31, {v(vL)}
    v_lshlrev_b32 {v(vO2)}, 2, {v(vO2)}
    v_lshrrev_b32 {v(vT0)}, 5, {v(vL)}
    v_mul_u32_u24 {v(vT1)}, {3*8192}, {v(vT0)}
    v_add_u32 {v(vO3)}, {v(vO2)}, {v(vT1)}
    v_lshl_add_u32 {v(vO2)}, {v(vT0)}, 13, {v(vO2)}
    v_cmp_lt_u32 vcc, 31, {v(vL)}
    s_lshl_b32 s{sT0}, s{sCB1}, 9
    s_add_u32 s{sT0}, s{sT0}, s{G.sMT}
    s_lshl_b32 s{sT1}, s{sT0}, 7
    s_lshl_b32 s{sT0}, s{sT0}, 10
    s_lshl_b32 s{G.sG}, s{sROLE}, 21
    s_add_u32 s{sT0}, s{sT0}, s{G.sG}
    s_lshl_b32 s{G.sG}, s{sROLE}, 18
    s_add_u32 s{sT1}, s{sT1}, s{G.sG}
    s_add_u32 s{sT1}, s{sT1}, {WS_QX}
    """)
    Lns = k.label("ns")
    k.I(f"s_cmp_lg_u32 s{sROLE}, 0\ns_cbranch_scc1 {Lns}")
    for w in range(36):
        k.I(f"v_pk_mul_f32 {v(acc+2*w,2)}, {v(acc+2*w,2)}, {s(sC,2)} op_sel_hi:[1,0]")
    k.L(Lns)
    for gi in range(2):
        base = pk + 20 * gi
        M = [base, base + 4, base + 8, base + 12]
        tA, tB, tC, tD = base + 16, base + 17, base + 18, base + 19
        dst = {0: M[0], 1: M[0] + 1, 2: M[0] + 2, 3: M[0] + 3, 4: tA, 5: M[1] + 1, 6: M[1] + 2, 7: M[1] + 3,
               8: tB, 9: tC, 10: M[2], 11: M[2] + 1, 12: M[2] + 2, 13: tD, 14: M[3], 15: M[3] + 1, 16: M[3] + 2, 17: M[3] + 3}
        for w in range(18):
            r = acc + 2 * (18 * gi + w)
            k.I(f"v_cvt_pk_bf16_f32 {v(dst[w])}, {v(r)}, {v(r+1)}")
        k.I(f"v_cndmask_b32 {v(M[1])}, {v(tB)}, {v(tA)}, vcc")
        k.I(f"v_cndmask_b32 {v(M[2]+3)}, {v(tD)}, {v(tB)}, vcc")
        k.I(f"v_cndmask_b32 {v(tA)}, {v(tA)}, {v(tD)}, vcc")
        for i in range(4):
            k.I(f"buffer_store_dwordx4 {v(M[i],4)}, {v(vO1)}, {s(G.sWS,4)}, s{sT0} offen {ST}")
            k.I(f"s_add_u32 s{sT0}, s{sT0}, 65536")
        k.I(f"buffer_store_dword {v(tA)}, {v(vO3)}, {s(G.sWS,4)}, s{sT1} offen {ST}")
        k.I(f"s_add_u32 s{sT1}, s{sT1}, 8192")
        k.I(f"buffer_store_dword {v(tC)}, {v(vO2)}, {s(G.sWS,4)}, s{sT1} offen {ST}")
        k.I(f"s_add_u32 s{sT1}, s{sT1}, {3*8192}")

def emit_v(k):
    g = gemm_open(k, False, True)
    vj = k.v.alloc(2, 2); vO = [k.v.alloc() for _ in range(5)]; tq = [k.v.alloc() for _ in range(3)]; vL = k.v.alloc()
    vT0, vT1 = vj, vj + 1
    sT0, sT1 = G.sT0, G.sT1
    k.I(f"""
    v_and_b32 {v(vL)}, 63, v0
    s_mul_i32 s{sT0}, s{G.sWV}, 1280
    v_lshrrev_b32 {v(tq[2])}, 5, {v(vL)}
    v_mul_u32_u24 {v(tq[2])}, 320, {v(tq[2])}
    v_add_u32 {v(tq[2])}, s{sT0}, {v(tq[2])}
    """)
    for t in range(5):
        k.I(f"""
        v_and_b32 {v(vT0)}, 31, {v(vL)}
        v_add_u32 {v(vT0)}, {32*t}, {v(vT0)}
        v_mul_u32_u24 {v(vT1)}, 3641, {v(vT0)}
        v_lshrrev_b32 {v(vT1)}, 16, {v(vT1)}
        v_mul_u32_u24 {v(vO[t])}, 18, {v(vT1)}
        v_sub_u32 {v(vO[t])}, {v(vT0)}, {v(vO[t])}
        """)
        if t == 4:
            k.I(f"""
            v_cmp_lt_u32 vcc, 143, {v(vT0)}
            v_and_b32 {v(tq[0])}, 7, {v(vT0)}
            v_cndmask_b32 {v(vT1)}, {v(vT1)}, {v(tq[0])}, vcc
            v_bfe_u32 {v(tq[0])}, {v(vT0)}, 3, 1
            v_subrev_u32 {v(tq[1])}, 1, {v(tq[0])}
            v_and_b32 {v(tq[1])}, 0x3f803f80, {v(tq[1])}
            v_add_u32 {v(tq[0])}, 18, {v(tq[0])}
            v_cndmask_b32 {v(vO[t])}, {v(vO[t])}, {v(tq[0])}, vcc
            """)
        k.I(f"""
        v_mul_u32_u24 {v(vT1)}, 5120, {v(vT1)}
        v_lshl_add_u32 {v(vO[t])}, {v(vO[t])}, 4, {v(vT1)}
        v_add_u32 {v(vO[t])}, {v(vO[t])}, {v(tq[2])}
        """)
    g.main(first=lambda: k.stamp(1), **ready_hooks(k, g, lambda st: []))
    k.stamp(2)
    acc = g.acc; pk = g.Ab[0]
    k.I("s_barrier")
    for t in range(5):
        for j in range(8):
            k.I(f"v_cvt_pk_bf16_f32 {v(pk+8*t+j)}, {v(acc+16*t+2*j)}, {v(acc+16*t+2*j+1)}")
        if t == 4:
            for j in range(8):
                k.I(f"v_cndmask_b32 {v(pk+8*t+j)}, {v(pk+8*t+j)}, {v(tq[1])}, vcc")
        k.I(f"ds_write_b128 {v(vO[t])}, {v(pk+8*t,4)}")
        k.I(f"ds_write_b128 {v(vO[t])}, {v(pk+8*t+4,4)} offset:{VT_STEP}")
    k.I(f"""
    s_mul_i32 s{sT0}, s{G.sWV}, {2*5120}
    v_lshlrev_b32 {v(vT0)}, 4, {v(vL)}
    v_add_u32 {v(vT1)}, s{sT0}, {v(vT0)}
    s_lshl_b32 s{sT0}, s{sCB1}, 3
    s_lshl_b32 s{sT1}, s{G.sWV}, 1
    s_add_u32 s{sT0}, s{sT0}, s{sT1}
    s_lshl_b32 s{sT0}, s{sT0}, 4
    s_add_u32 s{sT0}, s{sT0}, s{sRB1}
    s_mul_i32 s{sT0}, s{sT0}, 5120
    s_add_u32 s{sT0}, s{sT0}, {WS_VT}
    s_waitcnt lgkmcnt(0)
    s_barrier
    """)
    for hh in range(2):
        for i in range(5):
            k.I(f"ds_read_b128 {v(pk+20*hh+4*i,4)}, {v(vT1)} offset:{5120*hh+1024*i}")
    for hh in range(2):
        for i in range(5):
            k.I(f"s_waitcnt lgkmcnt({9-5*hh-i})")
            if i == 4: k.I(f"s_add_u32 s{sT0}, s{sT0}, 4096")
            k.I(f"buffer_store_dwordx4 {v(pk+20*hh+4*i,4)}, {v(vT0)}, {s(G.sWS,4)}, s{sT0} offen offset:{1024*(i%4)} {ST}")
        k.I(f"s_add_u32 s{sT0}, s{sT0}, {128*VT_STEP - 4096}")

def emit_w1(k):
    g = gemm_open(k, True, False)
    cp = k.v.alloc(16, 4); cs = k.v.alloc(16, 4); vR = k.v.alloc(2, 2); vK1 = k.v.alloc(2, 2)
    vT0 = k.v.alloc(); vT1 = k.v.alloc(); vO = k.v.alloc(); vA = k.v.alloc(); vL = k.v.alloc()
    sC, sT0, sT1 = G.sC, G.sT0, G.sT1
    def pre_barrier(st):
        if st == 11:
            L = k.label("pa")
            k.I(f"""
            s_mov_b32 s54, 16
            s_mov_b32 s55, 16
            s_cmp_lg_u32 s{G.sWV}, 0
            s_cbranch_scc1 {L}
            s_lshl_b32 s56, s{sRB1}, 7
            s_add_u32 s56, s56, {WS_CNT + 128*sync.CR}
            s_lshl_b32 s59, s{sCB1}, 7
            s_add_u32 s59, s59, {WS_CNT + 128*sync.CC}
            s_mov_b32 s54, 0
            s_mov_b32 s55, 0
            s_atomic_add s54, s[{P_WS}:{P_WS+1}], s56 glc
            s_atomic_add s55, s[{P_WS}:{P_WS+1}], s59 glc
            {L}:
            """)
        if st == 13:
            L = k.label("pb")
            k.I(f"s_min_u32 s54, s54, s55\ns_cmp_ge_u32 s54, 16\ns_cbranch_scc1 {L}")
            sync.poll(k, P_WS, G.sWV, [(56, 16), (59, 16)], 57)
            k.L(L)
    def extra(st):
        if st not in (14, 15, 16): return []
        fl = []
        r = [[f"v_and_b32 {v(vT0)}, 31, v0", f"v_lshlrev_b32 {v(vT0)}, 4, {v(vT0)}", f"s_lshl_b32 s56, s{G.sMT}, 9", f"s_add_u32 s56, s56, {WS_ST1}",
              f"buffer_load_dwordx2 {v(vR,2)}, {v(vT0)}, {s(G.sWS,4)}, s56 offen sc1"]]
        for i in range(16):
            pre = [f"v_lshlrev_b32 {v(vT1)}, 2, v0", f"s_mul_i32 s56, s{sCB1}, {16*576}", f"s_add_u32 s56, s56, {WS_C1P}"] if i == 0 else \
                  [f"s_add_u32 s56, s56, {4*576}"] if i % 4 == 0 else []
            r.append(pre + [f"buffer_load_dword {v(cp+i)}, {v(vT1)}, {s(G.sWS,4)}, s56 offen offset:{576*(i%4)} sc1"])
        return fl + r[6*(st-14):6*(st-13)]
    g.main(first=lambda: k.stamp(1), **ready_hooks(k, g, extra, pre_barrier))
    k.stamp(2)
    acc = g.acc
    csall = g.Ab[0]; tmp = g.scr; pk = g.scr + 16
    CSB = 2 * g.WS_
    k.I("s_waitcnt vmcnt(0)")
    for st_ in (8, 4, 2, 1):
        for i in range(st_): k.I(f"v_add_f32 {v(cp+i)}, {v(cp+i)}, {v(cp+i+st_)}")
    k.I(f"""
    ds_write_b32 {v(vT1)}, {v(cp)} offset:{CSB}
    v_and_b32 {v(vL)}, 63, v0
    v_lshlrev_b32 {v(vO)}, 4, {v(vL)}
    s_mul_i32 s{sT0}, s{G.sMT}, 36
    s_mul_i32 s{sT1}, s{sCB1}, 9
    s_add_u32 s{sT0}, s{sT0}, s{sT1}
    s_lshl_b32 s{sT0}, s{sT0}, 10
    s_add_u32 s{sT0}, s{sT0}, {WS_HS}
    v_mov_b32 {v(vK1)}, {hx(f2u(GK1))}
    s_mov_b32 s{sC}, {hx(f2u(GK2))}
    v_lshrrev_b32 {v(vA)}, 5, {v(vL)}
    v_lshlrev_b32 {v(vA)}, 5, {v(vA)}
    s_waitcnt lgkmcnt(0)
    s_barrier
    """)
    def csr(t, dst):
        for q in range(4 if t < 4 else 2):
            k.I(f"ds_read_b128 {v(dst+4*q,4)}, {v(vA)} offset:{CSB + 128*t + 64*(q//2) + 16*(q%2)}")
    for t in range(5):
        nq = 4 if t < 4 else 2
        if t == 0: csr(0, cs)
        if t + 1 < 5:
            csr(t + 1, csall)
            k.I(f"s_waitcnt lgkmcnt({4 if t + 1 < 4 else 2})")
        else:
            k.I("s_waitcnt lgkmcnt(0)")
        for p in range(2 * nq):
            k.I(f"v_pk_mul_f32 {v(cs+2*p,2)}, {v(cs+2*p,2)}, {v(vR,2)} op_sel:[0,1] op_sel_hi:[1,1]")
        for p in range(2 * nq):
            r = acc + 16 * t + 2 * p
            k.I(f"v_pk_fma_f32 {v(r,2)}, {v(r,2)}, {v(vR,2)}, {v(cs+2*p,2)} op_sel_hi:[1,0,1]")
        p0 = pk + 8 * (t & 1)
        gelu_pairs(k, [(acc + 16 * t + 2 * p, p0 + p) for p in range(2 * nq)], vK1, sC, tmp)
        for e in range(nq // 2):
            k.I(f"buffer_store_dwordx4 {v(p0+4*e,4)}, {v(vO)}, {s(G.sWS,4)}, s{sT0} offen offset:{1024*e} {ST}")
        k.I(f"s_add_u32 s{sT0}, s{sT0}, 2048")
        cs, csall = csall, cs

def emit_rowstats(k, more_loads=None):
    k.v.next = 1
    k.I("s_setprio 3")
    vRow = k.v.alloc(); a0 = k.v.alloc(); a1 = k.v.alloc(); a2 = k.v.alloc(); a3_ = k.v.alloc()
    xs = k.v.alloc(12, 4); gs = k.v.alloc(12, 4); u = k.v.alloc(4, 4); a3 = k.v.alloc(4, 4)
    k.I(f"""
    s_lshl_b32 s{G.sT0}, s{sROLE}, 2
    s_add_u32 s{G.sT0}, s{G.sT0}, s{sCB1}
    s_lshl_b32 s{G.sT0}, s{G.sT0}, 3
    s_lshl_b32 s{G.sT1}, s{sRB1}, 7
    s_add_u32 s{G.sT0}, s{G.sT0}, s{G.sT1}
    v_lshrrev_b32 {v(vRow)}, 5, v0
    v_add_u32 {v(vRow)}, s{G.sT0}, {v(vRow)}
    v_mul_u32_u24 {v(a1)}, 1152, {v(vRow)}
    v_and_b32 {v(u)}, 31, v0
    v_lshlrev_b32 {v(a2)}, 4, {v(u)}
    v_lshlrev_b32 {v(a3_)}, 2, {v(u)}
    v_add_u32 {v(a0)}, {v(a1)}, {v(a2)}
    v_add_u32 {v(a1)}, {v(a1)}, {v(a3_)}
    s_waitcnt lgkmcnt(0)
    """)
    srd(k, G.sX, P_X, S * D * 2); srd(k, G.sW, P_GATE, D * 2); srd(k, G.sWS, P_WS, WS_SIZE)
    k.I(f"""
    buffer_load_dwordx4 {v(xs,4)}, {v(a0)}, {s(G.sX,4)}, 0 offen
    buffer_load_dwordx4 {v(xs+4,4)}, {v(a0)}, {s(G.sX,4)}, 0 offen offset:512
    buffer_load_dword {v(xs+8)}, {v(a1)}, {s(G.sX,4)}, 0 offen offset:1024
    buffer_load_dwordx4 {v(gs,4)}, {v(a2)}, {s(G.sW,4)}, 0 offen
    buffer_load_dwordx4 {v(gs+4,4)}, {v(a2)}, {s(G.sW,4)}, 0 offen offset:512
    buffer_load_dword {v(gs+8)}, {v(a3_)}, {s(G.sW,4)}, 0 offen offset:1024
    """)
    n = more_loads() if more_loads else 0
    k.I(f"v_mov_b32 {v(a3)}, 0\nv_mov_b32 {v(a3+1)}, 0\nv_mov_b32 {v(a3+2)}, 0\ns_waitcnt vmcnt({n})")
    for j in range(9):
        k.I(f"""
        v_lshlrev_b32 {v(u)}, 16, {v(xs+j)}
        v_and_b32 {v(u+1)}, 0xffff0000, {v(xs+j)}
        v_lshlrev_b32 {v(u+2)}, 16, {v(gs+j)}
        v_and_b32 {v(u+3)}, 0xffff0000, {v(gs+j)}
        v_add_f32 {v(a3)}, {v(a3)}, {v(u)}
        v_fmac_f32 {v(a3+1)}, {v(u)}, {v(u)}
        v_fmac_f32 {v(a3+2)}, {v(u)}, {v(u+2)}
        v_add_f32 {v(a3)}, {v(a3)}, {v(u+1)}
        v_fmac_f32 {v(a3+1)}, {v(u+1)}, {v(u+1)}
        v_fmac_f32 {v(a3+2)}, {v(u+1)}, {v(u+3)}
        """)
    for sh in (1, 2, 4, 8):
        for r in range(3):
            k.I(f"v_add_f32_dpp {v(a3+r)}, {v(a3+r)}, {v(a3+r)} row_ror:{sh} row_mask:0xf bank_mask:0xf")
    for r in range(3): k.I(f"v_mov_b32 {v(u+r)}, {v(a3+r)}")
    for r in range(3): k.I(f"v_permlane16_swap_b32 {v(a3+r)}, {v(u+r)}")
    for r in range(3): k.I(f"v_add_f32 {v(a3+r)}, {v(a3+r)}, {v(u+r)}")
    k.I(f"""
    v_mul_f32 {v(a3)}, {hx(f2u(-1.0/576))}, {v(a3)}
    v_mul_f32 {v(a3+1)}, {hx(f2u(1.0/576))}, {v(a3+1)}
    v_mul_f32 {v(a3+2)}, {hx(f2u(-LOG2E))}, {v(a3+2)}
    v_fma_f32 {v(a3+1)}, -{v(a3)}, {v(a3)}, {v(a3+1)}
    v_exp_f32 {v(a3+2)}, {v(a3+2)}
    v_max_f32 {v(a3+1)}, 0, {v(a3+1)}
    v_add_f32 {v(a3+1)}, {hx(f2u(1e-5))}, {v(a3+1)}
    v_add_f32 {v(a3+2)}, 1.0, {v(a3+2)}
    v_rsq_f32 {v(u)}, {v(a3+1)}
    v_rcp_f32 {v(u+2)}, {v(a3+2)}
    v_sub_f32 {v(u+3)}, 0, {v(a3)}
    v_mul_f32 {v(u+1)}, {v(u)}, {v(a3)}
    v_lshlrev_b32 {v(vRow)}, 4, {v(vRow)}
    s_mov_b32 s{G.sT0}, {WS_ST1}
    s_mov_b32 exec_lo, 1
    s_mov_b32 exec_hi, 1
    buffer_store_dwordx4 {v(u,4)}, {v(vRow)}, {s(G.sWS,4)}, s{G.sT0} offen {ST}
    s_mov_b64 exec, -1
    """)

def emit_side_a(k):
    d = 48; vA = 60; vB_ = 61; ac = 64; t = 72
    L = k.label("ni")
    k.I(f"s_cmp_ge_u32 s2, 64\ns_cbranch_scc1 {L}\ns_cmp_lg_u32 s{G.sWV}, 0\ns_cbranch_scc1 {L}\ns_waitcnt lgkmcnt(0)")
    srd(k, G.sWS, P_WS, WS_SIZE)
    k.I(f"""
    v_lshlrev_b32 v60, 4, v0
    v_mov_b32 v64, 0
    v_mov_b32 v65, 0
    v_mov_b32 v66, 0
    v_mov_b32 v67, 0
    s_lshr_b32 s{G.sT0}, s2, 2
    s_lshl_b32 s{G.sT0}, s{G.sT0}, 12
    s_add_u32 s{G.sT0}, s{G.sT0}, {WS_CNT}
    buffer_store_dwordx4 v[64:67], v60, {s(G.sWS,4)}, s{G.sT0} offen sc1
    buffer_store_dwordx4 v[64:67], v60, {s(G.sWS,4)}, s{G.sT0} offen offset:1024 sc1
    buffer_store_dwordx4 v[64:67], v60, {s(G.sWS,4)}, s{G.sT0} offen offset:2048 sc1
    buffer_store_dwordx4 v[64:67], v60, {s(G.sWS,4)}, s{G.sT0} offen offset:3072 sc1
    s_waitcnt vmcnt(0)
    s_mov_b32 s57, 1
    s_atomic_add s57, s[{P_DBG}:{P_DBG+1}], 0 glc
    s_waitcnt lgkmcnt(0)
    """)
    k.L(L)
    def more():
        srd(k, 52, P_W1, D * D * 2)
        k.I(f"""
        v_mul_u32_u24 {v(vA)}, 3641, v0
        v_lshrrev_b32 {v(vA)}, 16, {v(vA)}
        v_mul_u32_u24 {v(vB_)}, {1152 - 288}, {v(vA)}
        v_lshl_add_u32 {v(vB_)}, v0, 4, {v(vB_)}
        v_mov_b32 {v(t)}, {hx(OOB)}
        v_cmp_gt_u32 vcc, 12, {v(vA)}
        v_cndmask_b32 {v(vB_)}, {v(t)}, {v(vB_)}, vcc
        s_mul_i32 s{G.sT0}, s{sRB1}, {36*1152}
        s_mul_i32 s{G.sT1}, s{sCB1}, 288
        s_add_u32 s{G.sT0}, s{G.sT0}, s{G.sT1}
        """)
        for i in range(3):
            k.I(f"buffer_load_dwordx4 {v(d+4*i,4)}, {v(vB_)}, s[52:55], s{G.sT0} offen\ns_add_u32 s{G.sT0}, s{G.sT0}, {12*1152}")
        return 3
    emit_rowstats(k, more)
    k.v.next = 100
    k.I("s_waitcnt vmcnt(1)")
    for i in range(3):
        for j in range(4):
            dst = ac if i == 0 else t
            k.I(f"v_lshlrev_b32 {v(dst+2*j)}, 16, {v(d+4*i+j)}\nv_and_b32 {v(dst+2*j+1)}, 0xffff0000, {v(d+4*i+j)}")
        if i:
            for j in range(8): k.I(f"v_add_f32 {v(ac+j)}, {v(ac+j)}, {v(t+j)}")
    k.I(f"""
    v_lshlrev_b32 {v(vA)}, 5, v0
    ds_write_b128 {v(vA)}, {v(ac,4)}
    ds_write_b128 {v(vA)}, {v(ac+4,4)} offset:16
    v_lshlrev_b32 {v(vA)}, 2, v0
    s_waitcnt lgkmcnt(0)
    s_barrier
    """)
    for i in range(12): k.I(f"ds_read_b32 {v(t+i)}, {v(vA)} offset:{576*i}")
    k.I("s_waitcnt lgkmcnt(0)")
    for i in range(1, 12): k.I(f"v_add_f32 {v(t)}, {v(t)}, {v(t+i)}")
    k.I(f"""
    v_mov_b32 {v(t+1)}, {hx(OOB)}
    v_cmp_gt_u32 vcc, 144, v0
    v_cndmask_b32 {v(vA)}, {v(t+1)}, {v(vA)}, vcc
    s_lshl_b32 s{G.sT0}, s{sCB1}, 4
    s_add_u32 s{G.sT0}, s{G.sT0}, s{sRB1}
    s_mul_i32 s{G.sT0}, s{G.sT0}, 576
    s_add_u32 s{G.sT0}, s{G.sT0}, {WS_C1P}
    buffer_store_dword {v(t)}, {v(vA)}, {s(G.sWS,4)}, s{G.sT0} offen {ST}
    """.replace("v_cmp_gt_u32 vcc, 144,", "v_cmp_gt_u32 vcc, 0x90,"))
    sync.wait_ready(k, P_DBG, G.sWV, 57, 90)
    k.I(f"""
    s_waitcnt vmcnt(0)
    s_barrier
    s_lshl_b32 s56, s{sRB1}, 7
    s_add_u32 s56, s56, {WS_CNT + 128*sync.CR}
    s_lshl_b32 s59, s{sCB1}, 7
    s_add_u32 s59, s59, {WS_CNT + 128*sync.CC}
    """)
    sync.signal(k, P_WS, G.sWV, 56, 57)
    sync.signal(k, P_WS, G.sWV, 59, 57)

def w2touch(k):
    k.I(f"""
    s_bfe_u32 s{G.sT0}, s2, 0x60002
    s_mul_i32 s{G.sT0}, s{G.sT0}, 3
    s_add_u32 s{G.sT0}, s{G.sT0}, s{sROLE}
    s_mul_i32 s{G.sT0}, s{G.sT0}, {27*128}
    v_lshlrev_b32 v60, 7, v0
    """)
    srd(k, 52, P_W2, D * D * 2)
    k.I(f"""
    s_add_u32 s54, s{G.sT0}, {27*128}
    buffer_load_dword v61, v60, s[52:55], s{G.sT0} offen
    """)
    return 1

def emit_cs3(k, sIDX):
    k.v.next = 1
    vT0 = k.v.alloc(); vT1 = k.v.alloc(); vA = k.v.alloc()
    d = k.v.alloc(48, 4); ac = k.v.alloc(16, 4); t = k.v.alloc(8, 2)
    sC, sP = [52, 54], [53, 55]
    Ld = k.label("sd"); Le = k.label("se")
    k.I(f"""
    s_and_b32 s56, s2, 255
    s_lshl_b32 s56, s56, 7
    s_add_u32 s56, s56, {WS_CNT + 128*sync.CP}
    ; jobs q = 2*spare + (0,1) in 0..215: c = q/3, part = q%3
    s_lshl_b32 s59, s{sIDX}, 1
    v_lshrrev_b32 {v(vT0)}, 3, v0
    v_mul_u32_u24 {v(vT0)}, 9216, {v(vT0)}
    v_and_b32 {v(vT1)}, 7, v0
    v_lshl_add_u32 {v(vT0)}, {v(vT1)}, 4, {v(vT0)}
    """)
    srd(k, G.sW, P_W3, D * F * 2)
    sync.poll(k, P_WS, G.sWV, [(56, 2)], 57)
    k.I(f"s_barrier\ns_cmp_ge_u32 s59, 216\ns_cbranch_scc1 {Le}")
    for jb in range(2):
        k.I(f"""
        s_mul_i32 s{sC[jb]}, s59, 21846
        s_lshr_b32 s{sC[jb]}, s{sC[jb]}, 16
        s_mul_i32 s{G.sT0}, s{sC[jb]}, 3
        s_sub_u32 s{sP[jb]}, s59, s{G.sT0}
        s_lshl_b32 s{G.sT0}, s{sC[jb]}, 7
        s_mul_i32 s{G.sT1}, s{sP[jb]}, {192*9216}
        s_add_u32 s{G.sT0}, s{G.sT0}, s{G.sT1}
        s_add_u32 s59, s59, 1
        """)
        for i in range(6):
            k.I(f"buffer_load_dwordx4 {v(d+24*jb+4*i,4)}, {v(vT0)}, {s(G.sW,4)}, s{G.sT0} offen")
            k.I(f"s_add_u32 s{G.sT0}, s{G.sT0}, {32*9216}")
    k.I(f"v_lshlrev_b32 {v(vA)}, 5, v0")
    for jb in range(2):
        for i in range(6):
            k.I(f"s_waitcnt vmcnt({11-6*jb-i})")
            for j in range(4):
                dst = ac + 8 * jb if i == 0 else t
                x = d + 24 * jb + 4 * i + j
                k.I(f"v_lshlrev_b32 {v(dst+2*j)}, 16, {v(x)}\nv_and_b32 {v(dst+2*j+1)}, 0xffff0000, {v(x)}")
            if i:
                for j in range(8): k.I(f"v_add_f32 {v(ac+8*jb+j)}, {v(ac+8*jb+j)}, {v(t+j)}")
        k.I(f"ds_write_b128 {v(vA)}, {v(ac+8*jb,4)} offset:{8192*jb}\nds_write_b128 {v(vA)}, {v(ac+8*jb+4,4)} offset:{8192*jb+16}")
    k.I(f"""
    v_and_b32 {v(vA)}, 63, v0
    v_lshlrev_b32 {v(vA)}, 2, {v(vA)}
    s_lshl_b32 s{G.sT0}, s{G.sWV}, 13
    v_add_u32 {v(vA)}, s{G.sT0}, {v(vA)}
    s_waitcnt lgkmcnt(0)
    s_barrier
    s_cmp_ge_u32 s{G.sWV}, 2
    s_cbranch_scc1 {Ld}
    """)
    for i in range(32): k.I(f"ds_read_b32 {v(d+i)}, {v(vA)} offset:{256*i}")
    k.I(f"""
    s_cmp_eq_u32 s{G.sWV}, 0
    s_cselect_b32 s{sC[0]}, s{sC[0]}, s{sC[1]}
    s_cselect_b32 s{sP[0]}, s{sP[0]}, s{sP[1]}
    s_waitcnt lgkmcnt(0)
    """)
    for st_ in (16, 8, 4, 2, 1):
        for i in range(st_): k.I(f"v_add_f32 {v(d+i)}, {v(d+i)}, {v(d+i+st_)}")
    Lz = k.label("nz")
    k.I(f"""
    v_and_b32 {v(t)}, 0xffff0000, {v(d)}
    v_sub_f32 {v(d)}, {v(d)}, {v(t)}
    v_cvt_pk_bf16_f32 {v(ac)}, {v(t)}, {v(t)}
    v_cvt_pk_bf16_f32 {v(ac+1)}, {v(d)}, {v(d)}
    v_mov_b32 {v(ac+2)}, 0
    v_mov_b32 {v(ac+3)}, 0
    v_and_b32 {v(vT0)}, 0x13, v0
    v_and_b32 {v(vT1)}, 4, v0
    v_lshl_or_b32 {v(vT0)}, {v(vT1)}, 1, {v(vT0)}
    v_bfe_u32 {v(vT1)}, v0, 3, 1
    v_lshl_or_b32 {v(vT0)}, {v(vT1)}, 2, {v(vT0)}
    v_lshlrev_b32 {v(vT0)}, 4, {v(vT0)}
    v_bfe_u32 {v(vT1)}, v0, 5, 1
    v_lshl_add_u32 {v(vT0)}, {v(vT1)}, 10, {v(vT0)}
    s_lshl_b32 s{G.sT0}, s{sC[0]}, 11
    s_add_u32 s{G.sT0}, s{G.sT0}, {WS_CS3}
    s_lshl_b32 s{G.sT1}, s{sP[0]}, 3
    s_cmp_eq_u32 s{sP[0]}, 2
    s_cselect_b32 s{G.sT1}, 512, s{G.sT1}
    s_add_u32 s{G.sT0}, s{G.sT0}, s{G.sT1}
    buffer_store_dwordx2 {v(ac,2)}, {v(vT0)}, {s(G.sWS,4)}, s{G.sT0} offen {ST}
    s_cmp_lg_u32 s{sP[0]}, 2
    s_cbranch_scc1 {Lz}
    buffer_store_dwordx2 {v(ac+2,2)}, {v(vT0)}, {s(G.sWS,4)}, s{G.sT0} offen offset:8 {ST}
    {Lz}:
    s_mul_i32 s56, s{sC[0]}, 3641
    s_lshr_b32 s56, s56, 16
    s_lshl_b32 s56, s56, 7
    s_add_u32 s56, s56, {WS_CNT + 128*sync.CS}
    s_waitcnt vmcnt(0)
    s_mov_b32 s57, 1
    s_atomic_add s57, s[{P_WS}:{P_WS+1}], s56 glc
    s_waitcnt lgkmcnt(0)
    {Ld}:
    s_barrier
    {Le}:
    """)

def emit_side_b(k):
    emit_rowstats(k, lambda: w2touch(k))
    sync.wait_ready(k, P_DBG, G.sWV, 57, 90)
    k.I(f"""
    s_waitcnt vmcnt(0)
    s_barrier
    s_lshl_b32 s56, s{sRB1}, 7
    s_add_u32 s56, s56, {WS_CNT + 128*sync.CR}
    """)
    sync.signal(k, P_WS, G.sWV, 56, 57)
    k.stamp(2)
    k.I(f"s_setprio 0\ns_and_b32 s56, s2, 255\ns_lshl_b32 s56, s56, 7\ns_add_u32 s56, s56, {WS_CNT + 128*sync.CP}")
    sync.poll(k, P_WS, G.sWV, [(56, 1)], 57)
    k.I("s_barrier")
```

```python
from common import *
WS_CNT = 0x0BC0000
C1, C2, C3, CA, CW, CS = 0, 16, 80, 144, 160, 176
CR, CC, CH, CQ, CP = 184, 200, 208, 224, 256
NCNT = 512
SPIN = 1 << 18

def signal(k, sP, sWV, sOFF, st):
    L = k.label("sig")
    k.I(f"""
    s_cmp_lg_u32 s{sWV}, 0
    s_cbranch_scc1 {L}
    s_mov_b32 s{st}, 1
    s_atomic_add s{st}, s[{sP}:{sP+1}], s{sOFF} glc
    s_waitcnt lgkmcnt(0)
    {L}:
    """)

def poll(k, sP, sWV, checks, st):
    L = k.label("pw"); Lp = k.label("pp"); Ls = k.label("ps")
    k.I(f"s_cmp_lg_u32 s{sWV}, 0\ns_cbranch_scc1 {L}\ns_mov_b32 s{st}, {SPIN}")
    k.L(Lp)
    for i, (sOFF, target) in enumerate(checks):
        k.I(f"s_mov_b32 s{45+i}, 0\ns_atomic_add s{45+i}, s[{sP}:{sP+1}], s{sOFF} glc")
    k.I("s_waitcnt lgkmcnt(0)")
    for i, (sOFF, target) in enumerate(checks):
        if i < len(checks) - 1: k.I(f"s_cmp_lt_u32 s{45+i}, {target}\ns_cbranch_scc1 {Ls}")
        else: k.I(f"s_cmp_ge_u32 s{45+i}, {target}\ns_cbranch_scc1 {L}")
    k.I(f"""
    {Ls}:
    s_sleep 2
    s_sub_u32 s{st}, s{st}, 1
    s_cmp_gt_i32 s{st}, 0
    s_cbranch_scc1 {Lp}
    {L}:
    """)

def wait_ready(k, sDBG, sWV, st, vt):
    L = k.label("rd"); Lp = k.label("rp")
    k.I(f"""
    s_cmp_lg_u32 s{sWV}, 0
    s_cbranch_scc1 {L}
    s_mov_b32 s{st}, {SPIN}
    v_mov_b32 {v(vt+1)}, 0
    {Lp}:
    global_load_dword {v(vt)}, {v(vt+1)}, s[{sDBG}:{sDBG+1}] sc1
    s_waitcnt vmcnt(0)
    v_readfirstlane_b32 s{st+1}, {v(vt)}
    s_cmp_ge_u32 s{st+1}, 16
    s_cbranch_scc1 {L}
    s_sleep 8
    s_sub_u32 s{st}, s{st}, 1
    s_cmp_gt_i32 s{st}, 0
    s_cbranch_scc1 {Lp}
    {L}:
    """)

def signal_poll(k, sP, sWV, sOFF, target, others, st):
    L = k.label("sp"); Ls = k.label("ss")
    k.I(f"s_cmp_lg_u32 s{sWV}, 0\ns_cbranch_scc1 {L}\ns_mov_b32 s45, 1\ns_atomic_add s45, s[{sP}:{sP+1}], s{sOFF} glc")
    for i, (o, t) in enumerate(others):
        k.I(f"s_mov_b32 s{46+i}, 0\ns_atomic_add s{46+i}, s[{sP}:{sP+1}], s{o} glc")
    k.I("s_waitcnt lgkmcnt(0)")
    for i, (o, t) in enumerate(others):
        k.I(f"s_cmp_lt_u32 s{46+i}, {t}\ns_cbranch_scc1 {Ls}")
    k.I(f"s_cmp_ge_u32 s45, {target-1}\ns_cbranch_scc1 {L}")
    k.L(Ls)
    poll(k, sP, sWV, [(sOFF, target)] + list(others), st)
    k.L(L)
```

```python
from common import *
from gemm import G, common_ids, load_stats
ST = "sc1"
LD = "sc1"
W3_SLOT = 24576
W3_CS = 3 * W3_SLOT
W3_LDS = W3_CS
WS_CSA = WS_CS3

def ids_b(k, sID):
    k.I(f"""
    s_bfe_u32 s{G.sT0}, s{sID}, 0x10002
    s_bfe_u32 s{G.sRB}, s{sID}, 0x30003
    s_lshl_b32 s{G.sT0}, s{G.sT0}, 3
    s_add_u32 s{G.sRB}, s{G.sRB}, s{G.sT0}
    s_and_b32 s{G.sCB}, s{sID}, 3
    s_lshl_b32 s{G.sCB}, s{G.sCB}, 2
    s_bfe_u32 s{G.sT0}, s{sID}, 0x20006
    s_add_u32 s{G.sCB}, s{G.sCB}, s{G.sT0}
    """)

def emit_w3f(k, poll=None, after_sync=None, RA=5, prio=None, stamp=None, tail=None, opened=None):
    sPR, sK3, sPC, sSO, sHO = 50, 51, 52, 53, 54
    sOD, sS1, sCS = 48, 49, 55
    sK3o = [42, 43, 44]; sST = 34
    k.v.next = 1
    R = RA + 1
    vB = k.v.alloc(); vWo = k.v.alloc(); vWo1 = k.v.alloc(); vWa = [k.v.alloc(), k.v.alloc()]
    c1 = k.v.alloc(); c2 = k.v.alloc(); ri = k.v.alloc()
    T = k.v.alloc(4, 2); Bp = k.v.alloc(4, 2); Ap = k.v.alloc(4, 2)
    acc = [k.v.alloc(32, 4), k.v.alloc(32, 4)]
    Ab = [k.v.alloc(4, 4) for _ in range(R)]
    Bf = [k.v.alloc(4, 4) for _ in range(36)]
    vL, vT0, vT1 = T, T + 1, T + 2
    srd(k, G.sW, 38, D * F * 2)
    k.I(f"""
    v_and_b32 {v(vL)}, 63, v0
    s_lshl_b32 s{G.sMT}, s{G.sRB}, 2
    s_add_u32 s{G.sMT}, s{G.sMT}, s{G.sWV}
    v_lshlrev_b32 {v(vB)}, 4, {v(vL)}
    s_and_b32 s{sPR}, s{G.sRB}, 3
    s_bfe_u32 s{sK3}, s{G.sRB}, 0x10002
    s_and_b32 s{G.sT0}, s{G.sCB}, 3
    s_add_u32 s{sK3}, s{sK3}, s{G.sT0}
    s_cmp_ge_u32 s{sK3}, 3
    s_cselect_b32 s{G.sT0}, 3, 0
    s_sub_u32 s{sK3}, s{sK3}, s{G.sT0}
    s_mul_i32 s{sK3o[0]}, s{sK3}, {192*9216}
    s_add_u32 s{sK3o[1]}, s{sK3o[0]}, {192*9216}
    s_cmp_eq_u32 s{sK3}, 2
    s_cselect_b32 s{sK3o[1]}, 0, s{sK3o[1]}
    s_add_u32 s{sK3o[2]}, s{sK3o[1]}, {192*9216}
    s_cmp_eq_u32 s{sK3}, 1
    s_cselect_b32 s{sK3o[2]}, 0, s{sK3o[2]}
    v_bfe_u32 {v(vT0)}, {v(vL)}, 2, 2
    v_lshrrev_b32 {v(vT1)}, 5, {v(vL)}
    v_lshl_add_u32 {v(vT0)}, {v(vT1)}, 2, {v(vT0)}
    s_mul_i32 s{G.sT0}, s{G.sWV}, 48
    v_add_u32 {v(vT0)}, s{G.sT0}, {v(vT0)}
    v_mul_u32_u24 {v(vWo)}, 9216, {v(vT0)}
    v_bfe_u32 {v(vT0)}, {v(vL)}, 4, 1
    v_lshl_add_u32 {v(vWo)}, {v(vT0)}, 6, {v(vWo)}
    v_and_b32 {v(vT1)}, 3, {v(vL)}
    v_lshl_add_u32 {v(vWo)}, {v(vT1)}, 4, {v(vWo)}
    v_lshrrev_b32 {v(vT0)}, 2, {v(vL)}
    v_add_u32 {v(vT0)}, s{G.sT0}, {v(vT0)}
    v_mul_u32_u24 {v(vWo1)}, 9216, {v(vT0)}
    v_lshl_add_u32 {v(vWo1)}, {v(vT1)}, 4, {v(vWo1)}
    s_mul_i32 s{G.sWB}, s{G.sCB}, 576
    s_and_b32 s{sOD}, s{G.sCB}, 1
    s_cselect_b32 s{sS1}, 0, 8
    s_mul_i32 s{G.sM0}, s{G.sWV}, 6144
    s_mul_i32 s{G.sM0D}, s{G.sWV}, 3072
    """)
    NQ = 15
    def tile0(d, p):
        return [f"s_add_u32 s{d}, s{sPR}, {p}", f"s_and_b32 s{d}, s{d}, 3", f"s_lshl_b32 s{d}, s{d}, 1", f"s_add_u32 s{d}, s{d}, s{sOD}"]
    def stage_setup(q):
        p, th = divmod(q, 3)
        r = []
        if th == 0:
            if p < 4:
                r += tile0(sPC, p) + [f"s_lshl_b32 s{sPC}, s{sPC}, 6", f"s_add_u32 s{sPC}, s{sPC}, s{G.sWB}"]
            else:
                r += [f"s_lshl_b32 s{sPC}, s{sS1}, 6", f"s_add_u32 s{sPC}, s{sPC}, s{G.sWB}"]
        r += [f"s_add_u32 s{sSO}, s{sK3o[th]}, s{sPC}"]
        return r
    def loads(q):
        p, th = divmod(q, 3)
        g = []
        n = 6 if p < 4 else 3
        for i in range(n):
            pre = stage_setup(q) if i == 0 else [f"s_add_u32 s{sSO}, s{sSO}, {(8 if p < 4 else 16)*9216}"]
            pre = pre + [f"s_add_u32 m0, s{G.sM0 if p < 4 else G.sM0D}, {th*W3_SLOT + i*1024}"]
            g.append(pre + [f"buffer_load_dwordx4 {v(vWo if p < 4 else vWo1)}, {s(G.sW,4)}, s{sSO} offen lds"])
        return g
    vm = []
    def emit_group(g, tag):
        for x in g: k.I(x)
        vm.append(tag)
    def allowed(tags):
        last = max(i for i, t in enumerate(vm) if t in tags)
        return len(vm) - 1 - last
    tr_lane_addr(k, vWa[0], vL, vT0, vT1, 2 * 2 * 256, perm=True)
    k.I(f"v_add_u32 {v(vWa[1])}, {2*W3_SLOT}, {v(vWa[0])}")
    for q in range(3):
        for g in loads(q): emit_group(g, q)
        if q == 0 and opened: opened(6)
    st16 = acc[1]
    k.I(f"""
    v_and_b32 {v(vT0)}, 31, v0
    v_lshlrev_b32 {v(vT0)}, 3, {v(vT0)}
    s_lshl_b32 s{sST}, s{G.sMT}, 8
    s_add_u32 s{sST}, s{sST}, {WS_ST2}
    s_mul_i32 s{sCS}, s{G.sCB}, 9216
    s_add_u32 s{sCS}, s{sCS}, {WS_CS3}
    """)
    stl = []
    for c in range(9):
        stl.append(("st", ([f"s_add_u32 s{sST}, s{sST}, 16384"] if c else []) + [f"buffer_load_dwordx2 {v(st16+2*c,2)}, {v(vT0)}, {s(G.sWS,4)}, s{sST} offen {LD}"]))
    def cs_loads(p, t):
        pre = tile0(G.sT0, p) if p < 4 else [f"s_mov_b32 s{G.sT0}, s{sS1}"]
        pre += [f"s_lshl_b32 s{G.sT0}, s{G.sT0}, 10", f"s_add_u32 s{G.sT0}, s{G.sT0}, s{sCS}"]
        return [pre + [f"buffer_load_dwordx4 {v(Ap,4)}, {v(vB)}, {s(G.sWS,4)}, s{G.sT0} offen offset:{1024*t} {LD}"]]
    k.I(f"s_mul_i32 s{G.sBB}, s{G.sMT}, {36*1024}\ns_add_u32 s{G.sBB}, s{G.sBB}, {WS_X1}")
    bl = []
    for th in range(3):
        for i in range(12):
            pre = []
            if i == 0:
                pre = [f"s_add_u32 s{G.sOB}, s{sK3}, {th}"]
                if th: pre += [f"s_cmp_ge_u32 s{G.sOB}, 3", f"s_cselect_b32 s{G.sT1}, 3, 0", f"s_sub_u32 s{G.sOB}, s{G.sOB}, s{G.sT1}"]
                pre += [f"s_mul_i32 s{G.sOB}, s{G.sOB}, {12*1024}", f"s_add_u32 s{G.sOB}, s{G.sOB}, s{G.sBB}"]
            elif i % 4 == 0: pre = [f"s_add_u32 s{G.sOB}, s{G.sOB}, 4096"]
            bl.append((("b", 12 * th + i), pre + [f"buffer_load_dwordx4 {v(Bf[12*th+i],4)}, {v(vB)}, {s(G.sWS,4)}, s{G.sOB} offen offset:{1024*(i%4)} {LD}"]))
    NB0 = 8
    bl = bl[:18] + stl + bl[18:]
    def stats():
        if True:
            k.I(f"s_waitcnt vmcnt({allowed(['st'])})")
            for c in range(1, 9):
                k.I(f"v_add_f32 {v(st16)}, {v(st16)}, {v(st16+2*c)}\nv_add_f32 {v(st16+1)}, {v(st16+1)}, {v(st16+2*c+1)}")
            m, q2, r = st16, st16 + 1, st16 + 2
            k.I(f"""
            v_mul_f32 {v(m)}, {hx(f2u(-1.0/576))}, {v(m)}
            v_mul_f32 {v(q2)}, {hx(f2u(1.0/576))}, {v(q2)}
            v_fma_f32 {v(q2)}, -{v(m)}, {v(m)}, {v(q2)}
            v_max_f32 {v(q2)}, 0, {v(q2)}
            v_add_f32 {v(q2)}, {hx(f2u(1e-5))}, {v(q2)}
            v_rsq_f32 {v(r)}, {v(q2)}
            v_sqrt_f32 {v(ri)}, {v(q2)}
            v_and_b32 {v(st16+4)}, 0xffff0000, {v(m)}
            v_sub_f32 {v(m)}, {v(m)}, {v(st16+4)}
            v_mul_f32 {v(c1)}, {hx(f2u(GK1))}, {v(r)}
            v_mul_f32 {v(c2)}, {v(r)}, {v(r)}
            v_mul_f32 {v(c2)}, {v(c2)}, {v(r)}
            v_mul_f32 {v(c2)}, {hx(f2u(GK2))}, {v(c2)}
            v_cvt_pk_bf16_f32 {v(Bp)}, {v(st16+4)}, {v(m)}
            v_cvt_pk_bf16_f32 {v(Bp+1)}, {v(st16+4)}, {v(m)}
            v_cvt_pk_bf16_f32 {v(Bp+2)}, {v(st16+4)}, {v(m)}
            v_cvt_pk_bf16_f32 {v(Bp+3)}, {v(st16+4)}, {v(m)}
            """)
    k.I(f"s_mul_i32 s{sHO}, s{G.sMT}, 288\ns_mul_i32 s{G.sT0}, s{G.sCB}, 18\ns_add_u32 s{sHO}, s{sHO}, s{G.sT0}")
    k.I(f"s_lshl_b32 s{sHO}, s{sHO}, 10\ns_add_u32 s{sHO}, s{sHO}, {WS_H}")
    if poll: poll()
    k.I(f"s_waitcnt vmcnt({allowed([0])})\ns_barrier")
    if after_sync: after_sync()
    for tag, g in bl[:NB0]: emit_group(g, tag)
    bl = bl[NB0:]
    if prio is not None: k.I(f"s_setprio {prio}")
    if stamp: stamp(2)
    seq = []
    for q in range(NQ):
        nt = 2 if q < 12 else 1
        for ks in range(12):
            for t in range(nt): seq.append((q, ks, t, nt))
    N = len(seq)
    stage_end = {}
    for n, (q, ks, t, nt) in enumerate(seq): stage_end[q] = n + 1
    lg = []
    def reads(n):
        q, ks, t, nt = seq[n]; th = q % 3
        base = vWa[1] if th == 2 else vWa[0]
        off0 = (th % 2) * W3_SLOT if th < 2 else 0
        for rd in range(2):
            k.I(f"ds_read_b64_tr_b16 {v(Ab[n % R]+2*rd,2)}, {v(base)} offset:{off0 + (4*ks+rd)*nt*256 + t*256}")
            lg.append(n)
    def lgwait(tag):
        last = max(i for i, t in enumerate(lg) if t == tag)
        return min(15, len(lg) - 1 - last)
    def gelu_ops(p):
        a0 = acc[p & 1]; nt = 2 if p < 4 else 1
        ops = []
        if p < 4:
            ops += tile0(G.sT1, p) + [f"s_lshl_b32 s{G.sT1}, s{G.sT1}, 11", f"s_add_u32 s{G.sT1}, s{G.sT1}, s{sHO}"]
        else:
            ops += [f"s_lshl_b32 s{G.sT1}, s{sS1}, 11", f"s_add_u32 s{G.sT1}, s{G.sT1}, s{sHO}"]
        for g in range(4 * nt):
            a = a0 + 4 * g
            ops += [f"v_mul_f32 {v(T+j)}, {v(a+j)}, {v(a+j)}" for j in range(4)]
            ops += [f"v_fma_f32 {v(T+j)}, {v(T+j)}, {v(c2)}, {v(c1)}" for j in range(4)]
            ops += [f"v_mul_f32 {v(T+j)}, {v(T+j)}, {v(a+j)}" for j in range(4)]
            ops += [f"v_exp_f32 {v(T+j)}, {v(T+j)}" for j in range(4)]
            ops += [f"v_fma_f32 {v(T+j)}, {v(T+j)}, {v(ri)}, {v(ri)}" for j in range(4)]
            ops += [f"v_rcp_f32 {v(T+j)}, {v(T+j)}" for j in range(4)]
            ops += [f"v_mul_f32 {v(T+j)}, {v(T+j)}, {v(a+j)}" for j in range(4)]
            d = a0 + 8 * (g // 2) + 2 * (g % 2)
            ops += [f"v_cvt_pk_bf16_f32 {v(d)}, {v(T)}, {v(T+1)}", f"v_cvt_pk_bf16_f32 {v(d+1)}, {v(T+2)}, {v(T+3)}"]
            if g % 2:
                ops += [f"buffer_store_dwordx4 {v(a0+8*(g//2),4)}, {v(vB)}, {s(G.sWS,4)}, s{G.sT1} offen offset:{1024*(g//2)} {ST}"]
        return ops
    def cost(x):
        return 8 if x.startswith(("v_exp", "v_rcp")) else 4
    def emit_fill(x):
        k.I(x)
        if x.startswith("buffer_"): vm.append("store")
    for n in range(RA): reads(n)
    nread = RA
    limit = stage_end[0]
    nxt = 3
    fill = []
    done = -1
    for n, (q, ks, t, nt) in enumerate(seq):
        p, th = divmod(q, 3)
        s0 = stage_end[q] - 12 * nt
        r = n - s0
        NS = 12 * nt
        if r == 0:
            gl = []
            if nxt <= q + 2 and nxt < NQ:
                gl = [(nxt, g) for g in loads(nxt)]; nxt += 1
            if th < nt: gl += [(("cs", p, th), g) for g in cs_loads(p, th)]
            if q == NQ - 1 and tail:
                tpre, tgl = tail(Bf[0])
                for x in tpre: k.I(x)
                bl += [("t", g) for g in tgl]
            span = NS - RA
            where = {}
            for j, g in enumerate(gl): where.setdefault(j * span // len(gl), []).append(g)
            assert all(len(x) == 1 for x in where.values())
            if th == 0 and p > 0:
                assert not fill
                fill = gelu_ops(p - 1)
                fill_total = sum(cost(x) for x in fill); fill_done = 0
                pass_len = 36 * nt
        a = acc[p & 1] + 16 * t
        if n == 30: stats()
        w = []
        if p == 0 and t == 0: w.append(f"vmcnt({allowed([('b', 12*th+ks)])})")
        if done < n:
            tgt = min(n + 1, nread - 1)
            w.append(f"lgkmcnt({lgwait(tgt)})"); done = tgt
        if w: k.I("s_waitcnt " + " ".join(w))
        k.I(f"v_mfma_f32_32x32x16_bf16 {v(a,16)}, {v(Ab[n % R],4)}, {v(Bf[12*th+ks],4)}, {'0' if th == 0 and ks == 0 else v(a,16)}")
        if th == t + 1 and ks == 4:
            k.I(f"s_waitcnt vmcnt({allowed([('cs', p, t)])})")
            k.I(f"v_mfma_f32_32x32x16_bf16 {v(a,16)}, {v(Ap,4)}, {v(Bp,4)}, {v(a,16)}")
        if r == NS - RA + 1 and q < NQ - 1:
            assert nread == limit
            k.I(f"s_waitcnt vmcnt({allowed([q+1])}) lgkmcnt(0)")
            k.I("s_barrier")
            if stamp and q in (2, 8): stamp({2: 3, 8: 4}[q])
            limit = stage_end[q + 1]
            done = nread - 1
            if q == 11:
                k.I(f"v_and_b32 {v(vWo)}, 0x200, {v(vB)}\nv_sub_u32 {v(vWa[0])}, {v(vWa[0])}, {v(vWo)}\nv_sub_u32 {v(vWa[1])}, {v(vWa[1])}, {v(vWo)}")
        gs = where.get(r, [])
        if bl and not gs: gs = [bl.pop(0)]
        for (tag, g) in gs:
            for x in g[:-1]: k.I(x)
        cnt = 0
        while nread < min(n + RA + 1, limit, N) and cnt < 2:
            reads(nread); nread += 1; cnt += 1
        for (tag, g) in gs:
            k.I(g[-1]); vm.append(tag)
        if fill:
            pos = th * NS + r
            if pos >= 2:
                tgt = fill_total * (pos - 1) / (pass_len - 4)
                while fill and fill_done < tgt:
                    x = fill.pop(0); emit_fill(x); fill_done += cost(x)
    assert not fill and not bl
    k.I("s_setprio 3")
    if stamp: stamp(5)
    for x in gelu_ops(4): emit_fill(x)
    return W3_LDS

def standalone(k, sID, kidx):
    k.stamp(0)
    k.I(f"s_load_dwordx2 s[38:39], s[0:1], {KA_W3}\ns_load_dwordx2 s[40:41], s[0:1], {KA_WS}")
    k.I(f"v_lshrrev_b32 v1, 6, v0\nv_readfirstlane_b32 s{G.sWV}, v1")
    ids_b(k, sID)
    k.I("s_waitcnt lgkmcnt(0)")
    srd(k, G.sWS, 40, WS_SIZE)
    lds = emit_w3f(k)
    k.end(kidx)
    return lds
```

```python
from common import *
from gemm import G
import attn, sync, small, w3f, kgemm, phase1
from kgemm import sRB2, sCB2
from phase1 import *
from sync import WS_CNT, C1, C2, C3, CA, CW, CS, CH, CQ
NAME = "gated_mix__mha_block__mixer_s_mlp__prompt_kernel"

def gen(prio="12202", focus=None, noatt=False):
    kidx = 0
    k = Kern(NAME, vlimit=256)
    k.name_short = "f"
    k.I("s_cmp_ge_u32 s2, 512\ns_cbranch_scc1 L_exit")
    k.stamp(0)
    st0 = STAMP[0]
    k.I(f"""
    s_getpc_b64 s[34:35]
    L_pc0:
    s_load_dwordx8 s[60:67], s[0:1], 0
    s_load_dwordx8 s[68:75], s[0:1], 32
    s_load_dwordx4 s[76:79], s[0:1], 64
    s_load_dwordx2 s[80:81], s[0:1], {KA_DBG}
    s_load_dwordx2 s[40:41], s[0:1], {KA_WS}
    s_lshr_b32 s3, s2, 3
    v_lshlrev_b32 v1, 6, v0
    v_add_u32 v1, s3, v1
    v_lshlrev_b32 v1, 7, v1
    v_min_u32 v1, L_exit-L_pc0, v1
    s_mov_b64 exec, 0xffff
    global_load_dword v255, v1, s[34:35]
    s_mov_b64 exec, -1
    v_lshrrev_b32 v1, 6, v0
    v_readfirstlane_b32 s{G.sWV}, v1
    """)
    k.v.hi = 256
    ids1(k)
    k.I(f"s_cmp_ge_u32 s2, 256\ns_cbranch_scc1 L_b")
    STAMP[0] = st0 and focus == "p1"
    k.I(f"s_cmp_eq_u32 s{sROLE}, 3\ns_cbranch_scc1 L_a_side\ns_setprio 2\ns_cmp_eq_u32 s{sROLE}, 2\ns_cbranch_scc1 L_a_v")
    emit_qk(k)
    k.I("s_branch L_a_sig")
    k.L("L_a_v")
    emit_v(k)
    k.L("L_a_sig")
    k.stamp(3)
    k.I(f"s_lshl_b32 s56, s2, 7\ns_add_u32 s56, s56, {WS_CNT + 128*sync.CP}")
    sync.signal(k, 40, G.sWV, 56, 57)
    k.I(f"""
    s_waitcnt vmcnt(0)
    s_barrier
    """)
    k.stamp(4)
    k.I(f"""
    s_cmp_lg_u32 s{G.sWV}, 0
    s_cbranch_scc1 L_a_att
    s_lshl_b32 s56, s{sCB1}, 9
    s_add_u32 s56, s56, {WS_CNT + 128*CQ}
    """)
    for r in range(4):
        k.I(f"s_mov_b32 s{52+r}, 1\ns_atomic_add s{52+r}, s[40:41], s56 glc\ns_add_u32 s56, s56, 128")
    k.I("s_waitcnt lgkmcnt(0)\ns_branch L_a_att")
    k.L("L_a_side")
    emit_side_a(k)
    k.L("L_a_att")
    if focus == "p1": STAMP[0] = False
    else: STAMP[0] = st0
    def a_poll(sWVa):
        k.I(f"""
        s_bfe_u32 s56, s2, 0x20001
        s_lshl_b32 s56, s56, 2
        s_bfe_u32 s57, s2, 0x20003
        s_add_u32 s56, s56, s57
        s_lshl_b32 s56, s56, 7
        s_add_u32 s56, s56, {WS_CNT + 128*CQ}
        """)
        sync.poll(k, 40, sWVa, [(56, 48)], 57)
        k.I("s_barrier")
        if focus == "p1":
            STAMP[0] = st0; k.stamp(5); STAMP[0] = False
    def a_finish(sWVa):
        k.stamp(6)
        if STAMP[0]: k.I("s_mov_b64 s[92:93], s[94:95]")
        kgemm.tile64_ids(k)
        k.I(f"""
        s_cbranch_scc1 L_a_end
        s_mov_b32 s{G.sWV}, s{sWVa}
        s_mov_b64 s[38:39], s[{P_WO}:{P_WO+1}]
        s_setprio {prio[4]}
        """)
        srd(k, G.sWS, 40, WS_SIZE)
        def pl():
            k.I(f"s_lshl_b32 s55, s{sRB2}, 7\ns_add_u32 s56, s55, {WS_CNT + 128*C1}\ns_add_u32 s55, s55, {WS_CNT + 128*CA}")
            sync.poll(k, 40, G.sWV, [(55, 32), (56, 9)], 57)
        kgemm.emit_wok(k, pl)
        k.I(f"s_add_u32 s56, s56, {128*(CW - C1)}\ns_waitcnt vmcnt(0)\ns_barrier")
        sync.signal(k, 40, G.sWV, 56, 57)
        k.L("L_a_end")
        STAMP[0] = st0
        k.end(kidx)
    k.I("s_setprio 3")
    attn.NOATT = noatt
    attn.emit_attn(k, 2, kidx, pfx="ma", prio=int(prio[0]), finish=a_finish, poll=a_poll)
    k.L("L_b")
    STAMP[0] = st0 and focus == "p1"
    sCN = 56
    k.I(f"s_cmp_lg_u32 s{sROLE}, 3\ns_cbranch_scc1 L_b_side\ns_setprio 2")
    emit_w1(k)
    k.stamp(3)
    k.I(f"s_lshl_b32 s{sCN}, s{sRB1}, 7\ns_add_u32 s{sCN}, s{sCN}, {WS_CNT + 128*CH}\ns_waitcnt vmcnt(0)\ns_barrier")
    k.stamp(4)
    sync.signal(k, 40, G.sWV, sCN, 57)
    k.I("s_branch L_b_w2")
    k.L("L_b_side")
    emit_side_b(k)
    k.stamp(4)
    k.L("L_b_w2")
    k.I(f"s_setprio {prio[1]}\ns_mov_b64 s[36:37], s[{P_X}:{P_X+1}]\ns_mov_b64 s[38:39], s[{P_W2}:{P_W2+1}]")
    w3f.ids_b(k, 2)
    kgemm.tile64w2_ids(k)
    k.I("s_cbranch_scc1 L_b_cs")
    def pollh():
        k.I(f"""
        s_lshl_b32 s52, s{sRB2}, 7
        s_add_u32 s53, s52, 128
        s_and_b32 s53, s53, 2047
        s_sub_u32 s54, s52, 128
        s_and_b32 s54, s54, 2047
        s_add_u32 s52, s52, {WS_CNT + 128*CH}
        s_add_u32 s53, s53, {WS_CNT + 128*CH}
        s_add_u32 s54, s54, {WS_CNT + 128*CH}
        """)
        sync.poll(k, 40, G.sWV, [(52, 4), (53, 4), (54, 4)], 57)
        k.stamp(5)
    kgemm.emit_w2k(k, pollh)
    k.I(f"s_lshl_b32 s3, s{sRB2}, 7\ns_add_u32 s3, s3, {WS_CNT + 128*C1}\ns_barrier")
    k.I("s_branch L_b_w3")
    k.L("L_b_cs")
    emit_cs3(k, sCB2)
    k.I(f"s_mov_b32 s3, {WS_CNT + 128*(CS + 4)}")
    k.L("L_b_w3")
    st = st0 and not focus
    k.I(f"s_mov_b64 s[38:39], s[{P_W3}:{P_W3+1}]\ns_setprio 3")
    STAMP[0] = False
    def stw3(i):
        if focus == "w3":
            STAMP[0] = st0; k.stamp(i); STAMP[0] = False
    def st2():
        STAMP[0] = st; k.stamp(2); STAMP[0] = False
        stw3(1)
    def poll1():
        k.I(f"""
        s_lshl_b32 s{sCN}, s{G.sRB}, 7
        s_add_u32 s{sCN}, s{sCN}, {WS_CNT + 128*C1}
        s_and_b32 s59, s2, 3
        s_lshl_b32 s59, s59, 7
        s_add_u32 s59, s59, {WS_CNT + 128*CS}
        """)
        sync.poll(k, 40, G.sWV, [(59, 54), (sCN, 9)], 57)
    def opened(n):
        k.I(f"s_waitcnt vmcnt({n})\ns_barrier")
        sync.signal(k, 40, G.sWV, 3, 57)
        STAMP[0] = st; k.stamp(1); STAMP[0] = st0 and focus == "p1"; k.stamp(6); STAMP[0] = False
    w4 = []
    def tail(base):
        m = k.v.next
        w4.append(kgemm.W4(k, base))
        k.v.next = m
        return w4[0].early(P_W4)
    w3f.emit_w3f(k, poll=poll1, after_sync=st2, prio=prio[2], stamp=stw3, tail=tail, opened=opened)
    STAMP[0] = st
    k.I(f"""
    s_lshl_b32 s{sCN}, s{G.sRB}, 2
    s_add_u32 s{sCN}, s{sCN}, s{G.sSP}
    s_lshl_b32 s{sCN}, s{sCN}, 7
    s_add_u32 s{sCN}, s{sCN}, {WS_CNT + 128*C2}
    s_waitcnt vmcnt(0)
    """)
    stw3(6); STAMP[0] = st
    k.stamp(3)
    def hooks(stg):
        if stg == -1:
            L = k.label("s2")
            k.I(f"s_mov_b32 s59, 3\ns_cmp_lg_u32 s{G.sWV}, 0\ns_cbranch_scc1 {L}\ns_mov_b32 s59, 1\ns_atomic_add s59, s[40:41], s{sCN} glc\n{L}:")
        if stg == 1:
            L = k.label("p2")
            k.I(f"s_cmp_ge_u32 s59, 3\ns_cbranch_scc1 {L}")
            sync.poll(k, 40, G.sWV, [(sCN, 4)], 57)
            k.L(L)
    kgemm.emit_w4k(k, w4[0], hooks, prio[3])
    k.I(f"""
    s_mov_b64 s[36:37], s[{P_OUT}:{P_OUT+1}]
    s_lshl_b32 s{sCN}, s{G.sRB}, 2
    s_and_b32 s{G.sT0}, s{G.sCB}, 3
    s_add_u32 s{sCN}, s{sCN}, s{G.sT0}
    s_lshl_b32 s{sCN}, s{sCN}, 7
    s_add_u32 s{sCN}, s{sCN}, {WS_CNT + 128*C3}
    s_lshl_b32 s59, s{G.sRB}, 7
    s_add_u32 s59, s59, {WS_CNT + 128*CW}
    """)
    def sync_all(vt):
        k.I("s_waitcnt vmcnt(0)\ns_barrier")
        sync.signal_poll(k, 40, G.sWV, sCN, 4, [(59, 9)], 57)
        k.I("s_barrier")
        k.stamp(6)
    small.emit_sum(k, sync_all)
    STAMP[0] = st0
    k.end(kidx)
    k.L("L_exit"); k.I("s_endpgm")
    return k, (NAME, 512, 256, 81920)

if __name__ == "__main__":
    import sys
    STAMP[0] = "nostamp" not in sys.argv
    opt = dict(a.split("=") for a in sys.argv if "=" in a)
    kk, l = gen(opt.get("prio", "12202"), opt.get("focus"), "noatt" in sys.argv)
    hdr = "".join(x for x in open("gated_mix__mha_block__mixer_s_mlp__prompt.s.ref").readlines()[:13])
    open(sys.argv[1], "w").write(build([kk], [l], header=hdr, single=True))
    print(l, "vgprs", kk.v.hi)
```

```python
from common import *
from gemm import G
from p1gemm import P1Gemm
import sync
from sync import WS_CNT
ST = "sc1"
WS_C1P = 0x0BD0000
P_X, P_WQKV, P_WO, P_W1, P_W2, P_W3, P_W4, P_GATE, P_OUT, P_DBG, P_WS = 60, 62, 64, 68, 70, 72, 74, 76, 78, 80, 40
sROLE, sRB1, sCB1 = 42, 43, 44
import os
TLB = os.environ.get('TLB')

def ids1(k):
    k.I(f"""
    s_and_b32 s{sROLE}, s2, 3
    s_bfe_u32 s{G.sT0}, s2, 0x10002
    s_bfe_u32 s{sRB1}, s2, 0x30003
    s_lshl_b32 s{G.sT0}, s{G.sT0}, 3
    s_add_u32 s{sRB1}, s{sRB1}, s{G.sT0}
    s_bfe_u32 s{sCB1}, s2, 0x20006
    """)

def gemm_open(k, w1, swap):
    k.v.next = 1
    g = P1Gemm(k, 1152 if w1 else 3456, swap, w1)
    k.I(f"""
    s_lshl_b32 s{G.sMT}, s{sRB1}, 2
    s_add_u32 s{G.sMT}, s{G.sMT}, s{G.sWV}
    s_lshl_b32 s{G.sT0}, s{sCB1}, 1
    s_add_u32 s{G.sG}, s{sRB1}, s{G.sT0}
    s_add_u32 s{G.sG}, s{G.sG}, s{sROLE}
    s_cmp_ge_u32 s{G.sG}, 18
    s_cselect_b32 s{G.sT0}, 18, 0
    s_sub_u32 s{G.sG}, s{G.sG}, s{G.sT0}
    s_cmp_ge_u32 s{G.sG}, 9
    s_cselect_b32 s{G.sT0}, 9, 0
    s_sub_u32 s{G.sG}, s{G.sG}, s{G.sT0}
    s_mul_i32 s{G.sWB}, s{sCB1}, 288
    """)
    if not w1: k.I(f"s_mul_i32 s{G.sT0}, s{sROLE}, 1152\ns_add_u32 s{G.sWB}, s{G.sWB}, s{G.sT0}")
    g.setup()
    k.I("s_waitcnt lgkmcnt(0)")
    srd(k, G.sX, P_X, S * D * 2)
    srd(k, G.sW, P_W1 if w1 else P_WQKV, D * D * 2 if w1 else D * 3 * D * 2)
    g.pre("xww")
    srd(k, G.sWS, P_WS, WS_SIZE)
    g.setup2()
    g.pre("xw")
    g.vRd = k.v.alloc(2, 2)
    return g

def ready_hooks(k, g, extra, pre_barrier=None):
    def ex(st):
        r = extra(st)
        if st == 3: r = r + [[f"v_mov_b32 {v(g.vRd+1)}, 0", f"global_load_dword {v(g.vRd)}, {v(g.vRd+1)}, s[{P_DBG}:{P_DBG+1}] sc1"]]
        return r
    def pb(st):
        if st == 8:
            L = k.label("rk")
            k.I(f"v_readfirstlane_b32 s57, {v(g.vRd)}\ns_cmp_ge_u32 s57, 16\ns_cbranch_scc1 {L}")
            sync.wait_ready(k, P_DBG, G.sWV, 57, g.vRd)
            k.L(L)
        if pre_barrier: pre_barrier(st)
    return dict(extra=ex, pre_barrier=pb)

def emit_qk(k):
    g = gemm_open(k, False, False)
    vj = k.v.alloc(2, 2); vO1 = k.v.alloc(); vO2 = k.v.alloc(); vO3 = k.v.alloc(); vL = k.v.alloc()
    g.main(first=lambda: k.stamp(1), **ready_hooks(k, g, lambda st: []))
    k.stamp(2)
    acc = g.acc; pk = g.Ab[0]; vT0, vT1 = vj, vj + 1
    sC, sT0, sT1 = G.sC, G.sT0, G.sT1
    k.I(f"""
    v_and_b32 {v(vL)}, 63, v0
    s_cmp_eq_u32 s{sROLE}, 0
    s_cselect_b32 s{sC}, {hx(f2u(QSCALE))}, 1.0
    v_lshlrev_b32 {v(vO1)}, 4, {v(vL)}
    v_and_b32 {v(vO2)}, 31, {v(vL)}
    v_lshlrev_b32 {v(vO2)}, 2, {v(vO2)}
    v_lshrrev_b32 {v(vT0)}, 5, {v(vL)}
    v_mul_u32_u24 {v(vT1)}, {3*8192}, {v(vT0)}
    v_add_u32 {v(vO3)}, {v(vO2)}, {v(vT1)}
    v_lshl_add_u32 {v(vO2)}, {v(vT0)}, 13, {v(vO2)}
    v_cmp_lt_u32 vcc, 31, {v(vL)}
    s_lshl_b32 s{sT0}, s{sCB1}, 9
    s_add_u32 s{sT0}, s{sT0}, s{G.sMT}
    s_lshl_b32 s{sT1}, s{sT0}, 7
    s_lshl_b32 s{sT0}, s{sT0}, 10
    s_lshl_b32 s{G.sG}, s{sROLE}, 21
    s_add_u32 s{sT0}, s{sT0}, s{G.sG}
    s_lshl_b32 s{G.sG}, s{sROLE}, 18
    s_add_u32 s{sT1}, s{sT1}, s{G.sG}
    s_add_u32 s{sT1}, s{sT1}, {WS_QX}
    """)
    Lns = k.label("ns")
    k.I(f"s_cmp_lg_u32 s{sROLE}, 0\ns_cbranch_scc1 {Lns}")
    for w in range(36):
        k.I(f"v_pk_mul_f32 {v(acc+2*w,2)}, {v(acc+2*w,2)}, {s(sC,2)} op_sel_hi:[1,0]")
    k.L(Lns)
    for gi in range(2):
        base = pk + 20 * gi
        M = [base, base + 4, base + 8, base + 12]
        tA, tB, tC, tD = base + 16, base + 17, base + 18, base + 19
        dst = {0: M[0], 1: M[0] + 1, 2: M[0] + 2, 3: M[0] + 3, 4: tA, 5: M[1] + 1, 6: M[1] + 2, 7: M[1] + 3,
               8: tB, 9: tC, 10: M[2], 11: M[2] + 1, 12: M[2] + 2, 13: tD, 14: M[3], 15: M[3] + 1, 16: M[3] + 2, 17: M[3] + 3}
        for w in range(18):
            r = acc + 2 * (18 * gi + w)
            k.I(f"v_cvt_pk_bf16_f32 {v(dst[w])}, {v(r)}, {v(r+1)}")
        k.I(f"v_cndmask_b32 {v(M[1])}, {v(tB)}, {v(tA)}, vcc")
        k.I(f"v_cndmask_b32 {v(M[2]+3)}, {v(tD)}, {v(tB)}, vcc")
        k.I(f"v_cndmask_b32 {v(tA)}, {v(tA)}, {v(tD)}, vcc")
        for i in range(4):
            k.I(f"buffer_store_dwordx4 {v(M[i],4)}, {v(vO1)}, {s(G.sWS,4)}, s{sT0} offen {ST}")
            k.I(f"s_add_u32 s{sT0}, s{sT0}, 65536")
        k.I(f"buffer_store_dword {v(tA)}, {v(vO3)}, {s(G.sWS,4)}, s{sT1} offen {ST}")
        k.I(f"s_add_u32 s{sT1}, s{sT1}, 8192")
        k.I(f"buffer_store_dword {v(tC)}, {v(vO2)}, {s(G.sWS,4)}, s{sT1} offen {ST}")
        k.I(f"s_add_u32 s{sT1}, s{sT1}, {3*8192}")

def emit_v(k):
    g = gemm_open(k, False, True)
    vj = k.v.alloc(2, 2); vO = [k.v.alloc() for _ in range(5)]; tq = [k.v.alloc() for _ in range(3)]; vL = k.v.alloc()
    vT0, vT1 = vj, vj + 1
    sT0, sT1 = G.sT0, G.sT1
    k.I(f"""
    v_and_b32 {v(vL)}, 63, v0
    s_mul_i32 s{sT0}, s{G.sWV}, 1280
    v_lshrrev_b32 {v(tq[2])}, 5, {v(vL)}
    v_mul_u32_u24 {v(tq[2])}, 320, {v(tq[2])}
    v_add_u32 {v(tq[2])}, s{sT0}, {v(tq[2])}
    """)
    for t in range(5):
        k.I(f"""
        v_and_b32 {v(vT0)}, 31, {v(vL)}
        v_add_u32 {v(vT0)}, {32*t}, {v(vT0)}
        v_mul_u32_u24 {v(vT1)}, 3641, {v(vT0)}
        v_lshrrev_b32 {v(vT1)}, 16, {v(vT1)}
        v_mul_u32_u24 {v(vO[t])}, 18, {v(vT1)}
        v_sub_u32 {v(vO[t])}, {v(vT0)}, {v(vO[t])}
        """)
        if t == 4:
            k.I(f"""
            v_cmp_lt_u32 vcc, 143, {v(vT0)}
            v_and_b32 {v(tq[0])}, 7, {v(vT0)}
            v_cndmask_b32 {v(vT1)}, {v(vT1)}, {v(tq[0])}, vcc
            v_bfe_u32 {v(tq[0])}, {v(vT0)}, 3, 1
            v_subrev_u32 {v(tq[1])}, 1, {v(tq[0])}
            v_and_b32 {v(tq[1])}, 0x3f803f80, {v(tq[1])}
            v_add_u32 {v(tq[0])}, 18, {v(tq[0])}
            v_cndmask_b32 {v(vO[t])}, {v(vO[t])}, {v(tq[0])}, vcc
            """)
        k.I(f"""
        v_mul_u32_u24 {v(vT1)}, 5120, {v(vT1)}
        v_lshl_add_u32 {v(vO[t])}, {v(vO[t])}, 4, {v(vT1)}
        v_add_u32 {v(vO[t])}, {v(vO[t])}, {v(tq[2])}
        """)
    g.main(first=lambda: k.stamp(1), **ready_hooks(k, g, lambda st: []))
    k.stamp(2)
    acc = g.acc; pk = g.Ab[0]
    k.I("s_barrier")
    for t in range(5):
        for j in range(8):
            k.I(f"v_cvt_pk_bf16_f32 {v(pk+8*t+j)}, {v(acc+16*t+2*j)}, {v(acc+16*t+2*j+1)}")
        if t == 4:
            for j in range(8):
                k.I(f"v_cndmask_b32 {v(pk+8*t+j)}, {v(pk+8*t+j)}, {v(tq[1])}, vcc")
        k.I(f"ds_write_b128 {v(vO[t])}, {v(pk+8*t,4)}")
        k.I(f"ds_write_b128 {v(vO[t])}, {v(pk+8*t+4,4)} offset:{VT_STEP}")
    k.I(f"""
    s_mul_i32 s{sT0}, s{G.sWV}, {2*5120}
    v_lshlrev_b32 {v(vT0)}, 4, {v(vL)}
    v_add_u32 {v(vT1)}, s{sT0}, {v(vT0)}
    s_lshl_b32 s{sT0}, s{sCB1}, 3
    s_lshl_b32 s{sT1}, s{G.sWV}, 1
    s_add_u32 s{sT0}, s{sT0}, s{sT1}
    s_lshl_b32 s{sT0}, s{sT0}, 4
    s_add_u32 s{sT0}, s{sT0}, s{sRB1}
    s_mul_i32 s{sT0}, s{sT0}, 5120
    s_add_u32 s{sT0}, s{sT0}, {WS_VT}
    s_waitcnt lgkmcnt(0)
    s_barrier
    """)
    for hh in range(2):
        for i in range(5):
            k.I(f"ds_read_b128 {v(pk+20*hh+4*i,4)}, {v(vT1)} offset:{5120*hh+1024*i}")
    for hh in range(2):
        for i in range(5):
            k.I(f"s_waitcnt lgkmcnt({9-5*hh-i})")
            if i == 4: k.I(f"s_add_u32 s{sT0}, s{sT0}, 4096")
            k.I(f"buffer_store_dwordx4 {v(pk+20*hh+4*i,4)}, {v(vT0)}, {s(G.sWS,4)}, s{sT0} offen offset:{1024*(i%4)} {ST}")
        k.I(f"s_add_u32 s{sT0}, s{sT0}, {128*VT_STEP - 4096}")

def emit_w1(k):
    g = gemm_open(k, True, False)
    cp = k.v.alloc(16, 4); cs = k.v.alloc(16, 4); vR = k.v.alloc(2, 2); vK1 = k.v.alloc(2, 2)
    vT0 = k.v.alloc(); vT1 = k.v.alloc(); vO = k.v.alloc(); vA = k.v.alloc(); vL = k.v.alloc()
    sC, sT0, sT1 = G.sC, G.sT0, G.sT1
    def pre_barrier(st):
        if st == 11:
            L = k.label("pa")
            k.I(f"""
            s_mov_b32 s54, 16
            s_mov_b32 s55, 16
            s_cmp_lg_u32 s{G.sWV}, 0
            s_cbranch_scc1 {L}
            s_lshl_b32 s56, s{sRB1}, 7
            s_add_u32 s56, s56, {WS_CNT + 128*sync.CR}
            s_lshl_b32 s59, s{sCB1}, 7
            s_add_u32 s59, s59, {WS_CNT + 128*sync.CC}
            s_mov_b32 s54, 0
            s_mov_b32 s55, 0
            s_atomic_add s54, s[{P_WS}:{P_WS+1}], s56 glc
            s_atomic_add s55, s[{P_WS}:{P_WS+1}], s59 glc
            {L}:
            """)
        if st == 13:
            L = k.label("pb")
            k.I(f"s_min_u32 s54, s54, s55\ns_cmp_ge_u32 s54, 16\ns_cbranch_scc1 {L}")
            sync.poll(k, P_WS, G.sWV, [(56, 16), (59, 16)], 57)
            k.L(L)
    def extra(st):
        if st not in (14, 15, 16): return []
        fl = []
        r = [[f"v_and_b32 {v(vT0)}, 31, v0", f"v_lshlrev_b32 {v(vT0)}, 4, {v(vT0)}", f"s_lshl_b32 s56, s{G.sMT}, 9", f"s_add_u32 s56, s56, {WS_ST1}",
              f"buffer_load_dwordx2 {v(vR,2)}, {v(vT0)}, {s(G.sWS,4)}, s56 offen sc1"]]
        for i in range(16):
            pre = [f"v_lshlrev_b32 {v(vT1)}, 2, v0", f"s_mul_i32 s56, s{sCB1}, {16*576}", f"s_add_u32 s56, s56, {WS_C1P}"] if i == 0 else \
                  [f"s_add_u32 s56, s56, {4*576}"] if i % 4 == 0 else []
            r.append(pre + [f"buffer_load_dword {v(cp+i)}, {v(vT1)}, {s(G.sWS,4)}, s56 offen offset:{576*(i%4)} sc1"])
        return fl + r[6*(st-14):6*(st-13)]
    g.main(first=lambda: k.stamp(1), **ready_hooks(k, g, extra, pre_barrier))
    k.stamp(2)
    acc = g.acc
    csall = g.Ab[0]; tmp = g.scr; pk = g.scr + 16
    CSB = 2 * g.WS_
    k.I("s_waitcnt vmcnt(0)")
    for st_ in (8, 4, 2, 1):
        for i in range(st_): k.I(f"v_add_f32 {v(cp+i)}, {v(cp+i)}, {v(cp+i+st_)}")
    k.I(f"""
    ds_write_b32 {v(vT1)}, {v(cp)} offset:{CSB}
    v_and_b32 {v(vL)}, 63, v0
    v_lshlrev_b32 {v(vO)}, 4, {v(vL)}
    s_mul_i32 s{sT0}, s{G.sMT}, 36
    s_mul_i32 s{sT1}, s{sCB1}, 9
    s_add_u32 s{sT0}, s{sT0}, s{sT1}
    s_lshl_b32 s{sT0}, s{sT0}, 10
    s_add_u32 s{sT0}, s{sT0}, {WS_HS}
    v_mov_b32 {v(vK1)}, {hx(f2u(GK1))}
    s_mov_b32 s{sC}, {hx(f2u(GK2))}
    v_lshrrev_b32 {v(vA)}, 5, {v(vL)}
    v_lshlrev_b32 {v(vA)}, 5, {v(vA)}
    s_waitcnt lgkmcnt(0)
    s_barrier
    """)
    def csr(t, dst):
        for q in range(4 if t < 4 else 2):
            k.I(f"ds_read_b128 {v(dst+4*q,4)}, {v(vA)} offset:{CSB + 128*t + 64*(q//2) + 16*(q%2)}")
    for t in range(5):
        nq = 4 if t < 4 else 2
        if t == 0: csr(0, cs)
        if t + 1 < 5:
            csr(t + 1, csall)
            k.I(f"s_waitcnt lgkmcnt({4 if t + 1 < 4 else 2})")
        else:
            k.I("s_waitcnt lgkmcnt(0)")
        for p in range(2 * nq):
            k.I(f"v_pk_mul_f32 {v(cs+2*p,2)}, {v(cs+2*p,2)}, {v(vR,2)} op_sel:[0,1] op_sel_hi:[1,1]")
        for p in range(2 * nq):
            r = acc + 16 * t + 2 * p
            k.I(f"v_pk_fma_f32 {v(r,2)}, {v(r,2)}, {v(vR,2)}, {v(cs+2*p,2)} op_sel_hi:[1,0,1]")
        p0 = pk + 8 * (t & 1)
        gelu_pairs(k, [(acc + 16 * t + 2 * p, p0 + p) for p in range(2 * nq)], vK1, sC, tmp)
        for e in range(nq // 2):
            k.I(f"buffer_store_dwordx4 {v(p0+4*e,4)}, {v(vO)}, {s(G.sWS,4)}, s{sT0} offen offset:{1024*e} {ST}")
        k.I(f"s_add_u32 s{sT0}, s{sT0}, 2048")
        cs, csall = csall, cs

def emit_rowstats(k, more_loads=None):
    k.v.next = 1
    k.I("s_setprio 3")
    vRow = k.v.alloc(); a0 = k.v.alloc(); a1 = k.v.alloc(); a2 = k.v.alloc(); a3_ = k.v.alloc()
    xs = k.v.alloc(12, 4); gs = k.v.alloc(12, 4); u = k.v.alloc(4, 4); a3 = k.v.alloc(4, 4)
    k.I(f"""
    s_lshl_b32 s{G.sT0}, s{sROLE}, 2
    s_add_u32 s{G.sT0}, s{G.sT0}, s{sCB1}
    s_lshl_b32 s{G.sT0}, s{G.sT0}, 3
    s_lshl_b32 s{G.sT1}, s{sRB1}, 7
    s_add_u32 s{G.sT0}, s{G.sT0}, s{G.sT1}
    v_lshrrev_b32 {v(vRow)}, 5, v0
    v_add_u32 {v(vRow)}, s{G.sT0}, {v(vRow)}
    v_mul_u32_u24 {v(a1)}, 1152, {v(vRow)}
    v_and_b32 {v(u)}, 31, v0
    v_lshlrev_b32 {v(a2)}, 4, {v(u)}
    v_lshlrev_b32 {v(a3_)}, 2, {v(u)}
    v_add_u32 {v(a0)}, {v(a1)}, {v(a2)}
    v_add_u32 {v(a1)}, {v(a1)}, {v(a3_)}
    s_waitcnt lgkmcnt(0)
    """)
    srd(k, G.sX, P_X, S * D * 2); srd(k, G.sW, P_GATE, D * 2); srd(k, G.sWS, P_WS, WS_SIZE)
    k.I(f"""
    buffer_load_dwordx4 {v(xs,4)}, {v(a0)}, {s(G.sX,4)}, 0 offen
    buffer_load_dwordx4 {v(xs+4,4)}, {v(a0)}, {s(G.sX,4)}, 0 offen offset:512
    buffer_load_dword {v(xs+8)}, {v(a1)}, {s(G.sX,4)}, 0 offen offset:1024
    buffer_load_dwordx4 {v(gs,4)}, {v(a2)}, {s(G.sW,4)}, 0 offen
    buffer_load_dwordx4 {v(gs+4,4)}, {v(a2)}, {s(G.sW,4)}, 0 offen offset:512
    buffer_load_dword {v(gs+8)}, {v(a3_)}, {s(G.sW,4)}, 0 offen offset:1024
    """)
    n = more_loads() if more_loads else 0
    if TLB:
        L = k.label("tl")
        k.I(f"s_bfe_u32 s{G.sT0}, s2, 0x50003\ns_cmp_lg_u32 s{G.sT0}, 31\ns_cbranch_scc1 {L}\nv_lshlrev_b32 v100, 18, v0")
        k.I(f"buffer_load_dword v101, v100, {s(G.sWS,4)}, 0 offen")
        for i, (p, nb) in enumerate(((P_W3, D*F*2), (P_W4, D*F*2), (P_WO, D*D*2), (P_W2, D*D*2), (P_OUT, S*D*2))):
            srd(k, 52, p, nb)
            k.I(f"buffer_load_dword v{102+i}, v100, s[52:55], 0 offen")
        k.I("s_waitcnt vmcnt(0)")
        k.L(L)
    k.I(f"v_mov_b32 {v(a3)}, 0\nv_mov_b32 {v(a3+1)}, 0\nv_mov_b32 {v(a3+2)}, 0\ns_waitcnt vmcnt({n})")
    for j in range(9):
        k.I(f"""
        v_lshlrev_b32 {v(u)}, 16, {v(xs+j)}
        v_and_b32 {v(u+1)}, 0xffff0000, {v(xs+j)}
        v_lshlrev_b32 {v(u+2)}, 16, {v(gs+j)}
        v_and_b32 {v(u+3)}, 0xffff0000, {v(gs+j)}
        v_add_f32 {v(a3)}, {v(a3)}, {v(u)}
        v_fmac_f32 {v(a3+1)}, {v(u)}, {v(u)}
        v_fmac_f32 {v(a3+2)}, {v(u)}, {v(u+2)}
        v_add_f32 {v(a3)}, {v(a3)}, {v(u+1)}
        v_fmac_f32 {v(a3+1)}, {v(u+1)}, {v(u+1)}
        v_fmac_f32 {v(a3+2)}, {v(u+1)}, {v(u+3)}
        """)
    for sh in (1, 2, 4, 8):
        for r in range(3):
            k.I(f"v_add_f32_dpp {v(a3+r)}, {v(a3+r)}, {v(a3+r)} row_ror:{sh} row_mask:0xf bank_mask:0xf")
    for r in range(3): k.I(f"v_mov_b32 {v(u+r)}, {v(a3+r)}")
    for r in range(3): k.I(f"v_permlane16_swap_b32 {v(a3+r)}, {v(u+r)}")
    for r in range(3): k.I(f"v_add_f32 {v(a3+r)}, {v(a3+r)}, {v(u+r)}")
    k.I(f"""
    v_mul_f32 {v(a3)}, {hx(f2u(-1.0/576))}, {v(a3)}
    v_mul_f32 {v(a3+1)}, {hx(f2u(1.0/576))}, {v(a3+1)}
    v_mul_f32 {v(a3+2)}, {hx(f2u(-LOG2E))}, {v(a3+2)}
    v_fma_f32 {v(a3+1)}, -{v(a3)}, {v(a3)}, {v(a3+1)}
    v_exp_f32 {v(a3+2)}, {v(a3+2)}
    v_max_f32 {v(a3+1)}, 0, {v(a3+1)}
    v_add_f32 {v(a3+1)}, {hx(f2u(1e-5))}, {v(a3+1)}
    v_add_f32 {v(a3+2)}, 1.0, {v(a3+2)}
    v_rsq_f32 {v(u)}, {v(a3+1)}
    v_rcp_f32 {v(u+2)}, {v(a3+2)}
    v_sub_f32 {v(u+3)}, 0, {v(a3)}
    v_mul_f32 {v(u+1)}, {v(u)}, {v(a3)}
    v_lshlrev_b32 {v(vRow)}, 4, {v(vRow)}
    s_mov_b32 s{G.sT0}, {WS_ST1}
    s_mov_b32 exec_lo, 1
    s_mov_b32 exec_hi, 1
    buffer_store_dwordx4 {v(u,4)}, {v(vRow)}, {s(G.sWS,4)}, s{G.sT0} offen {ST}
    s_mov_b64 exec, -1
    """)

def emit_side_a(k):
    d = 48; vA = 60; vB_ = 61; ac = 64; t = 72
    L = k.label("ni")
    k.I(f"s_cmp_ge_u32 s2, 64\ns_cbranch_scc1 {L}\ns_cmp_lg_u32 s{G.sWV}, 0\ns_cbranch_scc1 {L}\ns_waitcnt lgkmcnt(0)")
    srd(k, G.sWS, P_WS, WS_SIZE)
    k.I(f"""
    v_lshlrev_b32 v60, 4, v0
    v_mov_b32 v64, 0
    v_mov_b32 v65, 0
    v_mov_b32 v66, 0
    v_mov_b32 v67, 0
    s_lshr_b32 s{G.sT0}, s2, 2
    s_lshl_b32 s{G.sT0}, s{G.sT0}, 12
    s_add_u32 s{G.sT0}, s{G.sT0}, {WS_CNT}
    buffer_store_dwordx4 v[64:67], v60, {s(G.sWS,4)}, s{G.sT0} offen sc1
    buffer_store_dwordx4 v[64:67], v60, {s(G.sWS,4)}, s{G.sT0} offen offset:1024 sc1
    buffer_store_dwordx4 v[64:67], v60, {s(G.sWS,4)}, s{G.sT0} offen offset:2048 sc1
    buffer_store_dwordx4 v[64:67], v60, {s(G.sWS,4)}, s{G.sT0} offen offset:3072 sc1
    s_waitcnt vmcnt(0)
    s_mov_b32 s57, 1
    s_atomic_add s57, s[{P_DBG}:{P_DBG+1}], 0 glc
    s_waitcnt lgkmcnt(0)
    """)
    k.L(L)
    def more():
        srd(k, 52, P_W1, D * D * 2)
        k.I(f"""
        v_mul_u32_u24 {v(vA)}, 3641, v0
        v_lshrrev_b32 {v(vA)}, 16, {v(vA)}
        v_mul_u32_u24 {v(vB_)}, {1152 - 288}, {v(vA)}
        v_lshl_add_u32 {v(vB_)}, v0, 4, {v(vB_)}
        v_mov_b32 {v(t)}, {hx(OOB)}
        v_cmp_gt_u32 vcc, 12, {v(vA)}
        v_cndmask_b32 {v(vB_)}, {v(t)}, {v(vB_)}, vcc
        s_mul_i32 s{G.sT0}, s{sRB1}, {36*1152}
        s_mul_i32 s{G.sT1}, s{sCB1}, 288
        s_add_u32 s{G.sT0}, s{G.sT0}, s{G.sT1}
        """)
        for i in range(3):
            k.I(f"buffer_load_dwordx4 {v(d+4*i,4)}, {v(vB_)}, s[52:55], s{G.sT0} offen\ns_add_u32 s{G.sT0}, s{G.sT0}, {12*1152}")
        return 3
    emit_rowstats(k, more)
    k.v.next = 100
    k.I("s_waitcnt vmcnt(1)")
    for i in range(3):
        for j in range(4):
            dst = ac if i == 0 else t
            k.I(f"v_lshlrev_b32 {v(dst+2*j)}, 16, {v(d+4*i+j)}\nv_and_b32 {v(dst+2*j+1)}, 0xffff0000, {v(d+4*i+j)}")
        if i:
            for j in range(8): k.I(f"v_add_f32 {v(ac+j)}, {v(ac+j)}, {v(t+j)}")
    k.I(f"""
    v_lshlrev_b32 {v(vA)}, 5, v0
    ds_write_b128 {v(vA)}, {v(ac,4)}
    ds_write_b128 {v(vA)}, {v(ac+4,4)} offset:16
    v_lshlrev_b32 {v(vA)}, 2, v0
    s_waitcnt lgkmcnt(0)
    s_barrier
    """)
    for i in range(12): k.I(f"ds_read_b32 {v(t+i)}, {v(vA)} offset:{576*i}")
    k.I("s_waitcnt lgkmcnt(0)")
    for i in range(1, 12): k.I(f"v_add_f32 {v(t)}, {v(t)}, {v(t+i)}")
    k.I(f"""
    v_mov_b32 {v(t+1)}, {hx(OOB)}
    v_cmp_gt_u32 vcc, 144, v0
    v_cndmask_b32 {v(vA)}, {v(t+1)}, {v(vA)}, vcc
    s_lshl_b32 s{G.sT0}, s{sCB1}, 4
    s_add_u32 s{G.sT0}, s{G.sT0}, s{sRB1}
    s_mul_i32 s{G.sT0}, s{G.sT0}, 576
    s_add_u32 s{G.sT0}, s{G.sT0}, {WS_C1P}
    buffer_store_dword {v(t)}, {v(vA)}, {s(G.sWS,4)}, s{G.sT0} offen {ST}
    """.replace("v_cmp_gt_u32 vcc, 144,", "v_cmp_gt_u32 vcc, 0x90,"))
    sync.wait_ready(k, P_DBG, G.sWV, 57, 90)
    k.I(f"""
    s_waitcnt vmcnt(0)
    s_barrier
    s_lshl_b32 s56, s{sRB1}, 7
    s_add_u32 s56, s56, {WS_CNT + 128*sync.CR}
    s_lshl_b32 s59, s{sCB1}, 7
    s_add_u32 s59, s59, {WS_CNT + 128*sync.CC}
    """)
    sync.signal(k, P_WS, G.sWV, 56, 57)
    sync.signal(k, P_WS, G.sWV, 59, 57)

def w2touch(k):
    k.I(f"""
    s_bfe_u32 s{G.sT0}, s2, 0x60002
    s_mul_i32 s{G.sT0}, s{G.sT0}, 3
    s_add_u32 s{G.sT0}, s{G.sT0}, s{sROLE}
    s_mul_i32 s{G.sT0}, s{G.sT0}, {27*128}
    v_lshlrev_b32 v60, 7, v0
    """)
    srd(k, 52, P_W2, D * D * 2)
    k.I(f"""
    s_add_u32 s54, s{G.sT0}, {27*128}
    buffer_load_dword v61, v60, s[52:55], s{G.sT0} offen
    """)
    return 1

def emit_cs3(k, sIDX):
    k.v.next = 1
    vT0 = k.v.alloc(); vT1 = k.v.alloc(); vA = k.v.alloc()
    d = k.v.alloc(48, 4); ac = k.v.alloc(16, 4); t = k.v.alloc(8, 2)
    sC, sP = [52, 54], [53, 55]
    Ld = k.label("sd"); Le = k.label("se")
    k.I(f"""
    s_and_b32 s56, s2, 255
    s_lshl_b32 s56, s56, 7
    s_add_u32 s56, s56, {WS_CNT + 128*sync.CP}
    ; jobs q = 2*spare + (0,1) in 0..215: c = q/3, part = q%3
    s_lshl_b32 s59, s{sIDX}, 1
    v_lshrrev_b32 {v(vT0)}, 3, v0
    v_mul_u32_u24 {v(vT0)}, 9216, {v(vT0)}
    v_and_b32 {v(vT1)}, 7, v0
    v_lshl_add_u32 {v(vT0)}, {v(vT1)}, 4, {v(vT0)}
    """)
    srd(k, G.sW, P_W3, D * F * 2)
    sync.poll(k, P_WS, G.sWV, [(56, 2)], 57)
    k.I(f"s_barrier\ns_cmp_ge_u32 s59, 216\ns_cbranch_scc1 {Le}")
    for jb in range(2):
        k.I(f"""
        s_mul_i32 s{sC[jb]}, s59, 21846
        s_lshr_b32 s{sC[jb]}, s{sC[jb]}, 16
        s_mul_i32 s{G.sT0}, s{sC[jb]}, 3
        s_sub_u32 s{sP[jb]}, s59, s{G.sT0}
        s_lshl_b32 s{G.sT0}, s{sC[jb]}, 7
        s_mul_i32 s{G.sT1}, s{sP[jb]}, {192*9216}
        s_add_u32 s{G.sT0}, s{G.sT0}, s{G.sT1}
        s_add_u32 s59, s59, 1
        """)
        for i in range(6):
            k.I(f"buffer_load_dwordx4 {v(d+24*jb+4*i,4)}, {v(vT0)}, {s(G.sW,4)}, s{G.sT0} offen")
            k.I(f"s_add_u32 s{G.sT0}, s{G.sT0}, {32*9216}")
    k.I(f"v_lshlrev_b32 {v(vA)}, 5, v0")
    for jb in range(2):
        for i in range(6):
            k.I(f"s_waitcnt vmcnt({11-6*jb-i})")
            for j in range(4):
                dst = ac + 8 * jb if i == 0 else t
                x = d + 24 * jb + 4 * i + j
                k.I(f"v_lshlrev_b32 {v(dst+2*j)}, 16, {v(x)}\nv_and_b32 {v(dst+2*j+1)}, 0xffff0000, {v(x)}")
            if i:
                for j in range(8): k.I(f"v_add_f32 {v(ac+8*jb+j)}, {v(ac+8*jb+j)}, {v(t+j)}")
        k.I(f"ds_write_b128 {v(vA)}, {v(ac+8*jb,4)} offset:{8192*jb}\nds_write_b128 {v(vA)}, {v(ac+8*jb+4,4)} offset:{8192*jb+16}")
    k.I(f"""
    v_and_b32 {v(vA)}, 63, v0
    v_lshlrev_b32 {v(vA)}, 2, {v(vA)}
    s_lshl_b32 s{G.sT0}, s{G.sWV}, 13
    v_add_u32 {v(vA)}, s{G.sT0}, {v(vA)}
    s_waitcnt lgkmcnt(0)
    s_barrier
    s_cmp_ge_u32 s{G.sWV}, 2
    s_cbranch_scc1 {Ld}
    """)
    for i in range(32): k.I(f"ds_read_b32 {v(d+i)}, {v(vA)} offset:{256*i}")
    k.I(f"""
    s_cmp_eq_u32 s{G.sWV}, 0
    s_cselect_b32 s{sC[0]}, s{sC[0]}, s{sC[1]}
    s_cselect_b32 s{sP[0]}, s{sP[0]}, s{sP[1]}
    s_waitcnt lgkmcnt(0)
    """)
    for st_ in (16, 8, 4, 2, 1):
        for i in range(st_): k.I(f"v_add_f32 {v(d+i)}, {v(d+i)}, {v(d+i+st_)}")
    Lz = k.label("nz")
    k.I(f"""
    v_and_b32 {v(t)}, 0xffff0000, {v(d)}
    v_sub_f32 {v(d)}, {v(d)}, {v(t)}
    v_cvt_pk_bf16_f32 {v(ac)}, {v(t)}, {v(t)}
    v_cvt_pk_bf16_f32 {v(ac+1)}, {v(d)}, {v(d)}
    v_mov_b32 {v(ac+2)}, 0
    v_mov_b32 {v(ac+3)}, 0
    v_and_b32 {v(vT0)}, 0x13, v0
    v_and_b32 {v(vT1)}, 4, v0
    v_lshl_or_b32 {v(vT0)}, {v(vT1)}, 1, {v(vT0)}
    v_bfe_u32 {v(vT1)}, v0, 3, 1
    v_lshl_or_b32 {v(vT0)}, {v(vT1)}, 2, {v(vT0)}
    v_lshlrev_b32 {v(vT0)}, 4, {v(vT0)}
    v_bfe_u32 {v(vT1)}, v0, 5, 1
    v_lshl_add_u32 {v(vT0)}, {v(vT1)}, 10, {v(vT0)}
    s_lshl_b32 s{G.sT0}, s{sC[0]}, 11
    s_add_u32 s{G.sT0}, s{G.sT0}, {WS_CS3}
    s_lshl_b32 s{G.sT1}, s{sP[0]}, 3
    s_cmp_eq_u32 s{sP[0]}, 2
    s_cselect_b32 s{G.sT1}, 512, s{G.sT1}
    s_add_u32 s{G.sT0}, s{G.sT0}, s{G.sT1}
    buffer_store_dwordx2 {v(ac,2)}, {v(vT0)}, {s(G.sWS,4)}, s{G.sT0} offen {ST}
    s_cmp_lg_u32 s{sP[0]}, 2
    s_cbranch_scc1 {Lz}
    buffer_store_dwordx2 {v(ac+2,2)}, {v(vT0)}, {s(G.sWS,4)}, s{G.sT0} offen offset:8 {ST}
    {Lz}:
    s_mul_i32 s56, s{sC[0]}, 3641
    s_lshr_b32 s56, s56, 16
    s_lshl_b32 s56, s56, 7
    s_add_u32 s56, s56, {WS_CNT + 128*sync.CS}
    s_waitcnt vmcnt(0)
    s_mov_b32 s57, 1
    s_atomic_add s57, s[{P_WS}:{P_WS+1}], s56 glc
    s_waitcnt lgkmcnt(0)
    {Ld}:
    s_barrier
    {Le}:
    """)

def emit_side_b(k):
    emit_rowstats(k, lambda: w2touch(k))
    sync.wait_ready(k, P_DBG, G.sWV, 57, 90)
    k.I(f"""
    s_waitcnt vmcnt(0)
    s_barrier
    s_lshl_b32 s56, s{sRB1}, 7
    s_add_u32 s56, s56, {WS_CNT + 128*sync.CR}
    """)
    sync.signal(k, P_WS, G.sWV, 56, 57)
    k.stamp(2)
    k.I(f"s_setprio 0\ns_and_b32 s56, s2, 255\ns_lshl_b32 s56, s56, 7\ns_add_u32 s56, s56, {WS_CNT + 128*sync.CP}")
    sync.poll(k, P_WS, G.sWV, [(56, 1)], 57)
    k.I("s_barrier")
```

```python
from common import *
import sync
ST = "sc1"
NOATT = False
SLOT = 20480
ND = 3
FLAG = ND * SLOT
P_WO, P_W4 = 64, 74

def emit_attn(k, sID, kidx, pfx="at", prio=0, finish=None, poll=None):
    sWS = 4
    sWV, sHD, sQB, sG, sCNT, sT0, sT1, sRETRY, sDS, sRS, sM0 = range(8, 19)
    sB = [19, 20, 21, 22, 23]; sS = [26, 27, 28, 29, 30]
    sO = 31
    sPW, sPO = 44, 52
    k.v.next = 1
    vL = k.v.alloc(); vK = k.v.alloc(); vX = k.v.alloc(); vT0 = k.v.alloc(); vT1 = k.v.alloc()
    aK0 = vK; aX0 = k.v.alloc(); aV0 = k.v.alloc(); aK = k.v.alloc(); aX = k.v.alloc(); aV = k.v.alloc(); vP = k.v.alloc(); vJ = k.v.alloc(); vG = k.v.alloc(2, 2)
    O = k.v.alloc(32, 4)
    Sb = [k.v.alloc(16, 4) for _ in range(2)]
    P = k.v.alloc(8, 4)
    Qm = [k.v.alloc(4, 4) for _ in range(2)]
    Qx = [k.v.alloc(2, 2) for _ in range(2)]
    Km = [k.v.alloc(4, 4) for _ in range(2)]
    Vf = [k.v.alloc(8, 4) for _ in range(2)]
    Kx = [k.v.alloc(2, 2) for _ in range(2)]
    k.I(f"""
    s_mov_b64 s[24:25], s[40:41]
    v_and_b32 {v(vL)}, 63, v0
    v_lshrrev_b32 {v(vT0)}, 6, v0
    s_and_b32 s{sHD}, s{sID}, 7
    v_readfirstlane_b32 s{sWV}, {v(vT0)}
    s_lshl_b32 s{sHD}, s{sHD}, 2
    s_bfe_u32 s{sT0}, s{sID}, 0x20003
    s_add_u32 s{sHD}, s{sHD}, s{sT0}
    s_lshr_b32 s{sQB}, s{sID}, 5
    v_lshlrev_b32 {v(vK)}, 4, {v(vL)}
    v_cmp_gt_u32 vcc, 32, {v(vL)}
    v_lshlrev_b32 {v(vT0)}, 2, {v(vL)}
    v_mov_b32 {v(vT1)}, {hx(OOB)}
    v_cndmask_b32 {v(vX)}, {v(vT1)}, {v(vT0)}, vcc
    v_and_b32 {v(aX0)}, 0x7c, {v(vT0)}
    v_add_u32 {v(aX0)}, {18*1024}, {v(aX0)}
    v_and_b32 {v(aV0)}, 0x13, {v(vL)}
    v_and_b32 {v(vT0)}, 4, {v(vL)}
    v_lshl_or_b32 {v(aV0)}, {v(vT0)}, 1, {v(aV0)}
    v_bfe_u32 {v(vT0)}, {v(vL)}, 3, 1
    v_lshl_or_b32 {v(aV0)}, {v(vT0)}, 2, {v(aV0)}
    v_min_u32 {v(aV0)}, 19, {v(aV0)}
    v_lshrrev_b32 {v(vT0)}, 5, {v(vL)}
    v_mul_u32_u24 {v(vT0)}, 320, {v(vT0)}
    v_lshl_add_u32 {v(aV0)}, {v(aV0)}, 4, {v(vT0)}
    v_add_u32 {v(aV0)}, 8192, {v(aV0)}
    v_lshrrev_b32 {v(vT0)}, 5, {v(vL)}
    v_lshl_add_u32 {v(aX0)}, {v(vT0)}, 10, {v(aX0)}
    s_mul_i32 s{sM0}, s{sWV}, 5120
    """)
    k.I(f"""
    s_lshl_b32 s32, s{sHD}, 16
    s_add_u32 s32, s32, {WS_KM}
    s_mul_i32 s33, s{sHD}, {128*VT_STEP}
    s_add_u32 s33, s33, {WS_VT - 8192}
    s_lshl_b32 s34, s{sHD}, 13
    s_add_u32 s34, s34, {WS_KX}
    """)
    for i in range(5):
        k.I(f"""
        s_add_u32 s{sT0}, s{sM0}, {1024*i}
        s_cmp_lt_u32 s{sT0}, 8192
        s_cselect_b32 s{sB[i]}, s32, s33
        s_movk_i32 s{sS[i]}, {16*VT_STEP}
        s_cselect_b32 s{sS[i]}, 8192, s{sS[i]}
        s_add_u32 s{sB[i]}, s{sB[i]}, s{sT0}
        """)
        if i == 3:
            k.I(f"s_cmp_eq_u32 s{sWV}, 3\ns_cselect_b32 s{sB[i]}, s34, s{sB[i]}\ns_cselect_b32 s{sS[i]}, 1024, s{sS[i]}")
        if i == 4:
            k.I(f"s_cmp_eq_u32 s{sWV}, 3\ns_cselect_b32 s{sB[i]}, 0x4000000, s{sB[i]}\ns_cselect_b32 s{sS[i]}, 0, s{sS[i]}")
    srd(k, sWS, 24, WS_SIZE)
    k.I(f"""
    s_lshr_b32 s32, s{sID}, 3
    s_lshl_b32 s32, s32, 2
    s_add_u32 s32, s32, s{sWV}
    s_and_b32 s33, s{sID}, 3
    s_lshl_b32 s33, s33, 1
    s_bfe_u32 s34, s{sID}, 0x10002
    s_add_u32 s33, s33, s34
    s_mul_i32 s36, s33, 5184
    s_mul_i32 s34, s32, 41
    s_add_u32 s36, s36, s34
    s_lshl_b32 s36, s36, 7
    s_add_u32 s37, s36, {41*128}
    s_min_u32 s37, s37, {D*F*2}
    s_mul_i32 s38, s33, 648
    s_mul_i32 s34, s32, 6
    s_add_u32 s38, s38, s34
    s_lshl_b32 s38, s38, 7
    s_add_u32 s39, s38, {6*128}
    s_min_u32 s39, s39, {D*D*2}
    s_bfe_u32 s35, s{sID}, 0x10005
    s_add_u32 s35, s35, 5
    v_lshlrev_b32 {v(vP)}, 7, {v(vL)}
    """)
    k.I(f"""
    s_lshl_b32 s{sT0}, s{sHD}, 6
    s_lshl_b32 s{sT1}, s{sQB}, 3
    s_add_u32 s{sT0}, s{sT0}, s{sT1}
    s_lshl_b32 s{sT1}, s{sWV}, 1
    s_add_u32 s{sT0}, s{sT0}, s{sT1}
    s_lshl_b32 s33, s{sT0}, 7
    s_add_u32 s33, s33, {WS_QX}
    s_lshl_b32 s32, s{sT0}, 10
    s_mov_b32 s{sRETRY}, 0
    """)
    for i in range(2):
        k.I(f"v_mov_b32 {v(Qx[i]+1)}, 0\nv_mov_b32 {v(Kx[i]+1)}, 0x3f803f80")
    poll(sWV)
    srd(k, sPW, P_W4, 0); srd(k, sPO, P_WO, 0)
    for i in range(2):
        k.I(f"buffer_load_dwordx4 {v(Qm[i],4)}, {v(vK)}, {s(sWS,4)}, s32 offen offset:{1024*i} sc1")
        k.I(f"buffer_load_dword {v(Qx[i])}, {v(vX)}, {s(sWS,4)}, s33 offen offset:{128*i} sc1")
    k.I(f"""
    v_and_b32 {v(vT0)}, 0x1f0, {v(vK)}
    s_lshl_b32 s{sT0}, s{sQB}, 12
    s_lshl_b32 s{sT1}, s{sWV}, 10
    s_add_u32 s{sT0}, s{sT0}, s{sT1}
    s_add_u32 s{sT0}, s{sT0}, {WS_ST1}
    buffer_load_dword {v(vG)}, {v(vT0)}, {s(sWS,4)}, s{sT0} offen offset:8 sc1
    buffer_load_dword {v(vG+1)}, {v(vT0)}, {s(sWS,4)}, s{sT0} offen offset:520 sc1
    """)
    def dma():
        g = []
        for i in range(5):
            g.append([f"s_mul_i32 s{sO}, s{sG}, s{sS[i]}", f"s_add_u32 m0, s{sDS}, {1024*i}", f"s_add_u32 s{sO}, s{sO}, s{sB[i]}",
                      f"buffer_load_dwordx4 {v(vK)}, {s(sWS,4)}, s{sO} offen sc1 lds"])
        adv = [f"s_add_u32 s{sG}, s{sG}, 1", f"s_and_b32 s{sG}, s{sG}, 7", f"s_add_u32 s{sDS}, s{sDS}, {SLOT}",
               f"s_cmp_ge_u32 s{sDS}, {ND*SLOT}", f"s_cselect_b32 s{sDS}, s{sM0}, s{sDS}"]
        return g, adv
    def next_addr():
        return [f"v_add_u32 {v(aK)}, s{sRS}, {v(aK0)}", f"v_add_u32 {v(aX)}, s{sRS}, {v(aX0)}"]
    def next_addr_v():
        return [f"v_add_u32 {v(aV)}, s{sRS}, {v(aV0)}", f"s_add_u32 s{sRS}, s{sRS}, {SLOT}", f"s_cmp_eq_u32 s{sRS}, {ND*SLOT}", f"s_cselect_b32 s{sRS}, 0, s{sRS}"]
    def rdK(t): return [f"ds_read_b128 {v(Km[t&1],4)}, {v(aK)} offset:{1024*(t%8)}", f"ds_read_b32 {v(Kx[t&1])}, {v(aX)} offset:{128*(t%8)}"]
    def rdV(t): return [f"ds_read_b128 {v(Vf[t&1]+4*e,4)}, {v(aV)} offset:{(2*(t%8)+e)*VT_STEP}" for e in range(2)]
    Lmain = f"L_{pfx}_main"; Lloop = f"L_{pfx}_loop"; Lfb = f"L_{pfx}_fb"; Ldone = f"L_{pfx}_done"
    k.L(Lmain)
    k.I(f"s_mov_b32 s{sG}, s{sQB}\ns_mov_b32 s{sDS}, s{sM0}\ns_mov_b32 s{sRS}, 0")
    for st in range(2):
        g, adv = dma()
        for x in sum(g, []) + adv: k.I(x)
    k.I(f"""
    s_cmp_lg_u32 s{sWV}, 3
    s_cbranch_scc1 L_{pfx}_nf2
    s_lshl_b32 s{sT0}, s{sID}, 7
    s_add_u32 s{sT0}, s{sT0}, {sync.WS_CNT + 128*sync.CP}
    s_mov_b32 s{sT1}, 2
    s_atomic_add s{sT1}, s[24:25], s{sT0} glc
    s_waitcnt lgkmcnt(0)
    L_{pfx}_nf2:
    """)
    if NOATT: k.I(f"s_branch {Ldone}")
    for r in range(32): k.I(f"v_mov_b32 {v(O+r)}, 0")
    for r in range(4):
        k.I(f"v_mov_b32 {v(P+4+r)}, 0\nv_mov_b32 {v(Vf[1]+4+r)}, 0")
    k.I(f"v_mov_b32 {v(vT0)}, {FLAG}\nv_mov_b32 {v(vT1)}, 0\nds_write_b32 {v(vT0)}, {v(vT1)}")
    for x in next_addr() + next_addr_v(): k.I(x)
    def S1(sb, b, i): return f"v_mfma_f32_32x32x16_bf16 {v(Sb[sb],16)}, {v(Km[b],4)}, {v(Qm[i],4)}, 0"
    def S2(sb, b, i): return f"v_mfma_f32_32x32x8_bf16 {v(Sb[sb],16)}, {v(Kx[b],2)}, {v(Qx[i],2)}, {v(Sb[sb],16)}"
    def PV(half, b, i): return f"v_mfma_f32_32x32x16_bf16 {v(O+16*i,16)}, {v(Vf[b]+4*half,4)}, {v(P+4*half,4)}, {v(O+16*i,16)}"
    def grp(sb, g):
        r = Sb[sb] + 4 * g
        return [f"v_exp_f32 {v(r+j)}, {v(r+j)}" for j in range(4)] + \
               [f"v_cvt_pk_bf16_f32 {v(P+2*g)}, {v(r)}, {v(r+1)}", f"v_cvt_pk_bf16_f32 {v(P+2*g+1)}, {v(r+2)}, {v(r+3)}"]
    k.I("s_waitcnt vmcnt(5) lgkmcnt(0)\ns_barrier")
    k.stamp(1)
    for x in rdK(0) + rdV(0): k.I(x)
    k.I(f"s_mov_b32 s{sCNT}, 8\ns_waitcnt lgkmcnt(2)")
    k.I(S1(0, 0, 0)); k.I(S2(0, 0, 0))
    k.I(f"s_setprio {prio}\ns_nop 7")
    k.I(".p2align 3")
    k.L(Lloop)
    g, adv = dma()
    touch = [[f"s_cmp_eq_u32 s{sCNT}, s35", f"s_cselect_b32 s{sPW+2}, s37, 0", f"s_cselect_b32 s{sPO+2}, s39, 0",
              f"buffer_load_dword {v(vJ)}, {v(vP)}, {s(sPW,4)}, s36 offen ; junk"],
             [f"buffer_load_dword {v(vJ)}, {v(vP)}, {s(sPO,4)}, s38 offen ; junk"]]
    pend = g + touch
    for t in range(8):
        for i in range(2):
            sb = i
            nb, ni = (t & 1, 1) if i == 0 else ((t + 1) & 1, 0)
            pb, pi = (t & 1, 0) if i == 1 else ((t - 1) & 1, 1)
            extra = [[], [], [], []]
            if i == 0:
                if t == 7:
                    extra[0] = next_addr() + ["s_waitcnt vmcnt(7) lgkmcnt(0)", "s_barrier"]
                extra[0] = extra[0] + rdK(t + 1)
                if pend and t < 7: extra[1] = ["s_setprio 3"] + pend.pop(0) + [f"s_setprio {prio}"]
            else:
                k.I("s_waitcnt lgkmcnt(0)")
                if t == 7: extra[0] = next_addr_v()
                extra[0] = extra[0] + rdV(t + 1)
                if t == 6: extra[2] = adv
                if t == 7: extra[3] = [f"s_sub_u32 s{sCNT}, s{sCNT}, 1", f"s_cmp_lg_u32 s{sCNT}, 0"]
            ms = [S1(sb ^ 1, nb, ni), PV(1, pb, pi), S2(sb ^ 1, nb, ni), PV(0, t & 1, i)]
            for gi in range(4):
                if i == 0 and gi == 3 and t != 7: k.I("s_waitcnt lgkmcnt(2)")
                k.I(ms[gi])
                for x in extra[gi]: k.I(x)
                for x in grp(sb, gi): k.I(x)
    assert not pend
    k.I(f"s_cbranch_scc1 {Lloop}")
    k.I(PV(1, 1, 1))
    k.I("s_setprio 3")
    k.stamp(2)
    k.I(f"""
    s_lshl_b32 s{sT0}, s{sQB}, 3
    s_lshl_b32 s{sT1}, s{sWV}, 1
    s_add_u32 s{sT0}, s{sT0}, s{sT1}
    s_mul_i32 s{sT0}, s{sT0}, 36
    s_add_u32 s{sT1}, s{sT0}, 32
    s_lshl_b32 s{sT1}, s{sT1}, 10
    s_lshl_b32 s{sO}, s{sHD}, 7
    s_add_u32 s{sT1}, s{sT1}, s{sO}
    s_add_u32 s{sT1}, s{sT1}, {WS_O}
    s_add_u32 s{sT0}, s{sT0}, s{sHD}
    s_lshl_b32 s{sT0}, s{sT0}, 10
    s_add_u32 s{sT0}, s{sT0}, {WS_O}
    s_mov_b64 s[48:49], 0
    s_mov_b32 s32, {hx(f2u(2.0**-32))}
    s_mov_b32 s33, {hx(f2u(2.0**64))}
    s_mov_b32 s34, 0x207
    s_waitcnt lgkmcnt(0)
    """)
    for i in range(2):
        M = O + 16 * i; vLs = Sb[1] + 4 * i; vR = vLs + 2; pk = Vf[i]
        k.I(f"""
        v_mov_b32 {v(vLs)}, {v(M+10)}
        v_mov_b32 {v(vLs+1)}, {v(M+10)}
        v_permlane32_swap_b32 {v(vLs)}, {v(vLs+1)}
        v_rcp_f32 {v(vR)}, {v(vLs)}
        v_cmp_nle_f32 vcc, s32, {v(vLs)}
        s_or_b64 s[48:49], s[48:49], vcc
        v_cmp_nge_f32 vcc, s33, {v(vLs)}
        s_or_b64 s[48:49], s[48:49], vcc
        """)
        k.I(f"v_mul_f32 {v(vR)}, {v(vR)}, {v(vG+i)}")
        for p in range(10): k.I(f"v_mul_f32 {v(M+p)}, {v(M+p)}, {v(vR)}")
        for p in range(5): k.I(f"v_cvt_pk_bf16_f32 {v(pk+p)}, {v(M+2*p)}, {v(M+2*p+1)}")
        k.I(f"buffer_store_dwordx4 {v(pk,4)}, {v(vK)}, {s(sWS,4)}, s{sT0} offen {ST}")
        k.I(f"buffer_store_dword {v(pk+4)}, {v(vX)}, {s(sWS,4)}, s{sT1} offen {ST}")
        if i == 0: k.I(f"s_add_u32 s{sT0}, s{sT0}, {36*1024}\ns_add_u32 s{sT1}, s{sT1}, {36*1024}")
    t_ = Sb[1] + 8
    k.I(f"v_sub_f32 {v(t_)}, {v(O)}, {v(O)}")
    for r in list(range(1, 10)) + list(range(16, 26)):
        k.I(f"v_fma_f32 {v(t_)}, {v(O+r)}, 0, {v(t_)}")
    Lnf = f"L_{pfx}_nf"
    k.I(f"""
    v_cmp_class_f32 vcc, {v(t_)}, s34
    s_or_b64 s[48:49], s[48:49], vcc
    v_mov_b32 {v(vT0)}, {FLAG}
    s_cmp_lg_u32 s{sRETRY}, 0
    s_cbranch_scc1 {Lnf}
    s_cmp_eq_u64 s[48:49], 0
    s_cbranch_scc1 {Lnf}
    v_mov_b32 {v(vT1)}, 1
    ds_write_b32 {v(vT0)}, {v(vT1)}
    {Lnf}:
    s_waitcnt vmcnt(0) lgkmcnt(0)
    s_barrier
    ds_read_b32 {v(vT1)}, {v(vT0)}
    s_waitcnt lgkmcnt(0)
    v_readfirstlane_b32 s{sT0}, {v(vT1)}
    s_cmp_eq_u32 s{sT0}, 0
    s_cbranch_scc1 {Ldone}
    """)
    mx = O
    k.I(f"""
    s_mov_b32 s{sRETRY}, 1
    s_mov_b32 s{sCNT}, 64
    s_lshl_b32 s32, s{sHD}, 16
    s_add_u32 s32, s32, {WS_KM}
    s_lshl_b32 s33, s{sHD}, 13
    s_add_u32 s33, s33, {WS_KX}
    v_mov_b32 {v(mx)}, 0xff800000
    v_mov_b32 {v(mx+1)}, 0xff800000
    s_barrier
    """)
    Lm = f"L_{pfx}_mx"
    k.L(Lm)
    k.I(f"""
    buffer_load_dwordx4 {v(Km[0],4)}, {v(vK)}, {s(sWS,4)}, s32 offen sc1
    buffer_load_dword {v(Kx[0])}, {v(vX)}, {s(sWS,4)}, s33 offen sc1
    s_add_u32 s32, s32, 1024
    s_add_u32 s33, s33, 128
    s_waitcnt vmcnt(0)
    """)
    for i in range(2):
        k.I(S1(0, 0, i)); k.I(S2(0, 0, i))
        for j in range(8):
            k.I(f"v_max3_f32 {v(mx+i)}, {v(Sb[0]+2*j)}, {v(Sb[0]+2*j+1)}, {v(mx+i)}")
    k.I(f"s_sub_u32 s{sCNT}, s{sCNT}, 1\ns_cmp_lg_u32 s{sCNT}, 0\ns_cbranch_scc1 {Lm}")
    k.I(f"v_cmp_gt_u32 vcc, 32, {v(vL)}")
    for i in range(2):
        a0, a1, a2 = Sb[0], Sb[0] + 1, Sb[0] + 2
        k.I(f"""
        v_mov_b32 {v(a0)}, {v(mx+i)}
        v_permlane32_swap_b32 {v(a0)}, {v(mx+i)}
        v_max_f32 {v(mx+i)}, {v(mx+i)}, {v(a0)}
        v_sub_f32 {v(mx+i)}, 0, {v(mx+i)}
        v_and_b32 {v(a0)}, 0xffff0000, {v(mx+i)}
        v_sub_f32 {v(mx+i)}, {v(mx+i)}, {v(a0)}
        v_and_b32 {v(a1)}, 0xffff0000, {v(mx+i)}
        v_sub_f32 {v(mx+i)}, {v(mx+i)}, {v(a1)}
        v_lshrrev_b32 {v(a0)}, 16, {v(a0)}
        v_or_b32 {v(a0)}, {v(a0)}, {v(a1)}
        v_lshrrev_b32 {v(a2)}, 16, {v(mx+i)}
        v_cndmask_b32 {v(Qx[i]+1)}, {v(a2)}, {v(a0)}, vcc
        """)
    k.I(f"s_branch {Lmain}")
    k.L(Ldone)
    if NOATT: k.I("s_waitcnt vmcnt(0)\ns_barrier")
    k.I(f"""
    s_cmp_lg_u32 s{sWV}, 0
    s_cbranch_scc1 L_{pfx}_sg
    s_lshl_b32 s{sT0}, s{sQB}, 8
    s_add_u32 s{sT0}, s{sT0}, {sync.WS_CNT + 128*sync.CA}
    s_add_u32 s{sT1}, s{sT0}, 128
    s_mov_b32 s26, 1
    s_mov_b32 s27, 1
    s_atomic_add s26, s[24:25], s{sT0} glc
    s_atomic_add s27, s[24:25], s{sT1} glc
    s_waitcnt lgkmcnt(0)
    L_{pfx}_sg:
    """)
    finish(sWV)
```

```python
from common import *
from gemm import G
ST = "sc1"
LD = "sc1"

class KGemm:
    def __init__(self, k, NT, half_last, NST, ND, wo=False, RA=5, ld=1152, xsrc=False, swap=False, perm=True, NDB=None, hs=False, low=None, fold=False):
        self.k, self.NT, self.half, self.NST, self.ND, self.wo, self.RA = k, NT, half_last, NST, ND, wo, RA
        self.SLOT = 4 * NT * 1024
        self.NDB = NDB or ND
        self.ld, self.xsrc, self.swap, self.perm = ld, xsrc, swap, perm
        self.vB = k.v.alloc()
        self.hs = hs
        self.vH = [k.v.alloc() for _ in range(4)] if hs else None
        self.vR = k.v.alloc() if wo else None
        self.vWo = k.v.alloc(); self.vWx = k.v.alloc() if (half_last or wo) else None
        self.fold = fold
        self.vF = [k.v.alloc() for _ in range(5)] if fold else None
        self.nbase = (ND * self.SLOT + 40959) // 40960
        self.vWa = [k.v.alloc() for _ in range(self.nbase)]
        self.tmp = k.v.alloc(4, 4) if low else None
        if low: k.v.next = low
        self.acc = k.v.alloc(16 * NT, 4)
        if low: k.v.next = self.tmp + 4
        else: self.tmp = self.acc
        self.R = RA + 1
        self.Ab = [k.v.alloc(4, 4) for _ in range(self.R)]
        self.Bf = [[k.v.alloc(4, 4) for ks in range(4)] for d in range(self.NDB)]
        self.vm = []
        self.sGB = 35 if low else 49
        self.nw = self.nb = 0
        self.NROT = NST - 1 if wo else NST - 3 if fold else NST
    def allowed(self, tags):
        last = max(i for i, t in enumerate(self.vm) if t in tags)
        return len(self.vm) - 1 - last
    def setup(self):
        k = self.k
        vL, t0, t1 = self.tmp, self.tmp + 1, self.tmp + 2
        k.I(f"""
        v_and_b32 {v(vL)}, 63, v0
        v_and_b32 {v(t1)}, 3, v0
        s_mov_b32 s{self.sGB}, s{G.sG}
        s_mul_i32 s{G.sM0}, s{G.sWV}, {self.NT*1024}
        """)
        if self.xsrc:
            k.I(f"""
            v_and_b32 {v(t0)}, 31, v0
            s_lshl_b32 s{G.sT0}, s{G.sMT}, 5
            v_add_u32 {v(t0)}, s{G.sT0}, {v(t0)}
            v_mul_u32_u24 {v(self.vB)}, 1152, {v(t0)}
            v_lshrrev_b32 {v(t0)}, 5, {v(vL)}
            v_lshl_add_u32 {v(self.vB)}, {v(t0)}, 4, {v(self.vB)}
            """)
        else:
            k.I(f"v_lshlrev_b32 {v(self.vB)}, 4, {v(vL)}")
        if self.hs:
            t2 = self.tmp + 3
            k.I(f"s_lshl_b32 s{G.sT0}, s{G.sMT}, 5\nv_and_b32 {v(t0)}, 31, v0\nv_add_u32 {v(t0)}, s{G.sT0}, {v(t0)}\ns_movk_i32 s{G.sT1}, 2048")
            for ks, sh in enumerate((1, -1, 2, -2)):
                d = self.vH[ks]
                k.I(f"""
                v_add_u32 {v(d)}, {-sh}, {v(t0)}
                v_cmp_gt_u32 vcc, s{G.sT1}, {v(d)}
                v_lshrrev_b32 {v(t2)}, 5, {v(d)}
                v_mul_u32_u24 {v(t2)}, {36*1024}, {v(t2)}
                v_and_b32 {v(d)}, 31, {v(d)}
                v_lshl_add_u32 {v(d)}, {v(d)}, 4, {v(t2)}
                v_and_b32 {v(t2)}, 0x200, {v(self.vB)}
                v_add3_u32 {v(d)}, {v(d)}, {v(t2)}, s{G.sC+ks if False else 0}
                """.replace(f"v_add3_u32 {v(d)}, {v(d)}, {v(t2)}, s0", f"v_add_u32 {v(d)}, {v(d)}, {v(t2)}\nv_add_u32 {v(d)}, {9*1024*ks}, {v(d)}\nv_mov_b32 {v(t2)}, {hx(OOB)}\nv_cndmask_b32 {v(d)}, {v(t2)}, {v(d)}, vcc"))
            k.I(f"v_lshrrev_b32 {v(t0)}, 2, {v(vL)}\ns_mul_i32 s{G.sT0}, s{G.sWV}, 144\nv_add_u32 {v(t0)}, s{G.sT0}, {v(t0)}")
        elif not self.wo:
            k.I(f"v_lshrrev_b32 {v(t0)}, 2, v0")
        else:
            k.I(f"v_lshrrev_b32 {v(t0)}, 2, {v(vL)}\ns_mul_i32 s{G.sT0}, s{G.sWV}, 18\nv_add_u32 {v(t0)}, s{G.sT0}, {v(t0)}")
        k.I(f"v_mul_u32_u24 {v(t0)}, {self.ld}, {v(t0)}\nv_lshl_add_u32 {v(self.vWo)}, {v(t1)}, 4, {v(t0)}")
        if self.half:
            k.I(f"v_cmp_gt_u32 vcc, 2, {v(t1)}\nv_mov_b32 {v(t0)}, {hx(OOB)}\nv_cndmask_b32 {v(self.vWx)}, {v(t0)}, {v(self.vWo)}, vcc")
        if self.wo:
            k.I(f"""
            v_lshrrev_b32 {v(t0)}, 2, {v(vL)}
            v_lshrrev_b32 {v(self.vWx)}, 3, {v(vL)}
            v_lshl_add_u32 {v(t0)}, {v(self.vWx)}, 4, {v(t0)}
            s_mul_i32 s{G.sT0}, s{G.sWV}, 144
            s_add_u32 s{G.sT0}, s{G.sT0}, 16
            v_add_u32 {v(t0)}, s{G.sT0}, {v(t0)}
            v_mul_u32_u24 {v(t0)}, 1152, {v(t0)}
            v_lshl_add_u32 {v(self.vWx)}, {v(t1)}, 4, {v(t0)}
            v_and_b32 {v(t0)}, 31, v0
            v_and_b32 {v(self.vR)}, 0x200, {v(self.vB)}
            v_lshl_add_u32 {v(self.vR)}, {v(t0)}, 2, {v(self.vR)}
            """)
    def setup2(self):
        k = self.k
        vL, t0, t1 = self.tmp, self.tmp + 1, self.tmp + 2
        tr_lane_addr(k, self.vWa[0], vL, t0, t1, 512, perm=self.perm)
        for b in range(1, self.nbase): k.I(f"v_add_u32 {v(self.vWa[b])}, {40960*b}, {v(self.vWa[0])}")
    def setup_fold(self):
        vL, t0, t1, t2 = self.tmp, self.tmp + 1, self.tmp + 2, self.tmp + 3
        F_ = self.vF
        return f"""
        v_and_b32 {v(vL)}, 63, v0
        v_and_b32 {v(t1)}, 3, v0
        v_cmp_gt_u32 vcc, 2, {v(t1)}
        v_lshrrev_b32 {v(t0)}, 2, {v(vL)}
        s_mul_i32 s{G.sT0}, s{G.sWV}, 18
        v_add_u32 {v(t2)}, s{G.sT0}, {v(t0)}
        v_mul_u32_u24 {v(t2)}, 1152, {v(t2)}
        v_lshl_add_u32 {v(F_[0])}, {v(t1)}, 4, {v(t2)}
        v_lshrrev_b32 {v(t2)}, 3, {v(vL)}
        v_lshl_add_u32 {v(t0)}, {v(t2)}, 4, {v(t0)}
        v_add_u32 {v(t0)}, 16, {v(t0)}
        v_mul_u32_u24 {v(t0)}, 1152, {v(t0)}
        v_lshl_add_u32 {v(F_[2])}, {v(t1)}, 4, {v(t0)}
        v_mov_b32 {v(t2)}, {hx(OOB)}
        v_cndmask_b32 {v(F_[1])}, {v(t2)}, {v(F_[0])}, vcc
        v_cndmask_b32 {v(F_[3])}, {v(t2)}, {v(F_[2])}, vcc
        v_cmp_gt_u32 vcc, 64, v0
        v_cndmask_b32 {v(F_[2])}, {v(t2)}, {v(F_[2])}, vcc
        v_cndmask_b32 {v(F_[3])}, {v(t2)}, {v(F_[3])}, vcc
        v_and_b32 {v(t0)}, 31, v0
        v_and_b32 {v(F_[4])}, 0x200, {v(self.vB)}
        v_lshl_add_u32 {v(F_[4])}, {v(t0)}, 2, {v(F_[4])}
        s_mul_i32 s52, s{G.sSP}, {144*1152}
        s_mul_i32 s{G.sT0}, s50, 288
        s_add_u32 s52, s52, s{G.sT0}
        s_add_u32 s53, s52, {72*1152}
        s_mul_i32 s54, s{G.sMT}, {36*1024}
        s_add_u32 s54, s54, {WS_O}
        s_lshl_b32 s{G.sT0}, s{G.sSP}, 10
        s_add_u32 s55, s54, s{G.sT0}
        s_add_u32 s55, s55, 32768
        s_lshl_b32 s{G.sT0}, s{G.sSP}, 13
        s_add_u32 s54, s54, s{G.sT0}
        s_add_u32 s51, s54, 4096
        """
    def nks(self, st): return 1 if (self.fold and st == self.NST - 1) else 4
    def rot(self, sg): return [f"s_add_u32 s{sg}, s{sg}, 1", f"s_cmp_eq_u32 s{sg}, {self.NROT}", f"s_cselect_b32 s{sg}, 0, s{sg}"]
    def wloads(self, st):
        g = []
        if self.fold and st >= self.NROT:
            e = st - self.NROT
            for i in range(self.NT):
                vo = self.vF[(2 if e == 2 else 0) + (1 if i == self.NT - 1 else 0)]
                g.append([f"s_add_u32 m0, s{G.sM0}, {(st % self.ND)*self.SLOT + i*960}",
                          f"buffer_load_dwordx4 {v(vo)}, {s(G.sX,4)}, s{53 if e == 1 else 52} offen offset:{64*i} lds"])
            return g
        rem = self.wo and st == self.NST - 1
        for i in range(self.NT):
            pre = []
            if i == 0 and not rem:
                pre = [f"s_mul_i32 s{G.sOW}, s{G.sG}, {(72 if self.wo else 16 if self.hs else 64)*self.ld}", f"s_add_u32 s{G.sOW}, s{G.sOW}, s{G.sWB}"] + self.rot(G.sG)
            vo = self.vWx if (rem or (self.half and i == self.NT - 1)) else self.vWo
            g.append(pre + [f"s_add_u32 m0, s{G.sM0}, {(st % self.ND)*self.SLOT + i*960}",
                            f"buffer_load_dwordx4 {v(vo)}, {s(G.sW,4)}, s{G.sWB if rem else G.sOW} offen offset:{64*i} lds"])
        return g
    def bloads(self, st):
        g = []
        if self.fold and st >= self.NROT:
            e = st - self.NROT
            for j in range(4):
                if e < 2: g.append([f"buffer_load_dwordx4 {v(self.Bf[st % self.NDB][j],4)}, {v(self.vB)}, {s(G.sWS,4)}, s{51 if e else 54} offen offset:{1024*j} {LD}"])
                else: g.append([f"buffer_load_dword {v(self.Bf[st % self.NDB][0]+j)}, {v(self.vF[4])}, {s(G.sWS,4)}, s55 offen offset:{128*j} {LD}"])
            return g
        rem = self.wo and st == self.NST - 1
        for ks in range(4):
            pre = []
            if self.xsrc:
                if ks == 0: pre = [f"s_lshl_b32 s{G.sOB}, s{self.sGB}, 7"] + self.rot(self.sGB)
                g.append(pre + [f"buffer_load_dwordx4 {v(self.Bf[st % self.NDB][ks],4)}, {v(self.vB)}, {s(G.sX,4)}, s{G.sOB} offen offset:{32*ks}"])
                continue
            if self.hs:
                if ks == 0: pre = [f"s_lshl_b32 s{G.sOB}, s{self.sGB}, 10", f"s_add_u32 s{G.sOB}, s{G.sOB}, {WS_HS}"] + self.rot(self.sGB)
                g.append(pre + [f"buffer_load_dwordx4 {v(self.Bf[st % self.NDB][ks],4)}, {v(self.vH[ks])}, {s(G.sWS,4)}, s{G.sOB} offen {LD}"])
                continue
            if rem:
                for jj in range(4):
                    pre = [f"s_add_u32 s{G.sOB}, s{G.sBB}, 32768"] if ks == 0 and jj == 0 else []
                    g.append(pre + [f"buffer_load_dword {v(self.Bf[st % self.NDB][ks]+jj)}, {v(self.vR)}, {s(G.sWS,4)}, s{G.sOB} offen offset:{1024*ks+128*jj} {LD}"])
                continue
            if ks == 0:
                pre = [f"s_add_u32 s{G.sOB}, s{G.sBB}, 32768"] if rem else \
                      [f"s_lshl_b32 s{G.sOB}, s{self.sGB}, 12", f"s_add_u32 s{G.sOB}, s{G.sOB}, s{G.sBB}"] + self.rot(self.sGB)
            g.append(pre + [f"buffer_load_dwordx4 {v(self.Bf[st % self.NDB][ks],4)}, {v(self.vB)}, {s(G.sWS,4)}, s{G.sOB} offen offset:{1024*ks} {LD}"])
        return g
    def pre_w(self, n):
        for _ in range(n):
            for g in self.wloads(self.nw):
                for x in g: self.k.I(x)
                self.vm.append(self.nw)
            self.nw += 1
    def pre_b(self, n):
        for _ in range(n):
            for g in self.bloads(self.nb):
                for x in g: self.k.I(x)
                self.vm.append(self.nb)
            self.nb += 1
    def main(self, first=None, extra=None, pre_barrier=None, post_barrier=None, early=None):
        k, NT, NST, ND, RA, R = self.k, self.NT, self.NST, self.ND, self.RA, self.R
        NS = 4 * NT
        lg = []
        def reads(n):
            st, r = divmod(n, NS); ks, t = divmod(r, NT)
            off = (st % ND) * self.SLOT
            b = off // 40960
            for rd in range(2):
                k.I(f"ds_read_b64_tr_b16 {v(self.Ab[n % R]+2*rd,2)}, {v(self.vWa[b])} offset:{off - 40960*b + ks*NT*1024 + t*1024 + rd*256}")
                lg.append(n)
        if early:
            k.I("s_barrier")
            early()
            for n in range(RA): reads(n)
            k.I(f"s_waitcnt vmcnt({self.allowed([0])})")
            if first: first()
        else:
            k.I(f"s_waitcnt vmcnt({self.allowed([0])})\ns_barrier")
            if first: first()
            for n in range(RA): reads(n)
        nread = RA; N = (NST - 1) * NS + self.nks(NST - 1) * NT; limit = NS; done = -1
        resident = ND >= NST
        if resident:
            assert self.nw == NST
            limit = N
        for p in range(N):
            st, r = divmod(p, NS); ks, t = divmod(r, NT)
            if r == 0:
                gl = []
                hi = min(NST, st + ND); hib = min(NST, st + self.NDB)
                while self.nb < hib or self.nw < hi:
                    if (self.nw <= self.nb or self.nb >= hib) and self.nw < hi:
                        gl += [(self.nw, g) for g in self.wloads(self.nw)]; self.nw += 1
                    else:
                        gl += [(self.nb, g) for g in self.bloads(self.nb)]; self.nb += 1
                if extra: gl += [("x", g) for g in extra(st)]
                span = NS if resident else NS - RA + 1
                where = {}
                for j, g in enumerate(gl): where.setdefault(j * span // len(gl), []).append(g)
                if resident and st: k.I(f"s_waitcnt vmcnt({self.allowed([st])})")
            if done < p:
                tgt = min(p + 1, nread - 1)
                last = max(i for i, x in enumerate(lg) if x == tgt)
                k.I(f"s_waitcnt lgkmcnt({min(15, len(lg) - 1 - last)})")
                done = tgt
            a = self.acc + 16 * t
            opa, opb = v(self.Ab[p % R], 4), v(self.Bf[st % self.NDB][ks], 4)
            if self.swap: opa, opb = opb, opa
            k.I(f"v_mfma_f32_32x32x16_bf16 {v(a,16)}, {opa}, {opb}, {'0' if p < NT else v(a,16)}")
            if r == NS - RA + 1 and st < NST - 1 and not resident:
                assert nread == limit
                k.I(f"s_waitcnt vmcnt({self.allowed([st+1])}) lgkmcnt(0)")
                if pre_barrier: pre_barrier(st)
                k.I("s_barrier")
                if post_barrier: post_barrier(st)
                done = nread - 1
                limit += NS
            gs = where.get(r, [])
            post = []
            for j, (q, g) in enumerate(gs):
                if j == 0 and not g[-1].startswith("s_"):
                    for x in g[:-1]: k.I(x)
                    post.append(g[-1])
                else: post += g
                self.vm.append(q)
            cnt = 0
            while nread < min(p + RA + 1, limit, N) and cnt < 2:
                reads(nread); nread += 1; cnt += 1
            for x in post: k.I(x)

def halfsum(k, r, tmp):
    k.I(f"v_mov_b32 {v(tmp)}, {v(r)}\nv_permlane32_swap_b32 {v(r)}, {v(tmp)}\nv_add_f32 {v(r)}, {v(r)}, {v(tmp)}")

sRB2, sCB2 = 50, 51
def tile64_ids(k):
    k.I(f"""
    s_bfe_u32 s{sCB2}, s2, 0x50003
    s_and_b32 s{sRB2}, s2, 7
    s_lshl_b32 s{sRB2}, s{sRB2}, 1
    s_cmp_ge_u32 s{sCB2}, 18
    """)
def tile64w2_ids(k):
    k.I(f"""
    s_bfe_u32 s{G.sT1}, s2, 0x50003
    s_bfe_u32 s{G.sT0}, s2, 0x10002
    s_and_b32 s{sRB2}, s2, 3
    s_mul_i32 s52, s{G.sT0}, 3
    s_add_u32 s52, s52, s{sRB2}
    s_lshl_b32 s53, s{G.sT0}, 5
    s_add_u32 s53, s53, 48
    s_lshl_b32 s54, s52, 3
    s_sub_u32 s54, s54, 24
    s_cmp_eq_u32 s{sRB2}, 3
    s_cselect_b32 s53, s53, s54
    s_cselect_b32 s54, 0, 24
    s_add_u32 s53, s53, s{G.sT1}
    s_mul_i32 s52, s52, 24
    s_add_u32 s52, s52, s{G.sT1}
    s_mul_i32 s{sRB2}, s52, 7282
    s_lshr_b32 s{sRB2}, s{sRB2}, 16
    s_mul_i32 s{sCB2}, s{sRB2}, 9
    s_sub_u32 s{sCB2}, s52, s{sCB2}
    s_cmp_ge_u32 s{G.sT1}, s54
    s_cselect_b32 s{sCB2}, s53, s{sCB2}
    """)
def tile64_ids2(k, base, nrot):
    k.I(f"""
    s_cmp_ge_u32 s{sCB2}, 9
    s_cselect_b32 s{G.sT0}, 1, 0
    s_cselect_b32 s{G.sT1}, 9, 0
    s_add_u32 s{sRB2}, s{sRB2}, s{G.sT0}
    s_sub_u32 s{sCB2}, s{sCB2}, s{G.sT1}
    s_lshl_b32 s{G.sMT}, s{sRB2}, 2
    s_add_u32 s{G.sMT}, s{G.sMT}, s{G.sWV}
    s_min_u32 s{G.sG}, s{sCB2}, {nrot-1}
    s_lshl_b32 s{G.sWB}, s{sCB2}, 7
    s_mul_i32 s{G.sBB}, s{G.sMT}, {36*1024}
    s_add_u32 s{G.sBB}, s{G.sBB}, {base}
    """)

def emit_w2k(k, poll):
    k.v.next = 1
    g = KGemm(k, 2, False, 9, 9, NDB=5, hs=True)
    xr = k.v.alloc(16, 4); vT = k.v.alloc(2, 2); u = k.v.alloc(2, 2); st = k.v.alloc(2, 2)
    srd(k, G.sX, 36, S * D * 2); srd(k, G.sW, 38, D * D * 2)
    tile64_ids2(k, WS_HS, 9)
    g.setup()
    g.pre_w(9)
    g.setup2()
    k.I(f"""
    v_and_b32 {v(vT)}, 31, v0
    s_lshl_b32 s{G.sT0}, s{G.sMT}, 5
    v_add_u32 {v(vT)}, s{G.sT0}, {v(vT)}
    v_mul_u32_u24 {v(vT+1)}, 1152, {v(vT)}
    v_bfe_u32 {v(u)}, v0, 5, 1
    v_lshl_add_u32 {v(vT+1)}, {v(u)}, 4, {v(vT+1)}
    """)
    for b in range(4):
        k.I(f"buffer_load_dwordx4 {v(xr+4*b,4)}, {v(vT+1)}, {s(G.sX,4)}, s{G.sWB} offen offset:{32*b}")
        g.vm.append("x")
    poll()
    k.I("s_barrier")
    g.pre_b(2)
    g.main(first=lambda: k.stamp(1))
    k.stamp(2)
    k.I(f"""
    v_mov_b32 {v(st)}, 0
    v_mov_b32 {v(st+1)}, 0
    s_lshl_b32 s{G.sT0}, s{sCB2}, 12
    s_add_u32 s{G.sT0}, s{G.sT0}, s{G.sBB}
    s_add_u32 s{G.sT0}, s{G.sT0}, {WS_X1 - WS_HS}
    v_lshlrev_b32 {v(vT)}, 3, {v(vT)}
    s_lshl_b32 s{G.sT1}, s{sCB2}, 14
    s_add_u32 s{G.sT1}, s{G.sT1}, {WS_ST2}
    s_waitcnt vmcnt(0)
    """)
    for b in range(4):
        for j in range(4):
            d = g.acc + 8 * b + 2 * j
            k.I(f"""
            v_lshlrev_b32 {v(u)}, 16, {v(xr+4*b+j)}
            v_and_b32 {v(u+1)}, 0xffff0000, {v(xr+4*b+j)}
            v_add_f32 {v(d)}, {v(d)}, {v(u)}
            v_add_f32 {v(d+1)}, {v(d+1)}, {v(u+1)}
            v_cvt_pk_bf16_f32 {v(xr+4*b+j)}, {v(d)}, {v(d+1)}
            """)
        k.I(f"buffer_store_dwordx4 {v(xr+4*b,4)}, {v(g.vB)}, {s(G.sWS,4)}, s{G.sT0} offen offset:{1024*b} {ST}")
    for r in range(32):
        k.I(f"v_add_f32 {v(st)}, {v(st)}, {v(g.acc+r)}\nv_fmac_f32 {v(st+1)}, {v(g.acc+r)}, {v(g.acc+r)}")
    halfsum(k, st, u); halfsum(k, st + 1, u + 1)
    k.I(f"""
    s_mov_b32 exec_hi, 0
    buffer_store_dwordx2 {v(st,2)}, {v(vT)}, {s(G.sWS,4)}, s{G.sT1} offen {ST}
    s_mov_b64 exec, -1
    """)

class W4:
    def __init__(self, k, base):
        self.k = k
        k.v.next = base
        self.g = KGemm(k, 5, True, 21, 4, NDB=3, low=16, fold=True)
    def early(self, pW4):
        k, g = self.k, self.g
        n0 = len(k.items)
        srd(k, G.sW, pW4, D * F * 2)
        k.I(f"""
        s_lshr_b32 s{G.sSP}, s{G.sCB}, 2
        s_and_b32 s50, s{G.sCB}, 3
        s_mul_i32 s{G.sG}, s50, 9
        s_add_u32 s{G.sG}, s{G.sG}, 1
        s_lshr_b32 s{G.sG}, s{G.sG}, 1
        s_mul_i32 s{G.sT0}, s50, 288
        s_mul_i32 s{G.sWB}, s{G.sSP}, {1152*1152}
        s_add_u32 s{G.sWB}, s{G.sWB}, s{G.sT0}
        s_mul_i32 s{G.sBB}, s{G.sMT}, 288
        s_mul_i32 s{G.sT0}, s{G.sSP}, 72
        s_add_u32 s{G.sBB}, s{G.sBB}, s{G.sT0}
        s_lshl_b32 s{G.sBB}, s{G.sBB}, 10
        s_add_u32 s{G.sBB}, s{G.sBB}, {WS_H}
        """)
        g.setup(); g.setup2()
        pre = [it[1].text for it in k.items[n0:] if it[0] == "i"]
        del k.items[n0:]
        gl = g.wloads(0) + g.wloads(1); g.nw = 2
        g.vm += [0] * 5 + [1] * 5
        return pre, gl
def emit_w4k(k, w4, sync_hooks, prio):
    g = w4.g
    sC4 = 50
    g.pre_b(2)
    k.I(g.setup_fold())
    srd(k, G.sX, 64, D * D * 2)
    def first():
        k.stamp(4)
        k.I(f"s_setprio {prio}")
    g.main(first=first, pre_barrier=sync_hooks, early=lambda: sync_hooks(-1))
    k.stamp(5)
    k.I(f"""
    s_setprio 3
    s_lshl_b32 s{G.sT0}, s{G.sSP}, 6
    s_add_u32 s{G.sT0}, s{G.sT0}, s{G.sMT}
    s_mul_i32 s{G.sT0}, s{G.sT0}, 36
    s_mul_i32 s{G.sT1}, s{sC4}, 9
    s_add_u32 s{G.sT0}, s{G.sT0}, s{G.sT1}
    s_lshl_b32 s{G.sT0}, s{G.sT0}, 10
    s_add_u32 s{G.sT0}, s{G.sT0}, {WS_PART}
    """)
    pk = g.Bf[0][0]
    for sidx in range(9):
        for j in range(4):
            r = g.acc + 8 * sidx + 2 * j
            k.I(f"v_cvt_pk_bf16_f32 {v(pk+4*sidx+j)}, {v(r)}, {v(r+1)}")
        k.I(f"buffer_store_dwordx4 {v(pk+4*sidx,4)}, {v(g.vB)}, {s(G.sWS,4)}, s{G.sT0} offen {ST}")
        k.I(f"s_add_u32 s{G.sT0}, s{G.sT0}, 1024")
```

```python
from common import *
from gemm import G
from p1gemm import P1Gemm
import sync
from sync import WS_CNT
ST = "sc1"
WS_C1P = 0x0BD0000
P_X, P_WQKV, P_WO, P_W1, P_W2, P_W3, P_W4, P_GATE, P_OUT, P_DBG, P_WS = 60, 62, 64, 68, 70, 72, 74, 76, 78, 80, 40
sROLE, sRB1, sCB1 = 42, 43, 44
import os
TLB = os.environ.get('TLB')
ROT = int(os.environ.get('ROT', '3'))
PACE = int(os.environ.get('PACE', '0'))

def ids1(k):
    k.I(f"""
    s_and_b32 s{sROLE}, s2, 3
    s_bfe_u32 s{G.sT0}, s2, 0x10002
    s_bfe_u32 s{sRB1}, s2, 0x30003
    s_lshl_b32 s{G.sT0}, s{G.sT0}, 3
    s_add_u32 s{sRB1}, s{sRB1}, s{G.sT0}
    s_bfe_u32 s{sCB1}, s2, 0x20006
    """)

def gemm_open(k, w1, swap):
    k.v.next = 1
    g = P1Gemm(k, 1152 if w1 else 3456, swap, w1)
    k.I(f"""
    s_lshl_b32 s{G.sMT}, s{sRB1}, 2
    s_add_u32 s{G.sMT}, s{G.sMT}, s{G.sWV}
    s_lshl_b32 s{G.sT0}, s{sCB1}, 1
    s_add_u32 s{G.sG}, s{sRB1}, s{G.sT0}
    s_add_u32 s{G.sG}, s{G.sG}, s{sROLE}
    s_cmp_ge_u32 s{G.sG}, 18
    s_cselect_b32 s{G.sT0}, 18, 0
    s_sub_u32 s{G.sG}, s{G.sG}, s{G.sT0}
    s_cmp_ge_u32 s{G.sG}, 9
    s_cselect_b32 s{G.sT0}, 9, 0
    s_sub_u32 s{G.sG}, s{G.sG}, s{G.sT0}
    s_mul_i32 s{G.sWB}, s{sCB1}, 288
    """)
    if ROT == 3: k.I(f"s_mul_i32 s{G.sG}, s{G.sG}, 21846\ns_lshr_b32 s{G.sG}, s{G.sG}, 16\ns_mul_i32 s{G.sG}, s{G.sG}, 3")
    if ROT == 5: k.I(f"s_and_b32 s{G.sG}, s{G.sG}, 14")
    if ROT == 2: k.I(f"s_cmp_ge_u32 s{G.sG}, 5\ns_cselect_b32 s{G.sG}, 4, 0")
    if not w1: k.I(f"s_mul_i32 s{G.sT0}, s{sROLE}, 1152\ns_add_u32 s{G.sWB}, s{G.sWB}, s{G.sT0}")
    g.setup()
    k.I("s_waitcnt lgkmcnt(0)")
    srd(k, G.sX, P_X, S * D * 2)
    srd(k, G.sW, P_W1 if w1 else P_WQKV, D * D * 2 if w1 else D * 3 * D * 2)
    g.pre("xww")
    srd(k, G.sWS, P_WS, WS_SIZE)
    g.setup2()
    g.pre("xw")
    g.vRd = k.v.alloc(2, 2)
    return g

def ready_hooks(k, g, extra, pre_barrier=None):
    def ex(st):
        r = extra(st)
        if st == 3: r = r + [[f"v_mov_b32 {v(g.vRd+1)}, 0", f"global_load_dword {v(g.vRd)}, {v(g.vRd+1)}, s[{P_DBG}:{P_DBG+1}] sc1"]]
        return r
    def pb(st):
        if st == 8:
            L = k.label("rk")
            k.I(f"v_readfirstlane_b32 s57, {v(g.vRd)}\ns_cmp_ge_u32 s57, 16\ns_cbranch_scc1 {L}")
            sync.wait_ready(k, P_DBG, G.sWV, 57, g.vRd)
            k.L(L)
        if pre_barrier: pre_barrier(st)
    return dict(extra=ex, pre_barrier=pb)

def emit_qk(k):
    g = gemm_open(k, False, False)
    vj = k.v.alloc(2, 2); vO1 = k.v.alloc(); vO2 = k.v.alloc(); vO3 = k.v.alloc(); vL = k.v.alloc()
    g.main(first=lambda: k.stamp(1), **ready_hooks(k, g, lambda st: []))
    k.stamp(2)
    acc = g.acc; pk = g.Ab[0]; vT0, vT1 = vj, vj + 1
    sC, sT0, sT1 = G.sC, G.sT0, G.sT1
    k.I(f"""
    v_and_b32 {v(vL)}, 63, v0
    s_cmp_eq_u32 s{sROLE}, 0
    s_cselect_b32 s{sC}, {hx(f2u(QSCALE))}, 1.0
    v_lshlrev_b32 {v(vO1)}, 4, {v(vL)}
    v_and_b32 {v(vO2)}, 31, {v(vL)}
    v_lshlrev_b32 {v(vO2)}, 2, {v(vO2)}
    v_lshrrev_b32 {v(vT0)}, 5, {v(vL)}
    v_mul_u32_u24 {v(vT1)}, {3*8192}, {v(vT0)}
    v_add_u32 {v(vO3)}, {v(vO2)}, {v(vT1)}
    v_lshl_add_u32 {v(vO2)}, {v(vT0)}, 13, {v(vO2)}
    v_cmp_lt_u32 vcc, 31, {v(vL)}
    s_lshl_b32 s{sT0}, s{sCB1}, 9
    s_add_u32 s{sT0}, s{sT0}, s{G.sMT}
    s_lshl_b32 s{sT1}, s{sT0}, 7
    s_lshl_b32 s{sT0}, s{sT0}, 10
    s_lshl_b32 s{G.sG}, s{sROLE}, 21
    s_add_u32 s{sT0}, s{sT0}, s{G.sG}
    s_lshl_b32 s{G.sG}, s{sROLE}, 18
    s_add_u32 s{sT1}, s{sT1}, s{G.sG}
    s_add_u32 s{sT1}, s{sT1}, {WS_QX}
    """)
    Lns = k.label("ns")
    k.I(f"s_cmp_lg_u32 s{sROLE}, 0\ns_cbranch_scc1 {Lns}")
    for w in range(36):
        k.I(f"v_pk_mul_f32 {v(acc+2*w,2)}, {v(acc+2*w,2)}, {s(sC,2)} op_sel_hi:[1,0]")
    k.L(Lns)
    for gi in range(2):
        base = pk + 20 * gi
        M = [base, base + 4, base + 8, base + 12]
        tA, tB, tC, tD = base + 16, base + 17, base + 18, base + 19
        dst = {0: M[0], 1: M[0] + 1, 2: M[0] + 2, 3: M[0] + 3, 4: tA, 5: M[1] + 1, 6: M[1] + 2, 7: M[1] + 3,
               8: tB, 9: tC, 10: M[2], 11: M[2] + 1, 12: M[2] + 2, 13: tD, 14: M[3], 15: M[3] + 1, 16: M[3] + 2, 17: M[3] + 3}
        for w in range(18):
            r = acc + 2 * (18 * gi + w)
            k.I(f"v_cvt_pk_bf16_f32 {v(dst[w])}, {v(r)}, {v(r+1)}")
        k.I(f"v_cndmask_b32 {v(M[1])}, {v(tB)}, {v(tA)}, vcc")
        k.I(f"v_cndmask_b32 {v(M[2]+3)}, {v(tD)}, {v(tB)}, vcc")
        k.I(f"v_cndmask_b32 {v(tA)}, {v(tA)}, {v(tD)}, vcc")
        for i in range(4):
            k.I(f"buffer_store_dwordx4 {v(M[i],4)}, {v(vO1)}, {s(G.sWS,4)}, s{sT0} offen {ST}")
            k.I(f"s_add_u32 s{sT0}, s{sT0}, 65536")
        k.I(f"buffer_store_dword {v(tA)}, {v(vO3)}, {s(G.sWS,4)}, s{sT1} offen {ST}")
        k.I(f"s_add_u32 s{sT1}, s{sT1}, 8192")
        k.I(f"buffer_store_dword {v(tC)}, {v(vO2)}, {s(G.sWS,4)}, s{sT1} offen {ST}")
        k.I(f"s_add_u32 s{sT1}, s{sT1}, {3*8192}")

def emit_v(k):
    g = gemm_open(k, False, True)
    vj = k.v.alloc(2, 2); vO = [k.v.alloc() for _ in range(5)]; tq = [k.v.alloc() for _ in range(3)]; vL = k.v.alloc()
    vT0, vT1 = vj, vj + 1
    sT0, sT1 = G.sT0, G.sT1
    k.I(f"""
    v_and_b32 {v(vL)}, 63, v0
    s_mul_i32 s{sT0}, s{G.sWV}, 1280
    v_lshrrev_b32 {v(tq[2])}, 5, {v(vL)}
    v_mul_u32_u24 {v(tq[2])}, 320, {v(tq[2])}
    v_add_u32 {v(tq[2])}, s{sT0}, {v(tq[2])}
    """)
    for t in range(5):
        k.I(f"""
        v_and_b32 {v(vT0)}, 31, {v(vL)}
        v_add_u32 {v(vT0)}, {32*t}, {v(vT0)}
        v_mul_u32_u24 {v(vT1)}, 3641, {v(vT0)}
        v_lshrrev_b32 {v(vT1)}, 16, {v(vT1)}
        v_mul_u32_u24 {v(vO[t])}, 18, {v(vT1)}
        v_sub_u32 {v(vO[t])}, {v(vT0)}, {v(vO[t])}
        """)
        if t == 4:
            k.I(f"""
            v_cmp_lt_u32 vcc, 143, {v(vT0)}
            v_and_b32 {v(tq[0])}, 7, {v(vT0)}
            v_cndmask_b32 {v(vT1)}, {v(vT1)}, {v(tq[0])}, vcc
            v_bfe_u32 {v(tq[0])}, {v(vT0)}, 3, 1
            v_subrev_u32 {v(tq[1])}, 1, {v(tq[0])}
            v_and_b32 {v(tq[1])}, 0x3f803f80, {v(tq[1])}
            v_add_u32 {v(tq[0])}, 18, {v(tq[0])}
            v_cndmask_b32 {v(vO[t])}, {v(vO[t])}, {v(tq[0])}, vcc
            """)
        k.I(f"""
        v_mul_u32_u24 {v(vT1)}, 5120, {v(vT1)}
        v_lshl_add_u32 {v(vO[t])}, {v(vO[t])}, 4, {v(vT1)}
        v_add_u32 {v(vO[t])}, {v(vO[t])}, {v(tq[2])}
        """)
    g.main(first=lambda: k.stamp(1), **ready_hooks(k, g, lambda st: []))
    k.stamp(2)
    acc = g.acc; pk = g.Ab[0]
    k.I("s_barrier")
    for t in range(5):
        for j in range(8):
            k.I(f"v_cvt_pk_bf16_f32 {v(pk+8*t+j)}, {v(acc+16*t+2*j)}, {v(acc+16*t+2*j+1)}")
        if t == 4:
            for j in range(8):
                k.I(f"v_cndmask_b32 {v(pk+8*t+j)}, {v(pk+8*t+j)}, {v(tq[1])}, vcc")
        k.I(f"ds_write_b128 {v(vO[t])}, {v(pk+8*t,4)}")
        k.I(f"ds_write_b128 {v(vO[t])}, {v(pk+8*t+4,4)} offset:{VT_STEP}")
    k.I(f"""
    s_mul_i32 s{sT0}, s{G.sWV}, {2*5120}
    v_lshlrev_b32 {v(vT0)}, 4, {v(vL)}
    v_add_u32 {v(vT1)}, s{sT0}, {v(vT0)}
    s_lshl_b32 s{sT0}, s{sCB1}, 3
    s_lshl_b32 s{sT1}, s{G.sWV}, 1
    s_add_u32 s{sT0}, s{sT0}, s{sT1}
    s_lshl_b32 s{sT0}, s{sT0}, 4
    s_add_u32 s{sT0}, s{sT0}, s{sRB1}
    s_mul_i32 s{sT0}, s{sT0}, 5120
    s_add_u32 s{sT0}, s{sT0}, {WS_VT}
    s_waitcnt lgkmcnt(0)
    s_barrier
    """)
    for hh in range(2):
        for i in range(5):
            k.I(f"ds_read_b128 {v(pk+20*hh+4*i,4)}, {v(vT1)} offset:{5120*hh+1024*i}")
    for hh in range(2):
        for i in range(5):
            k.I(f"s_waitcnt lgkmcnt({9-5*hh-i})")
            if i == 4: k.I(f"s_add_u32 s{sT0}, s{sT0}, 4096")
            k.I(f"buffer_store_dwordx4 {v(pk+20*hh+4*i,4)}, {v(vT0)}, {s(G.sWS,4)}, s{sT0} offen offset:{1024*(i%4)} {ST}")
        k.I(f"s_add_u32 s{sT0}, s{sT0}, {128*VT_STEP - 4096}")

def emit_w1(k):
    g = gemm_open(k, True, False)
    cp = k.v.alloc(16, 4); cs = k.v.alloc(16, 4); vR = k.v.alloc(2, 2); vK1 = k.v.alloc(2, 2)
    vT0 = k.v.alloc(); vT1 = k.v.alloc(); vO = k.v.alloc(); vA = k.v.alloc(); vL = k.v.alloc()
    sC, sT0, sT1 = G.sC, G.sT0, G.sT1
    def pre_barrier(st):
        if st == 11:
            L = k.label("pa")
            k.I(f"""
            s_mov_b32 s54, 16
            s_mov_b32 s55, 16
            s_cmp_lg_u32 s{G.sWV}, 0
            s_cbranch_scc1 {L}
            s_lshl_b32 s56, s{sRB1}, 7
            s_add_u32 s56, s56, {WS_CNT + 128*sync.CR}
            s_lshl_b32 s59, s{sCB1}, 7
            s_add_u32 s59, s59, {WS_CNT + 128*sync.CC}
            s_mov_b32 s54, 0
            s_mov_b32 s55, 0
            s_atomic_add s54, s[{P_WS}:{P_WS+1}], s56 glc
            s_atomic_add s55, s[{P_WS}:{P_WS+1}], s59 glc
            {L}:
            """)
        if st == 13:
            L = k.label("pb")
            k.I(f"s_min_u32 s54, s54, s55\ns_cmp_ge_u32 s54, 16\ns_cbranch_scc1 {L}")
            sync.poll(k, P_WS, G.sWV, [(56, 16), (59, 16)], 57)
            k.L(L)
    def extra(st):
        if st not in (14, 15, 16): return []
        fl = []
        r = [[f"v_and_b32 {v(vT0)}, 31, v0", f"v_lshlrev_b32 {v(vT0)}, 4, {v(vT0)}", f"s_lshl_b32 s56, s{G.sMT}, 9", f"s_add_u32 s56, s56, {WS_ST1}",
              f"buffer_load_dwordx2 {v(vR,2)}, {v(vT0)}, {s(G.sWS,4)}, s56 offen sc1"]]
        for i in range(16):
            pre = [f"v_lshlrev_b32 {v(vT1)}, 2, v0", f"s_mul_i32 s56, s{sCB1}, {16*576}", f"s_add_u32 s56, s56, {WS_C1P}"] if i == 0 else \
                  [f"s_add_u32 s56, s56, {4*576}"] if i % 4 == 0 else []
            r.append(pre + [f"buffer_load_dword {v(cp+i)}, {v(vT1)}, {s(G.sWS,4)}, s56 offen offset:{576*(i%4)} sc1"])
        return fl + r[6*(st-14):6*(st-13)]
    g.main(first=lambda: k.stamp(1), **ready_hooks(k, g, extra, pre_barrier))
    k.stamp(2)
    acc = g.acc
    csall = g.Ab[0]; tmp = g.scr; pk = g.scr + 16
    CSB = 2 * g.WS_
    k.I("s_waitcnt vmcnt(0)")
    for st_ in (8, 4, 2, 1):
        for i in range(st_): k.I(f"v_add_f32 {v(cp+i)}, {v(cp+i)}, {v(cp+i+st_)}")
    k.I(f"""
    ds_write_b32 {v(vT1)}, {v(cp)} offset:{CSB}
    v_and_b32 {v(vL)}, 63, v0
    v_lshlrev_b32 {v(vO)}, 4, {v(vL)}
    s_mul_i32 s{sT0}, s{G.sMT}, 36
    s_mul_i32 s{sT1}, s{sCB1}, 9
    s_add_u32 s{sT0}, s{sT0}, s{sT1}
    s_lshl_b32 s{sT0}, s{sT0}, 10
    s_add_u32 s{sT0}, s{sT0}, {WS_HS}
    v_mov_b32 {v(vK1)}, {hx(f2u(GK1))}
    s_mov_b32 s{sC}, {hx(f2u(GK2))}
    v_lshrrev_b32 {v(vA)}, 5, {v(vL)}
    v_lshlrev_b32 {v(vA)}, 5, {v(vA)}
    s_waitcnt lgkmcnt(0)
    s_barrier
    """)
    def csr(t, dst):
        for q in range(4 if t < 4 else 2):
            k.I(f"ds_read_b128 {v(dst+4*q,4)}, {v(vA)} offset:{CSB + 128*t + 64*(q//2) + 16*(q%2)}")
    for t in range(5):
        nq = 4 if t < 4 else 2
        if t == 0: csr(0, cs)
        if t + 1 < 5:
            csr(t + 1, csall)
            k.I(f"s_waitcnt lgkmcnt({4 if t + 1 < 4 else 2})")
        else:
            k.I("s_waitcnt lgkmcnt(0)")
        for p in range(2 * nq):
            k.I(f"v_pk_mul_f32 {v(cs+2*p,2)}, {v(cs+2*p,2)}, {v(vR,2)} op_sel:[0,1] op_sel_hi:[1,1]")
        for p in range(2 * nq):
            r = acc + 16 * t + 2 * p
            k.I(f"v_pk_fma_f32 {v(r,2)}, {v(r,2)}, {v(vR,2)}, {v(cs+2*p,2)} op_sel_hi:[1,0,1]")
        p0 = pk + 8 * (t & 1)
        gelu_pairs(k, [(acc + 16 * t + 2 * p, p0 + p) for p in range(2 * nq)], vK1, sC, tmp)
        for e in range(nq // 2):
            k.I(f"buffer_store_dwordx4 {v(p0+4*e,4)}, {v(vO)}, {s(G.sWS,4)}, s{sT0} offen offset:{1024*e} {ST}")
        k.I(f"s_add_u32 s{sT0}, s{sT0}, 2048")
        cs, csall = csall, cs

def emit_rowstats(k, more_loads=None):
    k.v.next = 1
    k.I("s_setprio 3")
    vRow = k.v.alloc(); a0 = k.v.alloc(); a1 = k.v.alloc(); a2 = k.v.alloc(); a3_ = k.v.alloc()
    xs = k.v.alloc(12, 4); gs = k.v.alloc(12, 4); u = k.v.alloc(4, 4); a3 = k.v.alloc(4, 4)
    k.I(f"""
    s_lshl_b32 s{G.sT0}, s{sROLE}, 2
    s_add_u32 s{G.sT0}, s{G.sT0}, s{sCB1}
    s_lshl_b32 s{G.sT0}, s{G.sT0}, 3
    s_lshl_b32 s{G.sT1}, s{sRB1}, 7
    s_add_u32 s{G.sT0}, s{G.sT0}, s{G.sT1}
    v_lshrrev_b32 {v(vRow)}, 5, v0
    v_add_u32 {v(vRow)}, s{G.sT0}, {v(vRow)}
    v_mul_u32_u24 {v(a1)}, 1152, {v(vRow)}
    v_and_b32 {v(u)}, 31, v0
    v_lshlrev_b32 {v(a2)}, 4, {v(u)}
    v_lshlrev_b32 {v(a3_)}, 2, {v(u)}
    v_add_u32 {v(a0)}, {v(a1)}, {v(a2)}
    v_add_u32 {v(a1)}, {v(a1)}, {v(a3_)}
    s_waitcnt lgkmcnt(0)
    """)
    srd(k, G.sX, P_X, S * D * 2); srd(k, G.sW, P_GATE, D * 2); srd(k, G.sWS, P_WS, WS_SIZE)
    k.I(f"""
    buffer_load_dwordx4 {v(xs,4)}, {v(a0)}, {s(G.sX,4)}, 0 offen
    buffer_load_dwordx4 {v(xs+4,4)}, {v(a0)}, {s(G.sX,4)}, 0 offen offset:512
    buffer_load_dword {v(xs+8)}, {v(a1)}, {s(G.sX,4)}, 0 offen offset:1024
    buffer_load_dwordx4 {v(gs,4)}, {v(a2)}, {s(G.sW,4)}, 0 offen
    buffer_load_dwordx4 {v(gs+4,4)}, {v(a2)}, {s(G.sW,4)}, 0 offen offset:512
    buffer_load_dword {v(gs+8)}, {v(a3_)}, {s(G.sW,4)}, 0 offen offset:1024
    """)
    n = more_loads() if more_loads else 0
    if TLB:
        L = k.label("tl")
        k.I(f"s_bfe_u32 s{G.sT0}, s2, 0x50003\ns_cmp_lg_u32 s{G.sT0}, 31\ns_cbranch_scc1 {L}\nv_lshlrev_b32 v100, 18, v0")
        k.I(f"buffer_load_dword v101, v100, {s(G.sWS,4)}, 0 offen")
        for i, (p, nb) in enumerate(((P_W3, D*F*2), (P_W4, D*F*2), (P_WO, D*D*2), (P_W2, D*D*2), (P_OUT, S*D*2))):
            srd(k, 52, p, nb)
            k.I(f"buffer_load_dword v{102+i}, v100, s[52:55], 0 offen")
        k.I("s_waitcnt vmcnt(0)")
        k.L(L)
    k.I(f"v_mov_b32 {v(a3)}, 0\nv_mov_b32 {v(a3+1)}, 0\nv_mov_b32 {v(a3+2)}, 0\ns_waitcnt vmcnt({n})")
    for j in range(9):
        k.I(f"""
        v_lshlrev_b32 {v(u)}, 16, {v(xs+j)}
        v_and_b32 {v(u+1)}, 0xffff0000, {v(xs+j)}
        v_lshlrev_b32 {v(u+2)}, 16, {v(gs+j)}
        v_and_b32 {v(u+3)}, 0xffff0000, {v(gs+j)}
        v_add_f32 {v(a3)}, {v(a3)}, {v(u)}
        v_fmac_f32 {v(a3+1)}, {v(u)}, {v(u)}
        v_fmac_f32 {v(a3+2)}, {v(u)}, {v(u+2)}
        v_add_f32 {v(a3)}, {v(a3)}, {v(u+1)}
        v_fmac_f32 {v(a3+1)}, {v(u+1)}, {v(u+1)}
        v_fmac_f32 {v(a3+2)}, {v(u+1)}, {v(u+3)}
        """)
    for sh in (1, 2, 4, 8):
        for r in range(3):
            k.I(f"v_add_f32_dpp {v(a3+r)}, {v(a3+r)}, {v(a3+r)} row_ror:{sh} row_mask:0xf bank_mask:0xf")
    for r in range(3): k.I(f"v_mov_b32 {v(u+r)}, {v(a3+r)}")
    for r in range(3): k.I(f"v_permlane16_swap_b32 {v(a3+r)}, {v(u+r)}")
    for r in range(3): k.I(f"v_add_f32 {v(a3+r)}, {v(a3+r)}, {v(u+r)}")
    k.I(f"""
    v_mul_f32 {v(a3)}, {hx(f2u(-1.0/576))}, {v(a3)}
    v_mul_f32 {v(a3+1)}, {hx(f2u(1.0/576))}, {v(a3+1)}
    v_mul_f32 {v(a3+2)}, {hx(f2u(-LOG2E))}, {v(a3+2)}
    v_fma_f32 {v(a3+1)}, -{v(a3)}, {v(a3)}, {v(a3+1)}
    v_exp_f32 {v(a3+2)}, {v(a3+2)}
    v_max_f32 {v(a3+1)}, 0, {v(a3+1)}
    v_add_f32 {v(a3+1)}, {hx(f2u(1e-5))}, {v(a3+1)}
    v_add_f32 {v(a3+2)}, 1.0, {v(a3+2)}
    v_rsq_f32 {v(u)}, {v(a3+1)}
    v_rcp_f32 {v(u+2)}, {v(a3+2)}
    v_sub_f32 {v(u+3)}, 0, {v(a3)}
    v_mul_f32 {v(u+1)}, {v(u)}, {v(a3)}
    v_lshlrev_b32 {v(vRow)}, 4, {v(vRow)}
    s_mov_b32 s{G.sT0}, {WS_ST1}
    s_mov_b32 exec_lo, 1
    s_mov_b32 exec_hi, 1
    buffer_store_dwordx4 {v(u,4)}, {v(vRow)}, {s(G.sWS,4)}, s{G.sT0} offen {ST}
    s_mov_b64 exec, -1
    """)

def emit_side_a(k):
    d = 48; vA = 60; vB_ = 61; ac = 64; t = 72
    L = k.label("ni")
    k.I(f"s_cmp_ge_u32 s2, 64\ns_cbranch_scc1 {L}\ns_cmp_lg_u32 s{G.sWV}, 0\ns_cbranch_scc1 {L}\ns_waitcnt lgkmcnt(0)")
    srd(k, G.sWS, P_WS, WS_SIZE)
    k.I(f"""
    v_lshlrev_b32 v60, 4, v0
    v_mov_b32 v64, 0
    v_mov_b32 v65, 0
    v_mov_b32 v66, 0
    v_mov_b32 v67, 0
    s_lshr_b32 s{G.sT0}, s2, 2
    s_lshl_b32 s{G.sT0}, s{G.sT0}, 12
    s_add_u32 s{G.sT0}, s{G.sT0}, {WS_CNT}
    buffer_store_dwordx4 v[64:67], v60, {s(G.sWS,4)}, s{G.sT0} offen sc1
    buffer_store_dwordx4 v[64:67], v60, {s(G.sWS,4)}, s{G.sT0} offen offset:1024 sc1
    buffer_store_dwordx4 v[64:67], v60, {s(G.sWS,4)}, s{G.sT0} offen offset:2048 sc1
    buffer_store_dwordx4 v[64:67], v60, {s(G.sWS,4)}, s{G.sT0} offen offset:3072 sc1
    s_waitcnt vmcnt(0)
    s_mov_b32 s57, 1
    s_atomic_add s57, s[{P_DBG}:{P_DBG+1}], 0 glc
    s_waitcnt lgkmcnt(0)
    """)
    k.L(L)
    def more():
        srd(k, 52, P_W1, D * D * 2)
        k.I(f"""
        v_mul_u32_u24 {v(vA)}, 3641, v0
        v_lshrrev_b32 {v(vA)}, 16, {v(vA)}
        v_mul_u32_u24 {v(vB_)}, {1152 - 288}, {v(vA)}
        v_lshl_add_u32 {v(vB_)}, v0, 4, {v(vB_)}
        v_mov_b32 {v(t)}, {hx(OOB)}
        v_cmp_gt_u32 vcc, 12, {v(vA)}
        v_cndmask_b32 {v(vB_)}, {v(t)}, {v(vB_)}, vcc
        s_mul_i32 s{G.sT0}, s{sRB1}, {36*1152}
        s_mul_i32 s{G.sT1}, s{sCB1}, 288
        s_add_u32 s{G.sT0}, s{G.sT0}, s{G.sT1}
        """)
        for i in range(3):
            k.I(f"buffer_load_dwordx4 {v(d+4*i,4)}, {v(vB_)}, s[52:55], s{G.sT0} offen\ns_add_u32 s{G.sT0}, s{G.sT0}, {12*1152}")
        return 3
    emit_rowstats(k, more)
    k.v.next = 100
    k.I("s_waitcnt vmcnt(1)")
    for i in range(3):
        for j in range(4):
            dst = ac if i == 0 else t
            k.I(f"v_lshlrev_b32 {v(dst+2*j)}, 16, {v(d+4*i+j)}\nv_and_b32 {v(dst+2*j+1)}, 0xffff0000, {v(d+4*i+j)}")
        if i:
            for j in range(8): k.I(f"v_add_f32 {v(ac+j)}, {v(ac+j)}, {v(t+j)}")
    k.I(f"""
    v_lshlrev_b32 {v(vA)}, 5, v0
    ds_write_b128 {v(vA)}, {v(ac,4)}
    ds_write_b128 {v(vA)}, {v(ac+4,4)} offset:16
    v_lshlrev_b32 {v(vA)}, 2, v0
    s_waitcnt lgkmcnt(0)
    s_barrier
    """)
    for i in range(12): k.I(f"ds_read_b32 {v(t+i)}, {v(vA)} offset:{576*i}")
    k.I("s_waitcnt lgkmcnt(0)")
    for i in range(1, 12): k.I(f"v_add_f32 {v(t)}, {v(t)}, {v(t+i)}")
    k.I(f"""
    v_mov_b32 {v(t+1)}, {hx(OOB)}
    v_cmp_gt_u32 vcc, 144, v0
    v_cndmask_b32 {v(vA)}, {v(t+1)}, {v(vA)}, vcc
    s_lshl_b32 s{G.sT0}, s{sCB1}, 4
    s_add_u32 s{G.sT0}, s{G.sT0}, s{sRB1}
    s_mul_i32 s{G.sT0}, s{G.sT0}, 576
    s_add_u32 s{G.sT0}, s{G.sT0}, {WS_C1P}
    buffer_store_dword {v(t)}, {v(vA)}, {s(G.sWS,4)}, s{G.sT0} offen {ST}
    """.replace("v_cmp_gt_u32 vcc, 144,", "v_cmp_gt_u32 vcc, 0x90,"))
    sync.wait_ready(k, P_DBG, G.sWV, 57, 90)
    k.I(f"""
    s_waitcnt vmcnt(0)
    s_barrier
    s_lshl_b32 s56, s{sRB1}, 7
    s_add_u32 s56, s56, {WS_CNT + 128*sync.CR}
    s_lshl_b32 s59, s{sCB1}, 7
    s_add_u32 s59, s59, {WS_CNT + 128*sync.CC}
    """)
    sync.signal(k, P_WS, G.sWV, 56, 57)
    sync.signal(k, P_WS, G.sWV, 59, 57)
    w3_warm(k)

def w2touch(k):
    k.I(f"""
    s_bfe_u32 s{G.sT0}, s2, 0x60002
    s_mul_i32 s{G.sT0}, s{G.sT0}, 3
    s_add_u32 s{G.sT0}, s{G.sT0}, s{sROLE}
    s_mul_i32 s{G.sT0}, s{G.sT0}, {27*128}
    v_lshlrev_b32 v60, 7, v0
    """)
    srd(k, 52, P_W2, D * D * 2)
    k.I(f"""
    s_add_u32 s54, s{G.sT0}, {27*128}
    buffer_load_dword v61, v60, s[52:55], s{G.sT0} offen
    """)
    return 1

def w3_warm(k):
    if not PACE: return
    k.I(f"""
    s_setprio 0
    s_and_b32 s{G.sT0}, s2, 255
    s_lshl_b32 s{G.sT0}, s{G.sT0}, 2
    s_add_u32 s{G.sT0}, s{G.sT0}, s{G.sWV}
    s_mul_i32 s{G.sT0}, s{G.sT0}, 41
    s_min_u32 s{G.sT0}, s{G.sT0}, {41472-41}
    s_lshl_b32 s{G.sT0}, s{G.sT0}, 7
    s_add_u32 s34, s{P_W3}, s{G.sT0}
    s_addc_u32 s35, s{P_W3+1}, 0
    """)
    for i in range(41):
        k.I(f"s_load_dwordx2 s[46:47], s[34:35], {128*i + 60} ; junk")
        if i % PACE == PACE - 1: k.I("s_waitcnt lgkmcnt(0)")
    k.I("s_waitcnt lgkmcnt(0)")

def emit_cs3(k, sIDX):
    k.v.next = 1
    vT0 = k.v.alloc(); vT1 = k.v.alloc(); vA = k.v.alloc()
    d = k.v.alloc(48, 4); ac = k.v.alloc(16, 4); t = k.v.alloc(8, 2)
    sC, sP = [52, 54], [53, 55]
    Ld = k.label("sd"); Le = k.label("se")
    k.I(f"""
    s_and_b32 s56, s2, 255
    s_lshl_b32 s56, s56, 7
    s_add_u32 s56, s56, {WS_CNT + 128*sync.CP}
    ; jobs q = 2*spare + (0,1) in 0..215: c = q/3, part = q%3
    s_lshl_b32 s59, s{sIDX}, 1
    v_lshrrev_b32 {v(vT0)}, 3, v0
    v_mul_u32_u24 {v(vT0)}, 9216, {v(vT0)}
    v_and_b32 {v(vT1)}, 7, v0
    v_lshl_add_u32 {v(vT0)}, {v(vT1)}, 4, {v(vT0)}
    """)
    srd(k, G.sW, P_W3, D * F * 2)
    sync.poll(k, P_WS, G.sWV, [(56, 2)], 57)
    k.I(f"s_barrier\ns_cmp_ge_u32 s59, 216\ns_cbranch_scc1 {Le}")
    for jb in range(2):
        k.I(f"""
        s_mul_i32 s{sC[jb]}, s59, 21846
        s_lshr_b32 s{sC[jb]}, s{sC[jb]}, 16
        s_mul_i32 s{G.sT0}, s{sC[jb]}, 3
        s_sub_u32 s{sP[jb]}, s59, s{G.sT0}
        s_lshl_b32 s{G.sT0}, s{sC[jb]}, 7
        s_mul_i32 s{G.sT1}, s{sP[jb]}, {192*9216}
        s_add_u32 s{G.sT0}, s{G.sT0}, s{G.sT1}
        s_add_u32 s59, s59, 1
        """)
        for i in range(6):
            k.I(f"buffer_load_dwordx4 {v(d+24*jb+4*i,4)}, {v(vT0)}, {s(G.sW,4)}, s{G.sT0} offen")
            k.I(f"s_add_u32 s{G.sT0}, s{G.sT0}, {32*9216}")
    k.I(f"v_lshlrev_b32 {v(vA)}, 5, v0")
    for jb in range(2):
        for i in range(6):
            k.I(f"s_waitcnt vmcnt({11-6*jb-i})")
            for j in range(4):
                dst = ac + 8 * jb if i == 0 else t
                x = d + 24 * jb + 4 * i + j
                k.I(f"v_lshlrev_b32 {v(dst+2*j)}, 16, {v(x)}\nv_and_b32 {v(dst+2*j+1)}, 0xffff0000, {v(x)}")
            if i:
                for j in range(8): k.I(f"v_add_f32 {v(ac+8*jb+j)}, {v(ac+8*jb+j)}, {v(t+j)}")
        k.I(f"ds_write_b128 {v(vA)}, {v(ac+8*jb,4)} offset:{8192*jb}\nds_write_b128 {v(vA)}, {v(ac+8*jb+4,4)} offset:{8192*jb+16}")
    k.I(f"""
    v_and_b32 {v(vA)}, 63, v0
    v_lshlrev_b32 {v(vA)}, 2, {v(vA)}
    s_lshl_b32 s{G.sT0}, s{G.sWV}, 13
    v_add_u32 {v(vA)}, s{G.sT0}, {v(vA)}
    s_waitcnt lgkmcnt(0)
    s_barrier
    s_cmp_ge_u32 s{G.sWV}, 2
    s_cbranch_scc1 {Ld}
    """)
    for i in range(32): k.I(f"ds_read_b32 {v(d+i)}, {v(vA)} offset:{256*i}")
    k.I(f"""
    s_cmp_eq_u32 s{G.sWV}, 0
    s_cselect_b32 s{sC[0]}, s{sC[0]}, s{sC[1]}
    s_cselect_b32 s{sP[0]}, s{sP[0]}, s{sP[1]}
    s_waitcnt lgkmcnt(0)
    """)
    for st_ in (16, 8, 4, 2, 1):
        for i in range(st_): k.I(f"v_add_f32 {v(d+i)}, {v(d+i)}, {v(d+i+st_)}")
    Lz = k.label("nz")
    k.I(f"""
    v_and_b32 {v(t)}, 0xffff0000, {v(d)}
    v_sub_f32 {v(d)}, {v(d)}, {v(t)}
    v_cvt_pk_bf16_f32 {v(ac)}, {v(t)}, {v(t)}
    v_cvt_pk_bf16_f32 {v(ac+1)}, {v(d)}, {v(d)}
    v_mov_b32 {v(ac+2)}, 0
    v_mov_b32 {v(ac+3)}, 0
    v_and_b32 {v(vT0)}, 0x13, v0
    v_and_b32 {v(vT1)}, 4, v0
    v_lshl_or_b32 {v(vT0)}, {v(vT1)}, 1, {v(vT0)}
    v_bfe_u32 {v(vT1)}, v0, 3, 1
    v_lshl_or_b32 {v(vT0)}, {v(vT1)}, 2, {v(vT0)}
    v_lshlrev_b32 {v(vT0)}, 4, {v(vT0)}
    v_bfe_u32 {v(vT1)}, v0, 5, 1
    v_lshl_add_u32 {v(vT0)}, {v(vT1)}, 10, {v(vT0)}
    s_lshl_b32 s{G.sT0}, s{sC[0]}, 11
    s_add_u32 s{G.sT0}, s{G.sT0}, {WS_CS3}
    s_lshl_b32 s{G.sT1}, s{sP[0]}, 3
    s_cmp_eq_u32 s{sP[0]}, 2
    s_cselect_b32 s{G.sT1}, 512, s{G.sT1}
    s_add_u32 s{G.sT0}, s{G.sT0}, s{G.sT1}
    buffer_store_dwordx2 {v(ac,2)}, {v(vT0)}, {s(G.sWS,4)}, s{G.sT0} offen {ST}
    s_cmp_lg_u32 s{sP[0]}, 2
    s_cbranch_scc1 {Lz}
    buffer_store_dwordx2 {v(ac+2,2)}, {v(vT0)}, {s(G.sWS,4)}, s{G.sT0} offen offset:8 {ST}
    {Lz}:
    s_mul_i32 s56, s{sC[0]}, 3641
    s_lshr_b32 s56, s56, 16
    s_lshl_b32 s56, s56, 7
    s_add_u32 s56, s56, {WS_CNT + 128*sync.CS}
    s_waitcnt vmcnt(0)
    s_mov_b32 s57, 1
    s_atomic_add s57, s[{P_WS}:{P_WS+1}], s56 glc
    s_waitcnt lgkmcnt(0)
    {Ld}:
    s_barrier
    {Le}:
    """)

def emit_side_b(k):
    emit_rowstats(k, lambda: w2touch(k))
    sync.wait_ready(k, P_DBG, G.sWV, 57, 90)
    k.I(f"""
    s_waitcnt vmcnt(0)
    s_barrier
    s_lshl_b32 s56, s{sRB1}, 7
    s_add_u32 s56, s56, {WS_CNT + 128*sync.CR}
    """)
    sync.signal(k, P_WS, G.sWV, 56, 57)
    w3_warm(k)
    k.I(f"s_setprio 0\ns_and_b32 s56, s2, 255\ns_lshl_b32 s56, s56, 7\ns_add_u32 s56, s56, {WS_CNT + 128*sync.CP}")
    sync.poll(k, P_WS, G.sWV, [(56, 1)], 57)
    k.I("s_barrier")
```

```python
from common import *
from gemm import G
ST = "sc1"
LD = "sc1"

class Small:
    def __init__(self, k, wo):
        self.k = k; self.wo = wo
        self.vWo = [k.v.alloc() for _ in range(2)]
        self.vWr = [k.v.alloc() for _ in range(2)] if wo else None
        self.vWa = k.v.alloc(); self.vB = k.v.alloc()
        self.xtra = not wo
        self.acc = k.v.alloc(80, 4)
        self.Ab = [[k.v.alloc(4, 4) for t in range(5)] for b in range(2)]
        self.Bf = [k.v.alloc(4, 4) for _ in range(9)]
        self.vm = []
    def allowed(self, tags):
        last = max(i for i, t in enumerate(self.vm) if t in tags)
        return len(self.vm) - 1 - last
    def setup(self, sCOL):
        k = self.k
        vL, t0, t1, t2, t3 = self.acc, self.acc + 1, self.acc + 2, self.acc + 3, self.acc + 4
        k.I(f"v_and_b32 {v(vL)}, 63, v0\nv_lshlrev_b32 {v(self.vB)}, 4, {v(vL)}")
        k.I(f"""
        v_lshrrev_b32 {v(t1)}, 2, {v(vL)}
        v_and_b32 {v(t0)}, 3, {v(vL)}
        v_cmp_gt_u32 vcc, 2, {v(t0)}
        v_lshlrev_b32 {v(t0)}, 4, {v(t0)}
        v_mul_u32_u24 {v(t2)}, 1152, {v(t1)}
        v_add_u32 {v(self.vWo[0])}, {v(t0)}, {v(t2)}
        v_mov_b32 {v(t3)}, {hx(OOB)}
        v_cndmask_b32 {v(self.vWo[1])}, {v(t3)}, {v(self.vWo[0])}, vcc
        """)
        if self.xtra:
            k.I(f"""
            v_lshlrev_b32 {v(t2)}, 4, {v(t1)}
            v_cmp_eq_u32 vcc, 32, {v(t0)}
            v_cndmask_b32 {v(self.vWo[1])}, {v(t3)}, {v(t2)}, vcc
            s_mul_i32 s49, s{G.sWV}, {144*16}
            s_add_u32 s49, s49, {WS_W2X}
            s_mov_b32 s44, 0x33333333
            s_mov_b32 s45, 0x33333333
            s_not_b64 s[46:47], s[44:45]
            """)
        if self.wo:
            k.I(f"""
            v_lshrrev_b32 {v(t2)}, 1, {v(t1)}
            v_lshl_add_u32 {v(t1)}, {v(t2)}, 4, {v(t1)}
            v_add_u32 {v(t1)}, 16, {v(t1)}
            v_mul_u32_u24 {v(t2)}, 1152, {v(t1)}
            v_add_u32 {v(self.vWr[0])}, {v(t0)}, {v(t2)}
            v_cndmask_b32 {v(self.vWr[1])}, {v(t3)}, {v(self.vWr[0])}, vcc
            """)
        k.I(f"""
        s_mul_i32 s{G.sM0}, s{G.sWV}, 20480
        s_mul_i32 s{G.sWB}, s{G.sWV}, {144*1152}
        s_add_u32 s{G.sWB}, s{G.sWB}, s{sCOL}
        """)
        tr_lane_addr(k, self.vWa, vL, t0, t1, 512, perm=True)
        k.I(f"v_add_u32 {v(self.vWa)}, s{G.sM0}, {v(self.vWa)}")
    def dma(self, c):
        k = self.k
        rem = self.wo and c == 8
        rows = 0 if rem else (18 if self.wo else 16) * c
        k.I(f"s_add_u32 s{G.sOW}, s{G.sWB}, {rows*1152}")
        for i in range(5):
            if self.xtra and i == 4:
                k.I(f"""
                s_add_u32 m0, s{G.sM0}, {(c%4)*5120 + i*960}
                s_mov_b64 exec, s[44:45]
                buffer_load_dwordx4 {v(self.vWo[0])}, {s(G.sW,4)}, s{G.sOW} offen offset:256 lds
                s_add_u32 m0, s{G.sM0}, {(c%4)*5120 + 4096 - 256*c}
                s_mov_b64 exec, s[46:47]
                buffer_load_dwordx4 {v(self.vWo[1])}, {s(G.sWS,4)}, s49 offen offset:{256*c} lds
                s_mov_b64 exec, -1
                """)
                self.vm += [("w", c), ("w", c)]
                continue
            k.I(f"s_add_u32 m0, s{G.sM0}, {(c%4)*5120 + i*960}")
            k.I(f"buffer_load_dwordx4 {v((self.vWr if rem else self.vWo)[i // 4])}, {s(G.sW,4)}, s{G.sOW} offen offset:{64*i} lds")
            self.vm.append(("w", c))
    def prefetch(self):
        for c in range(4): self.dma(c)
    def load_b(self, sBASE):
        k = self.k
        if self.wo:
            k.I(f"s_lshl_b32 s{G.sOB}, s{G.sWV}, 13\ns_add_u32 s{G.sOB}, s{G.sOB}, s{sBASE}")
        else:
            k.I(f"s_mul_i32 s{G.sOB}, s{G.sWV}, 9216\ns_add_u32 s{G.sOB}, s{G.sOB}, s{sBASE}")
        for c in range(9):
            if c == 4: k.I(f"s_add_u32 s{G.sOB}, s{G.sOB}, 4096")
            if c == 8:
                if self.wo: k.I(f"s_lshl_b32 s{G.sOB}, s{G.sWV}, 10\ns_add_u32 s{G.sOB}, s{G.sOB}, s{sBASE}\ns_add_u32 s{G.sOB}, s{G.sOB}, 32768")
                else: k.I(f"s_add_u32 s{G.sOB}, s{G.sOB}, 4096")
            k.I(f"buffer_load_dwordx4 {v(self.Bf[c],4)}, {v(self.vB)}, {s(G.sWS,4)}, s{G.sOB} offen offset:{1024*(c%4)} {LD}")
            self.vm.append(("b", c))
    def reads(self, c):
        for t in range(5):
            for rd in range(2):
                self.k.I(f"ds_read_b64_tr_b16 {v(self.Ab[c&1][t]+2*rd,2)}, {v(self.vWa)} offset:{(c%4)*5120 + rd*256 + t*1024}")
    def main(self, after_last_dma=None):
        k = self.k
        k.I(f"s_waitcnt vmcnt({self.allowed([('w',0)])})")
        self.reads(0)
        for c in range(9):
            if c + 1 < 9:
                k.I(f"s_waitcnt vmcnt({self.allowed([('w',c+1), ('b',c)])})")
                self.reads(c + 1)
                k.I("s_waitcnt lgkmcnt(10)")
            else:
                k.I(f"s_waitcnt vmcnt({self.allowed([('b',c)])}) lgkmcnt(0)")
            for t in range(5):
                a = self.acc + 16 * t
                k.I(f"v_mfma_f32_32x32x16_bf16 {v(a,16)}, {v(self.Ab[c&1][t],4)}, {v(self.Bf[c],4)}, {'0' if c == 0 else v(a,16)}")
                if t == 0 and c + 4 < 9: self.dma(c + 4)
                if t == 0 and c == 5 and after_last_dma: after_last_dma()
    def reduce_write(self):
        k = self.k
        t = self.vWa
        k.I(f"s_mul_i32 s{G.sT0}, s{G.sWV}, 18432\nv_add_u32 {v(t)}, s{G.sT0}, {v(self.vB)}\ns_barrier")
        for b in range(9):
            for h in range(2):
                k.I(f"ds_write_b128 {v(t)}, {v(self.acc+8*b+4*h,4)} offset:{2048*b+1024*h}")
        if self.xtra:
            k.I(f"""
            v_add_f32 {v(self.acc+72)}, {v(self.acc+72)}, {v(self.acc+73)}
            v_lshlrev_b32 {v(t)}, 2, v0
            v_add_u32 {v(t)}, {80*1024 - 1024}, {v(t)}
            ds_write_b32 {v(t)}, {v(self.acc+72)}
            """)
        k.I("s_waitcnt lgkmcnt(0)\ns_barrier")
    def map_rows(self, vAF, vRM, vT):
        k = self.k
        k.I(f"""
        v_and_b32 {v(vT)}, 7, v0
        s_lshl_b32 s{G.sT0}, s{G.sWV}, 3
        v_add_u32 {v(vT)}, s{G.sT0}, {v(vT)}
        v_mul_u32_u24 {v(vRM)}, 1152, {v(vT)}
        v_lshlrev_b32 {v(vAF)}, 4, {v(vT)}
        v_bfe_u32 {v(vT)}, v0, 3, 3
        v_lshl_add_u32 {v(vRM)}, {v(vT)}, 4, {v(vRM)}
        v_lshl_add_u32 {v(vAF)}, {v(vT)}, 9, {v(vAF)}
        """)
    def reduce_read(self, vAF, dst, vT):
        k = self.k
        k.I(f"v_and_b32 {v(vT)}, 0xc00, {v(vAF)}\nv_add_u32 {v(vT)}, {v(vT)}, {v(vAF)}")
        sc = self.acc
        for sl in range(3):
            for w in range(4):
                for h in range(2):
                    d = dst + 8 * sl + 4 * h if w == 0 else sc + 24 * sl + 8 * (w - 1) + 4 * h
                    k.I(f"ds_read_b128 {v(d,4)}, {v(vT)} offset:{min(18432*w + 8192*sl + 1024*h, 65535) if 18432*w + 8192*sl + 1024*h < 65536 else 0}"
                        if 18432 * w + 8192 * sl + 1024 * h < 65536 else
                        f"ds_read_b128 {v(d,4)}, {v(vT+1)} offset:{18432*w + 8192*sl + 1024*h - 32768}")
            if sl == 0:
                k.I(f"v_add_u32 {v(vT+1)}, 32768, {v(vT)}")
        for sl in range(3):
            k.I(f"s_waitcnt lgkmcnt({min(15, 8*(2-sl))})")
            for j in range(8):
                k.I(f"v_add_f32 {v(dst+8*sl+j)}, {v(dst+8*sl+j)}, {v(sc+24*sl+j)}")
                k.I(f"v_add_f32 {v(sc+24*sl+8+j)}, {v(sc+24*sl+8+j)}, {v(sc+24*sl+16+j)}")
            for j in range(8):
                k.I(f"v_add_f32 {v(dst+8*sl+j)}, {v(dst+8*sl+j)}, {v(sc+24*sl+8+j)}")

def xsum8(k, r, tmp):
    k.I(f"v_add_f32_dpp {v(r)}, {v(r)}, {v(r)} row_ror:8 row_mask:0xf bank_mask:0xf")
    k.I(f"v_mov_b32 {v(tmp)}, {v(r)}\nv_permlane16_swap_b32 {v(r)}, {v(tmp)}\nv_add_f32 {v(r)}, {v(r)}, {v(tmp)}")
    k.I(f"v_mov_b32 {v(tmp)}, {v(r)}\nv_permlane32_swap_b32 {v(r)}, {v(tmp)}\nv_add_f32 {v(r)}, {v(r)}, {v(tmp)}")

def tile_ids(k, sCOL, base):
    k.I(f"""
    s_lshl_b32 s{G.sMT}, s{G.sRB}, 2
    s_lshr_b32 s{G.sT0}, s{G.sCB}, 2
    s_add_u32 s{G.sMT}, s{G.sMT}, s{G.sT0}
    s_and_b32 s{G.sSP}, s{G.sCB}, 3
    s_mul_i32 s{sCOL}, s{G.sSP}, 288
    s_mul_i32 s{G.sBB}, s{G.sMT}, {36*1024}
    s_add_u32 s{G.sBB}, s{G.sBB}, {base}
    """)
def row_addr(k, vD, shift, sD, base):
    k.I(f"""
    v_and_b32 {v(vD)}, 7, v0
    v_lshlrev_b32 {v(vD)}, {shift}, {v(vD)}
    s_lshl_b32 s{sD}, s{G.sMT}, 2
    s_add_u32 s{sD}, s{sD}, s{G.sWV}
    s_lshl_b32 s{sD}, s{sD}, {3+shift}
    s_add_u32 s{sD}, s{sD}, {base}
    """)
def af_off(k, sD):
    k.I(f"""
    s_mul_i32 s{sD}, s{G.sMT}, 36
    s_mul_i32 s{G.sT1}, s{G.sSP}, 9
    s_add_u32 s{sD}, s{sD}, s{G.sT1}
    s_lshl_b32 s{sD}, s{sD}, 10
    """)

def emit_w2s(k, touch=None, after_setup=None):
    k.v.next = 1
    sm = Small(k, False)
    vAF = k.v.alloc(); vRM = k.v.alloc(); vT = k.v.alloc(2, 2)
    xr = k.v.alloc(12, 4); dst = k.v.alloc(24, 4); mp = k.v.alloc(4, 4); u = k.v.alloc(4, 2); vM = k.v.alloc(); vS = k.v.alloc(); vJ = k.v.alloc(2, 2)
    sCOL = 48
    srd(k, G.sX, 36, S * D * 2); srd(k, G.sW, 38, D * D * 2)
    tile_ids(k, sCOL, WS_HS)
    sm.setup(sCOL)
    if after_setup: after_setup()
    sm.load_b(G.sBB)
    sm.prefetch()
    sm.map_rows(vAF, vRM, vT)
    k.I(f"s_mul_i32 s{G.sT0}, s{G.sMT}, {32*1152}\ns_add_u32 s{G.sT0}, s{G.sT0}, s{sCOL}")
    for sl in range(3):
        if sl == 2: k.I("s_mov_b64 exec, 0xffff")
        k.I(f"buffer_load_dwordx4 {v(xr+4*sl,4)}, {v(vRM)}, {s(G.sX,4)}, s{G.sT0} offen offset:{128*sl}")
        sm.vm += ["x"]
    k.I("s_mov_b64 exec, -1")
    row_addr(k, vT, 4, G.sT0, WS_ST1)
    k.I(f"buffer_load_dword {v(vM)}, {v(vT)}, {s(G.sWS,4)}, s{G.sT0} offen offset:12")
    sm.vm += ["x"]
    k.stamp(1)
    def tch():
        if touch:
            for g in touch(vJ):
                for x in g: k.I(x)
                sm.vm.append("t")
    sm.main(after_last_dma=tch)
    k.stamp(2)
    sm.reduce_write()
    k.I(f"""
    v_and_b32 {v(u)}, 7, v0
    s_lshl_b32 s{G.sT0}, s{G.sWV}, 5
    s_add_u32 s{G.sT0}, s{G.sT0}, {80*1024 - 1024}
    v_lshl_add_u32 {v(u)}, {v(u)}, 2, s{G.sT0}
    """)
    for w in range(4): k.I(f"ds_read_b32 {v(mp+w)}, {v(u)} offset:{256*w}")
    sm.reduce_read(vAF, dst, vT)
    k.I(f"""
    v_add_f32 {v(mp)}, {v(mp)}, {v(mp+1)}
    v_add_f32 {v(mp+2)}, {v(mp+2)}, {v(mp+3)}
    v_add_f32 {v(vM)}, {v(vM)}, {v(mp)}
    v_add_f32 {v(vM)}, {v(vM)}, {v(mp+2)}
    v_mov_b32 {v(vS)}, 0
    """)
    af_off(k, G.sT0)
    k.I(f"s_add_u32 s{G.sT0}, s{G.sT0}, {WS_X1}")
    for sl in range(3):
        if sl == 2: k.I("s_mov_b64 exec, 0xffff")
        for j in range(4):
            d = dst + 8 * sl + 2 * j
            k.I(f"""
            v_lshlrev_b32 {v(u)}, 16, {v(xr+4*sl+j)}
            v_and_b32 {v(u+1)}, 0xffff0000, {v(xr+4*sl+j)}
            v_sub_f32 {v(d)}, {v(d)}, {v(vM)}
            v_sub_f32 {v(d+1)}, {v(d+1)}, {v(vM)}
            v_add_f32 {v(d)}, {v(d)}, {v(u)}
            v_add_f32 {v(d+1)}, {v(d+1)}, {v(u+1)}
            v_cvt_pk_bf16_f32 {v(xr+4*sl+j)}, {v(d)}, {v(d+1)}
            v_fmac_f32 {v(vS)}, {v(d)}, {v(d)}
            v_fmac_f32 {v(vS)}, {v(d+1)}, {v(d+1)}
            """)
        k.I(f"buffer_store_dwordx4 {v(xr+4*sl,4)}, {v(vAF)}, {s(G.sWS,4)}, s{G.sT0} offen {ST}")
        k.I(f"s_add_u32 s{G.sT0}, s{G.sT0}, 4096")
    k.I("s_mov_b64 exec, -1")
    xsum8(k, vS, u)
    row_addr(k, vT, 4, G.sT0, WS_ST2)
    row_addr(k, vT + 1, 2, 50, WS_ST3)
    k.I(f"""
    s_lshl_b32 s{G.sT1}, s{G.sSP}, 2
    s_add_u32 s{G.sT0}, s{G.sT0}, s{G.sT1}
    s_mov_b64 exec, 0xff
    buffer_store_dword {v(vS)}, {v(vT)}, {s(G.sWS,4)}, s{G.sT0} offen {ST}
    buffer_store_dword {v(vM)}, {v(vT+1)}, {s(G.sWS,4)}, s50 offen {ST}
    s_mov_b64 exec, -1
    """)
    return 81920

def emit_wo(k, poll):
    k.v.next = 1
    sm = Small(k, True)
    vAF = k.v.alloc(); vRM = k.v.alloc(); vT = k.v.alloc(2, 2)
    xr = k.v.alloc(12, 4); dst = k.v.alloc(24, 4); g4 = k.v.alloc(4, 4); u = k.v.alloc(4, 2)
    sCOL = 48
    srd(k, G.sW, 38, D * D * 2)
    tile_ids(k, sCOL, WS_O)
    sm.setup(sCOL)
    poll(vT)
    sm.prefetch()
    k.I("s_barrier")
    k.stamp(5)
    sm.load_b(G.sBB)
    sm.map_rows(vAF, vRM, vT)
    af_off(k, 50)
    k.I(f"s_add_u32 s{G.sT0}, s50, {WS_X1}")
    for sl in range(3):
        if sl == 2: k.I("s_mov_b64 exec, 0xffff")
        k.I(f"buffer_load_dwordx4 {v(xr+4*sl,4)}, {v(vAF)}, {s(G.sWS,4)}, s{G.sT0} offen {LD}")
        k.I(f"s_add_u32 s{G.sT0}, s{G.sT0}, 4096")
        sm.vm += ["x"]
    k.I("s_mov_b64 exec, -1")
    row_addr(k, vT, 4, G.sT0, WS_ST1)
    k.I(f"buffer_load_dword {v(g4)}, {v(vT)}, {s(G.sWS,4)}, s{G.sT0} offen offset:8 sc1")
    row_addr(k, vT, 2, G.sT0, WS_ST3)
    k.I(f"buffer_load_dword {v(g4+2)}, {v(vT)}, {s(G.sWS,4)}, s{G.sT0} offen {LD}")
    sm.vm += ["x", "x"]
    sm.main()
    sm.reduce_write()
    sm.reduce_read(vAF, dst, vT)
    k.I(f"""
    v_sub_f32 {v(g4+1)}, 1.0, {v(g4)}
    v_mul_f32 {v(g4+2)}, {v(g4+1)}, {v(g4+2)}
    s_add_u32 s50, s50, {WS_PART + 4*64*36*1024}
    """)
    for sl in range(3):
        if sl == 2: k.I("s_mov_b64 exec, 0xffff")
        for j in range(4):
            d = dst + 8 * sl + 2 * j
            k.I(f"""
            v_lshlrev_b32 {v(u)}, 16, {v(xr+4*sl+j)}
            v_and_b32 {v(u+1)}, 0xffff0000, {v(xr+4*sl+j)}
            v_fma_f32 {v(d)}, {v(d)}, {v(g4)}, {v(g4+2)}
            v_fma_f32 {v(d+1)}, {v(d+1)}, {v(g4)}, {v(g4+2)}
            v_fmac_f32 {v(d)}, {v(g4+1)}, {v(u)}
            v_fmac_f32 {v(d+1)}, {v(g4+1)}, {v(u+1)}
            v_cvt_pk_bf16_f32 {v(xr+4*sl+j)}, {v(d)}, {v(d+1)}
            """)
        k.I(f"buffer_store_dwordx4 {v(xr+4*sl,4)}, {v(vAF)}, {s(G.sWS,4)}, s50 offen {ST}")
        k.I(f"s_add_u32 s50, s50, 4096")
    k.I("s_mov_b64 exec, -1")

def emit_sum(k, sync_all):
    k.v.next = 1
    vAF = k.v.alloc(); vRM = k.v.alloc(); vT = k.v.alloc(2, 2); g4 = k.v.alloc(2, 2); u = k.v.alloc(4, 2)
    k.v.next = 16
    ld = k.v.alloc(60, 4)
    sCOL = 48
    srd(k, G.sX, 36, S * D * 2)
    tile_ids(k, sCOL, 0)
    Small.map_rows(type("X", (), {"k": k})(), vAF, vRM, vT)
    row_addr(k, vT, 4, G.sT0, WS_ST1)
    k.I(f"buffer_load_dword {v(g4)}, {v(vT)}, {s(G.sWS,4)}, s{G.sT0} offen offset:8 sc1")
    af_off(k, 50)
    k.I(f"""
    s_add_u32 s54, s50, {WS_X1}
    s_add_u32 s50, s50, {WS_PART}
    s_add_u32 s51, s50, {64*36*1024}
    s_add_u32 s52, s51, {64*36*1024}
    s_add_u32 s53, s52, {64*36*1024}
    """)
    for sl in range(3):
        if sl == 2: k.I("s_mov_b64 exec, 0xffff")
        k.I(f"buffer_load_dwordx4 {v(ld+20*sl+16,4)}, {v(vAF)}, {s(G.sWS,4)}, s54 offen {LD}\ns_add_u32 s54, s54, 4096")
    k.I("s_mov_b64 exec, -1")
    sync_all(vT)
    for sl in range(3):
        if sl == 2: k.I("s_mov_b64 exec, 0xffff")
        for a_ in range(4):
            k.I(f"buffer_load_dwordx4 {v(ld+20*sl+4*a_,4)}, {v(vAF)}, {s(G.sWS,4)}, s{50+a_} offen {LD}")
            if sl < 2: k.I(f"s_add_u32 s{50+a_}, s{50+a_}, 4096")
    k.I("s_mov_b64 exec, -1")
    k.I(f"v_sub_f32 {v(g4+1)}, 1.0, {v(g4)}")
    k.I(f"s_mul_i32 s{G.sT0}, s{G.sMT}, {32*1152}\ns_add_u32 s{G.sT0}, s{G.sT0}, s{sCOL}")
    for sl in range(3):
        k.I(f"s_waitcnt vmcnt({4*(2-sl) + sl})")
        if sl == 2: k.I("s_mov_b64 exec, 0xffff")
        for j in range(4):
            k.I(f"v_lshlrev_b32 {v(u)}, 16, {v(ld+20*sl+j)}\nv_and_b32 {v(u+1)}, 0xffff0000, {v(ld+20*sl+j)}")
            for a_ in range(1, 5):
                x = ld + 20 * sl + 4 * a_ + j
                k.I(f"v_lshlrev_b32 {v(u+2)}, 16, {v(x)}\nv_and_b32 {v(u+3)}, 0xffff0000, {v(x)}")
                if a_ < 4:
                    k.I(f"v_pk_add_f32 {v(u,2)}, {v(u,2)}, {v(u+2,2)}")
                else:
                    k.I(f"v_pk_fma_f32 {v(u,2)}, {v(u+2,2)}, {v(g4,2)}, {v(u,2)} op_sel:[0,1,0] op_sel_hi:[1,1,1]")
            k.I(f"v_cvt_pk_bf16_f32 {v(ld+20*sl+j)}, {v(u)}, {v(u+1)}")
        k.I(f"buffer_store_dwordx4 {v(ld+20*sl,4)}, {v(vRM)}, {s(G.sX,4)}, s{G.sT0} offen offset:{128*sl}")
    k.I("s_mov_b64 exec, -1")
```

```python
from common import *
WS_CNT = 0x0BC0000
C1, C2, C3, CA, CW, CS = 0, 16, 80, 144, 160, 176
CR, CC, CH, CQ, CP = 184, 200, 208, 224, 256
NCNT = 512
SPIN = 1 << 18

def signal(k, sP, sWV, sOFF, st):
    L = k.label("sig")
    k.I(f"""
    s_cmp_lg_u32 s{sWV}, 0
    s_cbranch_scc1 {L}
    s_mov_b32 s{st}, 1
    s_atomic_add s{st}, s[{sP}:{sP+1}], s{sOFF} glc
    s_waitcnt lgkmcnt(0)
    {L}:
    """)

def poll(k, sP, sWV, checks, st, rest=None):
    L = k.label("pw"); Lp = k.label("pp"); Ls = k.label("ps")
    k.I(f"s_cmp_lg_u32 s{sWV}, 0\ns_cbranch_scc1 {L}\ns_mov_b32 s{st}, {SPIN}")
    k.L(Lp)
    for i, (sOFF, target) in enumerate(checks):
        k.I(f"s_mov_b32 s{45+i}, 0\ns_atomic_add s{45+i}, s[{sP}:{sP+1}], s{sOFF} glc")
    k.I("s_waitcnt lgkmcnt(0)")
    for i, (sOFF, target) in enumerate(checks):
        if i < len(checks) - 1: k.I(f"s_cmp_lt_u32 s{45+i}, {target}\ns_cbranch_scc1 {Ls}")
        else: k.I(f"s_cmp_ge_u32 s{45+i}, {target}\ns_cbranch_scc1 {L}")
    if rest:
        poll(k, sP, sWV, checks[-rest:], st)
        k.I(f"s_branch {L}")
    k.I(f"""
    {Ls}:
    s_sleep 2
    s_sub_u32 s{st}, s{st}, 1
    s_cmp_gt_i32 s{st}, 0
    s_cbranch_scc1 {Lp}
    {L}:
    """)

def wait_ready(k, sDBG, sWV, st, vt):
    L = k.label("rd"); Lp = k.label("rp")
    k.I(f"""
    s_cmp_lg_u32 s{sWV}, 0
    s_cbranch_scc1 {L}
    s_mov_b32 s{st}, {SPIN}
    v_mov_b32 {v(vt+1)}, 0
    {Lp}:
    global_load_dword {v(vt)}, {v(vt+1)}, s[{sDBG}:{sDBG+1}] sc1
    s_waitcnt vmcnt(0)
    v_readfirstlane_b32 s{st+1}, {v(vt)}
    s_cmp_ge_u32 s{st+1}, 16
    s_cbranch_scc1 {L}
    s_sleep 8
    s_sub_u32 s{st}, s{st}, 1
    s_cmp_gt_i32 s{st}, 0
    s_cbranch_scc1 {Lp}
    {L}:
    """)

def signal_poll(k, sP, sWV, sOFF, target, others, st):
    L = k.label("sp"); Ls = k.label("ss")
    k.I(f"s_cmp_lg_u32 s{sWV}, 0\ns_cbranch_scc1 {L}\ns_mov_b32 s45, 1\ns_atomic_add s45, s[{sP}:{sP+1}], s{sOFF} glc")
    for i, (o, t) in enumerate(others):
        k.I(f"s_mov_b32 s{46+i}, 0\ns_atomic_add s{46+i}, s[{sP}:{sP+1}], s{o} glc")
    k.I("s_waitcnt lgkmcnt(0)")
    for i, (o, t) in enumerate(others):
        k.I(f"s_cmp_lt_u32 s{46+i}, {t}\ns_cbranch_scc1 {Ls}")
    k.I(f"s_cmp_ge_u32 s45, {target-1}\ns_cbranch_scc1 {L}")
    k.L(Ls)
    poll(k, sP, sWV, [(sOFF, target)] + list(others), st)
    k.L(L)
```

```python
from common import *
from gemm import G, common_ids, load_stats
ST = "sc1"
LD = "sc1"
W3_SLOT = 24576
W3_CS = 3 * W3_SLOT
W3_LDS = W3_CS
WS_CSA = WS_CS3

def ids_b(k, sID):
    k.I(f"""
    s_bfe_u32 s{G.sT0}, s{sID}, 0x10002
    s_bfe_u32 s{G.sRB}, s{sID}, 0x30003
    s_lshl_b32 s{G.sT0}, s{G.sT0}, 3
    s_add_u32 s{G.sRB}, s{G.sRB}, s{G.sT0}
    s_and_b32 s{G.sCB}, s{sID}, 3
    s_lshl_b32 s{G.sCB}, s{G.sCB}, 2
    s_bfe_u32 s{G.sT0}, s{sID}, 0x20006
    s_add_u32 s{G.sCB}, s{G.sCB}, s{G.sT0}
    """)

def emit_w3f(k, poll=None, after_sync=None, RA=5, prio=None, stamp=None, tail=None, opened=None, late=None):
    sPR, sK3, sPC, sSO, sHO = 50, 51, 52, 53, 54
    sOD, sS1, sCS = 48, 49, 55
    sK3o = [42, 43, 44]; sST = 34
    k.v.next = 1
    R = RA + 1
    vB = k.v.alloc(); vWo = k.v.alloc(); vWo1 = k.v.alloc(); vWa = [k.v.alloc(), k.v.alloc()]
    c1 = k.v.alloc(); c2 = k.v.alloc(); ri = k.v.alloc()
    T = k.v.alloc(4, 2); Bp = k.v.alloc(4, 2); Ap = k.v.alloc(4, 2)
    acc = [k.v.alloc(32, 4), k.v.alloc(32, 4)]
    Ab = [k.v.alloc(4, 4) for _ in range(R)]
    Bf = [k.v.alloc(4, 4) for _ in range(36)]
    vL, vT0, vT1 = T, T + 1, T + 2
    srd(k, G.sW, 38, D * F * 2)
    k.I(f"""
    v_and_b32 {v(vL)}, 63, v0
    s_lshl_b32 s{G.sMT}, s{G.sRB}, 2
    s_add_u32 s{G.sMT}, s{G.sMT}, s{G.sWV}
    v_lshlrev_b32 {v(vB)}, 4, {v(vL)}
    s_and_b32 s{sPR}, s{G.sRB}, 3
    s_bfe_u32 s{sK3}, s{G.sRB}, 0x10002
    s_and_b32 s{G.sT0}, s{G.sCB}, 3
    s_add_u32 s{sK3}, s{sK3}, s{G.sT0}
    s_cmp_ge_u32 s{sK3}, 3
    s_cselect_b32 s{G.sT0}, 3, 0
    s_sub_u32 s{sK3}, s{sK3}, s{G.sT0}
    s_mul_i32 s{sK3o[0]}, s{sK3}, {192*9216}
    s_add_u32 s{sK3o[1]}, s{sK3o[0]}, {192*9216}
    s_cmp_eq_u32 s{sK3}, 2
    s_cselect_b32 s{sK3o[1]}, 0, s{sK3o[1]}
    s_add_u32 s{sK3o[2]}, s{sK3o[1]}, {192*9216}
    s_cmp_eq_u32 s{sK3}, 1
    s_cselect_b32 s{sK3o[2]}, 0, s{sK3o[2]}
    v_bfe_u32 {v(vT0)}, {v(vL)}, 2, 2
    v_lshrrev_b32 {v(vT1)}, 5, {v(vL)}
    v_lshl_add_u32 {v(vT0)}, {v(vT1)}, 2, {v(vT0)}
    s_mul_i32 s{G.sT0}, s{G.sWV}, 48
    v_add_u32 {v(vT0)}, s{G.sT0}, {v(vT0)}
    v_mul_u32_u24 {v(vWo)}, 9216, {v(vT0)}
    v_bfe_u32 {v(vT0)}, {v(vL)}, 4, 1
    v_lshl_add_u32 {v(vWo)}, {v(vT0)}, 6, {v(vWo)}
    v_and_b32 {v(vT1)}, 3, {v(vL)}
    v_lshl_add_u32 {v(vWo)}, {v(vT1)}, 4, {v(vWo)}
    v_lshrrev_b32 {v(vT0)}, 2, {v(vL)}
    v_add_u32 {v(vT0)}, s{G.sT0}, {v(vT0)}
    v_mul_u32_u24 {v(vWo1)}, 9216, {v(vT0)}
    v_lshl_add_u32 {v(vWo1)}, {v(vT1)}, 4, {v(vWo1)}
    s_mul_i32 s{G.sWB}, s{G.sCB}, 576
    s_and_b32 s{sOD}, s{G.sCB}, 1
    s_cselect_b32 s{sS1}, 0, 8
    s_mul_i32 s{G.sM0}, s{G.sWV}, 6144
    s_mul_i32 s{G.sM0D}, s{G.sWV}, 3072
    """)
    NQ = 15
    def tile0(d, p):
        return [f"s_add_u32 s{d}, s{sPR}, {p}", f"s_and_b32 s{d}, s{d}, 3", f"s_lshl_b32 s{d}, s{d}, 1", f"s_add_u32 s{d}, s{d}, s{sOD}"]
    def stage_setup(q):
        p, th = divmod(q, 3)
        r = []
        if th == 0:
            if p < 4:
                r += tile0(sPC, p) + [f"s_lshl_b32 s{sPC}, s{sPC}, 6", f"s_add_u32 s{sPC}, s{sPC}, s{G.sWB}"]
            else:
                r += [f"s_lshl_b32 s{sPC}, s{sS1}, 6", f"s_add_u32 s{sPC}, s{sPC}, s{G.sWB}"]
        r += [f"s_add_u32 s{sSO}, s{sK3o[th]}, s{sPC}"]
        return r
    def loads(q):
        p, th = divmod(q, 3)
        g = []
        n = 6 if p < 4 else 3
        for i in range(n):
            pre = stage_setup(q) if i == 0 else [f"s_add_u32 s{sSO}, s{sSO}, {(8 if p < 4 else 16)*9216}"]
            pre = pre + [f"s_add_u32 m0, s{G.sM0 if p < 4 else G.sM0D}, {th*W3_SLOT + i*1024}"]
            g.append(pre + [f"buffer_load_dwordx4 {v(vWo if p < 4 else vWo1)}, {s(G.sW,4)}, s{sSO} offen lds"])
        return g
    vm = []
    def emit_group(g, tag):
        for x in g: k.I(x)
        vm.append(tag)
    def allowed(tags):
        last = max(i for i, t in enumerate(vm) if t in tags)
        return len(vm) - 1 - last
    tr_lane_addr(k, vWa[0], vL, vT0, vT1, 2 * 2 * 256, perm=True)
    k.I(f"v_add_u32 {v(vWa[1])}, {2*W3_SLOT}, {v(vWa[0])}")
    for q in range(3):
        for g in loads(q): emit_group(g, q)
        if q == 0 and opened: opened(6)
    st16 = acc[1]
    k.I(f"""
    v_and_b32 {v(vT0)}, 31, v0
    v_lshlrev_b32 {v(vT0)}, 3, {v(vT0)}
    s_lshl_b32 s{sST}, s{G.sMT}, 8
    s_add_u32 s{sST}, s{sST}, {WS_ST2}
    s_mul_i32 s{sCS}, s{G.sCB}, 9216
    s_add_u32 s{sCS}, s{sCS}, {WS_CS3}
    """)
    stl = []
    for c in range(9):
        stl.append(("st", ([f"s_add_u32 s{sST}, s{sST}, 16384"] if c else []) + [f"buffer_load_dwordx2 {v(st16+2*c,2)}, {v(vT0)}, {s(G.sWS,4)}, s{sST} offen {LD}"]))
    def cs_loads(p, t):
        pre = tile0(G.sT0, p) if p < 4 else [f"s_mov_b32 s{G.sT0}, s{sS1}"]
        pre += [f"s_lshl_b32 s{G.sT0}, s{G.sT0}, 10", f"s_add_u32 s{G.sT0}, s{G.sT0}, s{sCS}"]
        return [pre + [f"buffer_load_dwordx4 {v(Ap,4)}, {v(vB)}, {s(G.sWS,4)}, s{G.sT0} offen offset:{1024*t} {LD}"]]
    k.I(f"s_mul_i32 s{G.sBB}, s{G.sMT}, {36*1024}\ns_add_u32 s{G.sBB}, s{G.sBB}, {WS_X1}")
    bl = []
    for th in range(3):
        for i in range(12):
            pre = []
            if i == 0:
                pre = [f"s_add_u32 s{G.sOB}, s{sK3}, {th}"]
                if th: pre += [f"s_cmp_ge_u32 s{G.sOB}, 3", f"s_cselect_b32 s{G.sT1}, 3, 0", f"s_sub_u32 s{G.sOB}, s{G.sOB}, s{G.sT1}"]
                pre += [f"s_mul_i32 s{G.sOB}, s{G.sOB}, {12*1024}", f"s_add_u32 s{G.sOB}, s{G.sOB}, s{G.sBB}"]
            elif i % 4 == 0: pre = [f"s_add_u32 s{G.sOB}, s{G.sOB}, 4096"]
            bl.append((("b", 12 * th + i), pre + [f"buffer_load_dwordx4 {v(Bf[12*th+i],4)}, {v(vB)}, {s(G.sWS,4)}, s{G.sOB} offen offset:{1024*(i%4)} {LD}"]))
    stl.append(("st", [f"v_lshlrev_b32 {v(vT1)}, 1, {v(vT0)}", f"s_lshl_b32 s{sST}, s{G.sMT}, 9", f"s_add_u32 s{sST}, s{sST}, {WS_ST1}",
                       f"buffer_load_dword {v(st16+18)}, {v(vT1)}, {s(G.sWS,4)}, s{sST} offen offset:8 {LD}"]))
    NB0 = 8
    bl = bl[:17] + stl + bl[17:]
    def stats():
        if True:
            k.I(f"s_waitcnt vmcnt({allowed(['st'])})")
            for c in range(1, 9):
                k.I(f"v_add_f32 {v(st16)}, {v(st16)}, {v(st16+2*c)}\nv_add_f32 {v(st16+1)}, {v(st16+1)}, {v(st16+2*c+1)}")
            m, q2, r = st16, st16 + 1, st16 + 2
            k.I(f"""
            v_mul_f32 {v(m)}, {hx(f2u(-1.0/576))}, {v(m)}
            v_mul_f32 {v(q2)}, {hx(f2u(1.0/576))}, {v(q2)}
            v_fma_f32 {v(q2)}, -{v(m)}, {v(m)}, {v(q2)}
            v_max_f32 {v(q2)}, 0, {v(q2)}
            v_add_f32 {v(q2)}, {hx(f2u(1e-5))}, {v(q2)}
            v_rsq_f32 {v(r)}, {v(q2)}
            v_sqrt_f32 {v(ri)}, {v(q2)}
            v_sub_f32 {v(st16+18)}, 1.0, {v(st16+18)}
            v_max_f32 {v(st16+18)}, {hx(f2u(1e-30))}, {v(st16+18)}
            v_rcp_f32 {v(st16+18)}, {v(st16+18)}
            v_mul_f32 {v(ri)}, {v(ri)}, {v(st16+18)}
            v_and_b32 {v(st16+4)}, 0xffff0000, {v(m)}
            v_sub_f32 {v(m)}, {v(m)}, {v(st16+4)}
            v_mul_f32 {v(c1)}, {hx(f2u(GK1))}, {v(r)}
            v_mul_f32 {v(c2)}, {v(r)}, {v(r)}
            v_mul_f32 {v(c2)}, {v(c2)}, {v(r)}
            v_mul_f32 {v(c2)}, {hx(f2u(GK2))}, {v(c2)}
            v_cvt_pk_bf16_f32 {v(Bp)}, {v(st16+4)}, {v(m)}
            v_cvt_pk_bf16_f32 {v(Bp+1)}, {v(st16+4)}, {v(m)}
            v_cvt_pk_bf16_f32 {v(Bp+2)}, {v(st16+4)}, {v(m)}
            v_cvt_pk_bf16_f32 {v(Bp+3)}, {v(st16+4)}, {v(m)}
            """)
    k.I(f"s_mul_i32 s{sHO}, s{G.sMT}, 288\ns_mul_i32 s{G.sT0}, s{G.sCB}, 18\ns_add_u32 s{sHO}, s{sHO}, s{G.sT0}")
    k.I(f"s_lshl_b32 s{sHO}, s{sHO}, 10\ns_add_u32 s{sHO}, s{sHO}, {WS_H}")
    if poll: poll()
    k.I(f"s_waitcnt vmcnt({allowed([0])})\ns_barrier")
    if after_sync: after_sync()
    for tag, g in bl[:NB0]: emit_group(g, tag)
    bl = bl[NB0:]
    if prio is not None: k.I(f"s_setprio {prio}")
    if stamp: stamp(2)
    seq = []
    for q in range(NQ):
        nt = 2 if q < 12 else 1
        for ks in range(12):
            for t in range(nt): seq.append((q, ks, t, nt))
    N = len(seq)
    stage_end = {}
    for n, (q, ks, t, nt) in enumerate(seq): stage_end[q] = n + 1
    lg = []
    def reads(n):
        q, ks, t, nt = seq[n]; th = q % 3
        base = vWa[1] if th == 2 else vWa[0]
        off0 = (th % 2) * W3_SLOT if th < 2 else 0
        for rd in range(2):
            k.I(f"ds_read_b64_tr_b16 {v(Ab[n % R]+2*rd,2)}, {v(base)} offset:{off0 + (4*ks+rd)*nt*256 + t*256}")
            lg.append(n)
    def lgwait(tag):
        last = max(i for i, t in enumerate(lg) if t == tag)
        return min(15, len(lg) - 1 - last)
    def gelu_ops(p):
        a0 = acc[p & 1]; nt = 2 if p < 4 else 1
        ops = []
        if p < 4:
            ops += tile0(G.sT1, p) + [f"s_lshl_b32 s{G.sT1}, s{G.sT1}, 11", f"s_add_u32 s{G.sT1}, s{G.sT1}, s{sHO}"]
        else:
            ops += [f"s_lshl_b32 s{G.sT1}, s{sS1}, 11", f"s_add_u32 s{G.sT1}, s{G.sT1}, s{sHO}"]
        for g in range(4 * nt):
            a = a0 + 4 * g
            ops += [f"v_mul_f32 {v(T+j)}, {v(a+j)}, {v(a+j)}" for j in range(4)]
            ops += [f"v_fma_f32 {v(T+j)}, {v(T+j)}, {v(c2)}, {v(c1)}" for j in range(4)]
            ops += [f"v_mul_f32 {v(T+j)}, {v(T+j)}, {v(a+j)}" for j in range(4)]
            ops += [f"v_exp_f32 {v(T+j)}, {v(T+j)}" for j in range(4)]
            ops += [f"v_fma_f32 {v(T+j)}, {v(T+j)}, {v(ri)}, {v(ri)}" for j in range(4)]
            ops += [f"v_rcp_f32 {v(T+j)}, {v(T+j)}" for j in range(4)]
            ops += [f"v_mul_f32 {v(T+j)}, {v(T+j)}, {v(a+j)}" for j in range(4)]
            d = a0 + 8 * (g // 2) + 2 * (g % 2)
            ops += [f"v_cvt_pk_bf16_f32 {v(d)}, {v(T)}, {v(T+1)}", f"v_cvt_pk_bf16_f32 {v(d+1)}, {v(T+2)}, {v(T+3)}"]
            if g % 2:
                ops += [f"buffer_store_dwordx4 {v(a0+8*(g//2),4)}, {v(vB)}, {s(G.sWS,4)}, s{G.sT1} offen offset:{1024*(g//2)} {ST}"]
        return ops
    def cost(x):
        return 8 if x.startswith(("v_exp", "v_rcp")) else 4
    def emit_fill(x):
        k.I(x)
        if x.startswith("buffer_"): vm.append("store")
    for n in range(RA): reads(n)
    nread = RA
    limit = stage_end[0]
    nxt = 3
    fill = []
    done = -1
    for n, (q, ks, t, nt) in enumerate(seq):
        p, th = divmod(q, 3)
        s0 = stage_end[q] - 12 * nt
        r = n - s0
        NS = 12 * nt
        if r == 0:
            gl = []
            if nxt <= q + 2 and nxt < NQ:
                gl = [(nxt, g) for g in loads(nxt)]; nxt += 1
            if 1 <= th <= nt: gl = [(("cs", p, th - 1), g) for g in cs_loads(p, th - 1)] + gl
            if q == NQ - 1 and tail:
                tpre, tgl = tail(Bf[0])
                for x in tpre: k.I(x)
                bl += [("t", g) for g in tgl]
            span = NS - RA
            where = {}
            for j, g in enumerate(gl): where.setdefault(j * span // len(gl), []).append(g)
            assert all(len(x) == 1 for x in where.values())
            if th == 0 and p > 0:
                assert not fill
                fill = gelu_ops(p - 1)
                fill_total = sum(cost(x) for x in fill); fill_done = 0
                pass_len = 36 * nt
        a = acc[p & 1] + 16 * t
        if n == 36: stats()
        w = []
        if p == 0 and t == 0: w.append(f"vmcnt({allowed([('b', 12*th+ks)])})")
        if done < n:
            tgt = min(n + 1, nread - 1)
            w.append(f"lgkmcnt({lgwait(tgt)})"); done = tgt
        if w: k.I("s_waitcnt " + " ".join(w))
        k.I(f"v_mfma_f32_32x32x16_bf16 {v(a,16)}, {v(Ab[n % R],4)}, {v(Bf[12*th+ks],4)}, {'0' if th == 0 and ks == 0 else v(a,16)}")
        if th == t + 1 and ks == 8:
            k.I(f"s_waitcnt vmcnt({allowed([('cs', p, t)])})")
            k.I(f"v_mfma_f32_32x32x16_bf16 {v(a,16)}, {v(Ap,4)}, {v(Bp,4)}, {v(a,16)}")
        if r == NS - RA + 1 and q < NQ - 1:
            assert nread == limit
            k.I(f"s_waitcnt vmcnt({allowed([q+1])}) lgkmcnt(0)")
            if q == 0 and late: late()
            k.I("s_barrier")
            if stamp and q in (2, 8): stamp({2: 3, 8: 4}[q])
            limit = stage_end[q + 1]
            done = nread - 1
            if q == 11:
                k.I(f"v_and_b32 {v(vWo)}, 0x200, {v(vB)}\nv_sub_u32 {v(vWa[0])}, {v(vWa[0])}, {v(vWo)}\nv_sub_u32 {v(vWa[1])}, {v(vWa[1])}, {v(vWo)}")
        gs = where.get(r, [])
        if bl and not gs: gs = [bl.pop(0)]
        for (tag, g) in gs:
            for x in g[:-1]: k.I(x)
        cnt = 0
        while nread < min(n + RA + 1, limit, N) and cnt < 2:
            reads(nread); nread += 1; cnt += 1
        for (tag, g) in gs:
            k.I(g[-1]); vm.append(tag)
        if fill:
            pos = th * NS + r
            if pos >= 2:
                tgt = fill_total * (pos - 1) / (pass_len - 4)
                while fill and fill_done < tgt:
                    x = fill.pop(0); emit_fill(x); fill_done += cost(x)
    assert not fill and not bl
    k.I("s_setprio 3")
    if stamp: stamp(5)
    for x in gelu_ops(4): emit_fill(x)
    return W3_LDS

def standalone(k, sID, kidx):
    k.stamp(0)
    k.I(f"s_load_dwordx2 s[38:39], s[0:1], {KA_W3}\ns_load_dwordx2 s[40:41], s[0:1], {KA_WS}")
    k.I(f"v_lshrrev_b32 v1, 6, v0\nv_readfirstlane_b32 s{G.sWV}, v1")
    ids_b(k, sID)
    k.I("s_waitcnt lgkmcnt(0)")
    srd(k, G.sWS, 40, WS_SIZE)
    lds = emit_w3f(k)
    k.end(kidx)
    return lds
```

```python
from common import *
from gemm import G
import attn, sync, small, w3f, kgemm, phase1
from kgemm import sRB2, sCB2
from phase1 import *
from sync import WS_CNT, C1, C2, C3, CA, CW, CS, CH, CQ
NAME = "gated_mix__mha_block__mixer_s_mlp__prompt_kernel"

def gen(prio="12200", focus=None, noatt=False, sw=5):
    kidx = 0
    k = Kern(NAME, vlimit=256)
    k.name_short = "f"
    k.I("s_cmp_ge_u32 s2, 512\ns_cbranch_scc1 L_exit")
    k.stamp(0)
    st0 = STAMP[0]
    k.I(f"""
    s_getpc_b64 s[34:35]
    L_pc0:
    s_load_dwordx8 s[60:67], s[0:1], 0
    s_load_dwordx8 s[68:75], s[0:1], 32
    s_load_dwordx4 s[76:79], s[0:1], 64
    s_load_dwordx2 s[80:81], s[0:1], {KA_DBG}
    s_load_dwordx2 s[40:41], s[0:1], {KA_WS}
    s_lshr_b32 s3, s2, 3
    v_lshlrev_b32 v1, 6, v0
    v_add_u32 v1, s3, v1
    v_lshlrev_b32 v1, 7, v1
    v_min_u32 v1, L_exit-L_pc0, v1
    s_mov_b64 exec, 0xffff
    global_load_dword v255, v1, s[34:35]
    s_mov_b64 exec, -1
    v_lshrrev_b32 v1, 6, v0
    v_readfirstlane_b32 s{G.sWV}, v1
    """)
    k.v.hi = 256
    ids1(k)
    k.I(f"s_cmp_ge_u32 s2, 256\ns_cbranch_scc1 L_b")
    STAMP[0] = st0 and focus == "p1"
    k.I(f"s_cmp_eq_u32 s{sROLE}, 3\ns_cbranch_scc1 L_a_side\ns_setprio 2\ns_cmp_eq_u32 s{sROLE}, 2\ns_cbranch_scc1 L_a_v")
    emit_qk(k)
    k.I("s_branch L_a_sig")
    k.L("L_a_v")
    emit_v(k)
    k.L("L_a_sig")
    k.stamp(3)
    k.I(f"""
    s_cmp_lg_u32 s{G.sWV}, 0
    s_cbranch_scc1 L_a_att
    s_lshl_b32 s56, s2, 7
    s_add_u32 s56, s56, {WS_CNT + 128*sync.CP}
    s_mov_b32 s3, 1
    s_atomic_add s3, s[40:41], s56 glc
    s_branch L_a_att
    """)
    k.L("L_a_side")
    emit_side_a(k)
    k.L("L_a_att")
    if focus == "p1": STAMP[0] = False
    else: STAMP[0] = st0
    def a_poll(sWVa):
        k.I(f"""
        s_bfe_u32 s56, s2, 0x20001
        s_lshl_b32 s56, s56, 2
        s_bfe_u32 s57, s2, 0x20003
        s_add_u32 s56, s56, s57
        s_lshl_b32 s56, s56, 7
        s_add_u32 s56, s56, {WS_CNT + 128*CQ}
        """)
        k.I(f"""
        s_lshr_b32 s58, s2, 5
        s_lshl_b32 s58, s58, 8
        s_add_u32 s58, s58, {WS_CNT + 128*sync.CR}
        s_add_u32 s59, s58, 128
        s_waitcnt vmcnt(0) lgkmcnt(0)
        s_barrier
        """)
        if focus == "p1":
            STAMP[0] = st0; k.stamp(4); STAMP[0] = False
        k.I(f"""
        s_cmp_lg_u32 s{sWVa}, 0
        s_cbranch_scc1 L_a_ns
        s_cmp_eq_u32 s{sROLE}, 3
        s_cbranch_scc1 L_a_ns
        s_lshl_b32 s3, s{sCB1}, 9
        s_add_u32 s3, s3, {WS_CNT + 128*CQ}
        """)
        for r in range(4):
            k.I(f"s_mov_b32 s{52+r}, 1\ns_atomic_add s{52+r}, s[40:41], s3 glc\ns_add_u32 s3, s3, 128")
        k.L("L_a_ns")
        sync.poll(k, 40, sWVa, [(58, 16), (59, 16), (56, 48)], 57, rest=1)
        k.I("s_waitcnt lgkmcnt(0)\ns_barrier")
        if focus == "p1":
            STAMP[0] = st0; k.stamp(5); STAMP[0] = False
    def a_finish(sWVa):
        STAMP[0] = st0
        k.end(kidx)
    k.I("s_setprio 3")
    attn.NOATT = noatt
    attn.emit_attn(k, 2, kidx, pfx="ma", prio=int(prio[0]), finish=a_finish, poll=a_poll)
    k.L("L_b")
    STAMP[0] = st0 and focus == "p1"
    sCN = 56
    k.I(f"s_cmp_lg_u32 s{sROLE}, 3\ns_cbranch_scc1 L_b_side\ns_setprio 2")
    emit_w1(k)
    k.stamp(3)
    k.I(f"s_lshl_b32 s{sCN}, s{sRB1}, 7\ns_add_u32 s{sCN}, s{sCN}, {WS_CNT + 128*CH}\ns_waitcnt vmcnt(0)\ns_barrier")
    k.stamp(4)
    sync.signal(k, 40, G.sWV, sCN, 57)
    k.I("s_branch L_b_w2")
    k.L("L_b_side")
    emit_side_b(k)
    k.stamp(4)
    k.L("L_b_w2")
    k.I(f"s_setprio {prio[1]}\ns_mov_b64 s[36:37], s[{P_X}:{P_X+1}]\ns_mov_b64 s[38:39], s[{P_W2}:{P_W2+1}]")
    w3f.ids_b(k, 2)
    kgemm.tile64w2_ids(k)
    k.I("s_cbranch_scc1 L_b_cs")
    def pollh():
        k.I(f"""
        s_lshl_b32 s52, s{sRB2}, 7
        s_add_u32 s53, s52, 128
        s_and_b32 s53, s53, 2047
        s_sub_u32 s54, s52, 128
        s_and_b32 s54, s54, 2047
        s_add_u32 s52, s52, {WS_CNT + 128*CH}
        s_add_u32 s53, s53, {WS_CNT + 128*CH}
        s_add_u32 s54, s54, {WS_CNT + 128*CH}
        """)
        sync.poll(k, 40, G.sWV, [(52, 4), (53, 4), (54, 4)], 57)
        k.stamp(5)
    kgemm.emit_w2k(k, pollh)
    k.stamp(3)
    k.I(f"s_lshl_b32 s3, s{sRB2}, 7\ns_add_u32 s3, s3, {WS_CNT + 128*C1}\ns_barrier")
    k.I("s_branch L_b_w3")
    k.L("L_b_cs")
    emit_cs3(k, sCB2)
    k.I(f"s_mov_b32 s3, {WS_CNT + 128*(CS + 4)}")
    k.L("L_b_w3")
    st = st0 and not focus
    k.I(f"s_mov_b64 s[38:39], s[{P_W3}:{P_W3+1}]\ns_setprio 3")
    STAMP[0] = False
    def stw3(i):
        if focus == "w3":
            STAMP[0] = st0; k.stamp(i); STAMP[0] = False
    def st2():
        STAMP[0] = st; k.stamp(2); STAMP[0] = False
        stw3(1)
    def poll1():
        k.I(f"""
        s_lshl_b32 s{sCN}, s{G.sRB}, 7
        s_add_u32 s{sCN}, s{sCN}, {WS_CNT + 128*C1}
        s_and_b32 s59, s2, 3
        s_lshl_b32 s59, s59, 7
        s_add_u32 s59, s59, {WS_CNT + 128*CS}
        """)
        sync.poll(k, 40, G.sWV, [(sCN, 9)], 57)
        L = k.label("ca")
        k.I(f"s_mov_b32 s58, 54\ns_cmp_lg_u32 s{G.sWV}, 0\ns_cbranch_scc1 {L}\ns_mov_b32 s58, 0\ns_atomic_add s58, s[40:41], s59 glc\n{L}:")
    def late():
        L = k.label("cb")
        k.I(f"s_cmp_ge_u32 s58, 54\ns_cbranch_scc1 {L}")
        sync.poll(k, 40, G.sWV, [(59, 54)], 57)
        k.L(L)
    def opened(n):
        k.I(f"s_waitcnt vmcnt({n})\ns_barrier")
        sync.signal(k, 40, G.sWV, 3, 57)
        STAMP[0] = st0 and focus == "p1"; k.stamp(6); STAMP[0] = False
    w4 = []
    def tail(base):
        m = k.v.next
        w4.append(kgemm.W4(k, base))
        k.v.next = m
        return w4[0].early(P_W4)
    w3f.emit_w3f(k, poll=poll1, after_sync=st2, prio=prio[2], stamp=stw3, tail=tail, opened=opened, late=late)
    STAMP[0] = st
    k.I(f"""
    s_lshl_b32 s{sCN}, s{G.sRB}, 2
    s_add_u32 s{sCN}, s{sCN}, s{G.sSP}
    s_lshl_b32 s{sCN}, s{sCN}, 7
    s_add_u32 s{sCN}, s{sCN}, {WS_CNT + 128*C2}
    s_waitcnt vmcnt(0)
    """)
    stw3(6); STAMP[0] = st
    k.stamp(3)
    def hooks(stg):
        if stg == sw: k.I(f"s_setprio {prio[4]}")
        if stg == -1:
            L = k.label("s2")
            k.I(f"s_mov_b32 s59, 3\ns_cmp_lg_u32 s{G.sWV}, 0\ns_cbranch_scc1 {L}\ns_mov_b32 s59, 1\ns_atomic_add s59, s[40:41], s{sCN} glc\n{L}:")
        if stg == 1:
            L = k.label("p2")
            k.I(f"s_cmp_ge_u32 s59, 3\ns_cbranch_scc1 {L}")
            sync.poll(k, 40, G.sWV, [(sCN, 4)], 57)
            k.L(L)
        if stg == 14:
            L = k.label("sa")
            k.I(f"s_mov_b32 s59, 32\ns_cmp_lg_u32 s{G.sWV}, 0\ns_cbranch_scc1 {L}\ns_lshl_b32 s58, s{G.sRB}, 7\ns_add_u32 s58, s58, {WS_CNT + 128*CA}\ns_mov_b32 s59, 0\ns_atomic_add s59, s[40:41], s58 glc\n{L}:")
        if stg == 15:
            L = k.label("pa")
            k.I(f"s_cmp_ge_u32 s59, 32\ns_cbranch_scc1 {L}")
            sync.poll(k, 40, G.sWV, [(58, 32)], 57)
            k.L(L)
            k.stamp(1)
    kgemm.emit_w4k(k, w4[0], hooks, prio[3])
    k.I(f"""
    s_mov_b64 s[36:37], s[{P_OUT}:{P_OUT+1}]
    s_lshl_b32 s{sCN}, s{G.sRB}, 2
    s_and_b32 s{G.sT0}, s{G.sCB}, 3
    s_add_u32 s{sCN}, s{sCN}, s{G.sT0}
    s_lshl_b32 s{sCN}, s{sCN}, 7
    s_add_u32 s{sCN}, s{sCN}, {WS_CNT + 128*C3}
    """)
    def sync_all(vt):
        k.I("s_waitcnt vmcnt(0)\ns_barrier")
        sync.signal_poll(k, 40, G.sWV, sCN, 4, [], 57)
        k.I("s_barrier")
        k.stamp(6)
    small.emit_sum(k, sync_all)
    STAMP[0] = st0
    k.end(kidx)
    k.L("L_exit"); k.I("s_endpgm")
    return k, (NAME, 512, 256, 81920)

if __name__ == "__main__":
    import sys
    STAMP[0] = "nostamp" not in sys.argv
    opt = dict(a.split("=") for a in sys.argv if "=" in a)
    kk, l = gen(opt.get("prio", "12200"), opt.get("focus"), "noatt" in sys.argv, int(opt.get("sw", 5)))
    hdr = "".join(x for x in open("gated_mix__mha_block__mixer_s_mlp__prompt.s.ref").readlines()[:13])
    open(sys.argv[1], "w").write(build([kk], [l], header=hdr, single=True))
    print(l, "vgprs", kk.v.hi)
```
